```python
import torch

def _softmax(x, axis=-1):
    return torch.softmax(x, dim=axis)
def _gelu(x):
    return torch.nn.functional.gelu(x, approximate="tanh")
def _silu(x):
    return torch.nn.functional.silu(x)
def _sigmoid(x):
    return torch.sigmoid(x)
def _layernorm(x, axis=-1, eps=1e-5):
    m = x.mean(dim=axis, keepdim=True)
    v = x.var(dim=axis, keepdim=True, unbiased=False)
    return (x - m) / torch.sqrt(v + eps)
def _scatter_add(tgt, idx, src, axis=0):
    return tgt.clone().index_add_(axis, idx, src)
def _segment_sum(src, seg, n):
    out = torch.zeros((n,) + src.shape[1:], dtype=src.dtype)
    return out.index_add_(0, seg, src)
def _pad(x, pw):
    flat = tuple(v for pair in reversed(pw) for v in pair)
    return torch.nn.functional.pad(x, flat)

kernel_name = 'interleave_layers__sliding_block_cached__glu_gated_bilinear__decode'

def setup_inputs():

    _w = (lambda a: (lambda t: t.to(torch.bfloat16) if t.is_floating_point() else t)(torch.as_tensor(a)))
    def _A_setup():
        B, Sq, D = 1, 1, 640
        Hq, Hkv, Sk, Dh = 32, 32, 8192, 192
        assert Hq % Hkv == 0, (Hq, Hkv)
        return {
            "x": _w((lambda *s: torch.randn(*s, dtype=torch.bfloat16) * 0.05)(B, Sq, D)),
            "k_cache": _w((lambda *s: torch.randn(*s, dtype=torch.bfloat16) * 0.8)(B, Hkv, Sk, Dh)),
            "v_cache": _w((lambda *s: torch.randn(*s, dtype=torch.bfloat16) * 0.8)(B, Hkv, Sk, Dh)),
            "wq": _w((lambda *s: torch.randn(*s, dtype=torch.bfloat16) * 0.8)(D, Hq * Dh) * (D ** -0.5)),
            "wo": _w((lambda *s: torch.randn(*s, dtype=torch.bfloat16) * 0.8)(Hq * Dh, D) * ((Hq * Dh) ** -0.5)),
        }
    _A_in = _A_setup()

    def _B_setup():
        B, S, D, F = 1, 1, 640, 1536
        return {
            "x": _w((lambda *s: torch.randn(*s, dtype=torch.bfloat16) * 0.05)(B, S, D)),
            "w_gate": _w((lambda *s: torch.randn(*s, dtype=torch.bfloat16) * 0.4)(D, F) * (D ** -0.5)),
            "w_up": _w((lambda *s: torch.randn(*s, dtype=torch.bfloat16) * 0.4)(D, F) * (D ** -0.5)),
            "w_down": _w((lambda *s: torch.randn(*s, dtype=torch.bfloat16) * 0.4)(F, D) * (F ** -0.5)),
        }
    _B_in = _B_setup()

    return {
        "A_x": _A_in["x"],
        "A_k_cache": _A_in["k_cache"],
        "A_v_cache": _A_in["v_cache"],
        "A_wq": _A_in["wq"],
        "A_wo": _A_in["wo"],
        "B_x": _B_in["x"],
        "B_w_gate": _B_in["w_gate"],
        "B_w_up": _B_in["w_up"],
        "B_w_down": _B_in["w_down"],
    }

def reference(A_x, A_k_cache, A_v_cache, A_wq, A_wo, B_x, B_w_gate, B_w_up, B_w_down):
    def _A_ref(x, k_cache, v_cache, wq, wo):
        B, Sq, D = x.shape
        Hq, Dh = 32, 192
        Hkv, Sk = k_cache.shape[1], k_cache.shape[2]
        W = min(4096, max(256, Sk // 4))
        rep = Hq // Hkv
        q = (lambda x, *d: x.permute(*d))((x @ wq).reshape(B, Sq, Hq, Dh), 0, 2, 1, 3)
        k = (lambda x, n, axis: torch.repeat_interleave(x, n, dim=axis))(k_cache[:, :, Sk - W:, :], rep, axis=1)
        v = (lambda x, n, axis: torch.repeat_interleave(x, n, dim=axis))(v_cache[:, :, Sk - W:, :], rep, axis=1)
        scores = torch.einsum("bhqd,bhkd->bhqk", q, k) * (Dh ** -0.5)
        p = _softmax(scores, axis=-1)
        o = torch.einsum("bhqk,bhkd->bhqd", p, v)
        return (lambda x, *d: x.permute(*d))(o, 0, 2, 1, 3).reshape(B, Sq, Hq * Dh) @ wo

    def _B_ref(x, w_gate, w_up, w_down):
        g = torch.einsum("bsd,df->bsf", x, w_gate)
        u = torch.einsum("bsd,df->bsf", x, w_up)
        h = g * u
        return torch.einsum("bsf,fd->bsd", h, w_down)

    x = A_x
    x = x + _A_ref(_layernorm(x, axis=-1), A_k_cache, A_v_cache, A_wq, A_wo)
    x = x + _B_ref(_layernorm(x, axis=-1), B_w_gate, B_w_up, B_w_down)
    x = x + _A_ref(_layernorm(x, axis=-1), A_k_cache, A_v_cache, A_wq, A_wo)
    x = x + _B_ref(_layernorm(x, axis=-1), B_w_gate, B_w_up, B_w_down)
    return x
```

```python
import re

_REG = re.compile(r"^(-|abs\()?([vsa])(\d+)\)?$")
_RNG = re.compile(r"^(-)?([vsa])\[(\d+):(\d+)\]$")


def regs_of(op):
    op = op.strip()
    m = _REG.match(op)
    if m:
        return [(m.group(2), int(m.group(3)))]
    m = _RNG.match(op)
    if m:
        return [(m.group(2), i) for i in range(int(m.group(3)), int(m.group(4)) + 1)]
    if op == "vcc":
        return [("s", "vcc_lo"), ("s", "vcc_hi")]
    if op in ("vcc_lo", "vcc_hi"):
        return [("s", op)]
    if op == "exec":
        return [("s", "exec_lo"), ("s", "exec_hi")]
    if op in ("exec_lo", "exec_hi"):
        return [("s", op)]
    if op == "m0":
        return [("s", "m0")]
    return []


def v(i, n=1):
    return f"v{i}" if n == 1 else f"v[{i}:{i + n - 1}]"


def s(i, n=1):
    return f"s{i}" if n == 1 else f"s[{i}:{i + n - 1}]"


TRANS = ("v_exp_f32", "v_log_f32", "v_rcp_f32", "v_rsq_f32", "v_sqrt_f32", "v_sin_f32", "v_cos_f32", "v_rcp_iflag_f32")


class Ins:
    __slots__ = ("op", "ops", "mods", "text", "kind", "w", "r", "cls", "dppsrc", "srcC", "label", "target")

    def __init__(self, op, ops, mods):
        self.op, self.ops, self.mods = op, ops, mods
        self.text = "    " + op + (" " + ", ".join(ops) if ops else "") + (" " + mods if mods else "")
        self.label = None
        self.target = None
        self.dppsrc = []
        self.srcC = []
        self.w, self.r = [], []
        self.cls = "other"
        self._classify()

    def _classify(self):
        op, o = self.op, self.ops
        R = lambda *idx: [x for i in idx if i < len(o) for x in regs_of(o[i])]
        if op.startswith("v_mfma") or op.startswith("v_smfmac"):
            self.cls = "mfma"
            self.w = R(0)
            self.r = R(1, 2, 3)
            self.srcC = R(3) if op.startswith("v_mfma") else R(0)
            if op.startswith("v_smfmac"):
                self.r += R(0)
        elif op.startswith("v_"):
            self.cls = "valu"
            if op.startswith("v_cmp"):
                self.w = R(0)
                self.r = R(1, 2)
            elif op.startswith("v_permlane") and "swap" in op:
                self.cls = "valu"
                self.w = R(0, 1)
                self.r = R(0, 1)
            elif op.startswith("v_readlane") or op.startswith("v_readfirstlane"):
                self.w = R(0)
                self.r = R(1, 2)
            elif op.startswith("v_writelane"):
                self.w = R(0)
                self.r = R(0, 1, 2)
            elif op.startswith("v_add_co") or op.startswith("v_sub_co") or op.startswith("v_addc_co"):
                self.w = R(0, 1)
                self.r = R(2, 3, 4)
            else:
                self.w = R(0)
                self.r = R(*range(1, len(o)))
                if op.startswith("v_fmac") or op.startswith("v_dot2c") or op.startswith("v_pk_fmac"):
                    self.r += R(0)
                if op.startswith("v_cndmask") and len(o) == 3:
                    self.r += regs_of("vcc")
            if op.endswith("_dpp"):
                self.dppsrc = R(1)
                self.r += R(0)
        elif op.startswith("ds_"):
            self.cls = "ds"
            if op.startswith("ds_read") or op.startswith("ds_bpermute") or op.startswith("ds_permute") or op.startswith("ds_swizzle"):
                self.w = R(0)
                self.r = R(*range(1, len(o)))
            else:
                self.r = R(*range(len(o)))
        elif op.startswith("buffer_") or op.startswith("global_"):
            self.cls = "vmem"
            lds = "lds" in self.mods.split() or "_lds_" in op
            if "load" in op and not lds:
                self.w = R(0)
                self.r = R(*range(1, len(o)))
            elif "atomic" in op and "sc0" in self.mods.split():
                self.w = R(0)
                self.r = R(*range(len(o)))
            else:
                self.r = R(*range(len(o)))
            if lds:
                self.r += regs_of("m0")
        elif op.startswith("s_"):
            self.cls = "salu"
            if op in ("s_nop", "s_waitcnt", "s_barrier", "s_sleep", "s_endpgm", "s_setprio", "s_branch") or op.startswith("s_cbranch"):
                if op == "s_branch" or op.startswith("s_cbranch"):
                    self.target = o[0]
            elif op.startswith("s_cmp") or op.startswith("s_bitcmp"):
                self.r = R(0, 1)
            elif op.startswith("s_load") or op.startswith("s_memtime") or op.startswith("s_memrealtime"):
                self.cls = "smem"
                self.w = R(0)
                self.r = R(1)
            elif "saveexec" in op:
                self.w = R(0) + regs_of("exec")
                self.r = R(1) + regs_of("exec")
            else:
                self.w = R(0)
                self.r = R(*range(1, len(o)))

    def states(self):
        if self.op == "s_nop":
            return int(self.ops[0]) + 1
        return 1


def need(prod, cons):
    n = 0
    pw = set(prod.w)
    cr = set(cons.r)
    cw = set(cons.w)
    pv = {x for x in pw if x[0] in "va"}
    ps = {x for x in pw if x[0] == "s"}
    if prod.cls == "valu":
        if pv & set(cons.dppsrc):
            n = max(n, 2)
        if cons.cls == "mfma" and pv & cr:
            n = max(n, 2)
        if prod.op in TRANS and cons.cls in ("valu", "mfma") and cons.op not in TRANS and pv & cr:
            n = max(n, 1)
        if prod.op in TRANS and cons.cls == "valu" and pv & cr:
            n = max(n, 1)
        if (cons.op.startswith("v_readlane") or cons.op.startswith("v_readfirstlane")) and pv & cr:
            n = max(n, 1)
        if cons.op.startswith("v_permlane") and pv & cr:
            n = max(n, 2)
        if ps:
            if cons.cls == "valu" and ps & cr:
                n = max(n, 2)
                if cons.op.startswith("v_readlane") or cons.op.startswith("v_writelane"):
                    n = max(n, 4)
            if cons.cls == "vmem" and ps & cr:
                n = max(n, 5)
            if cons.cls == "mfma" and ps & set(regs_of("exec")):
                n = max(n, 4)
        if prod.mods and ("op_sel" in prod.mods or "dst_sel" in prod.mods) and cons.cls == "valu" and pv & (cr | cw):
            n = max(n, 1)
    if prod.cls == "mfma":
        big = "32x32" in prod.op
        a, b, c = (12, 10, 7) if big else (8, 6, 3)
        if cons.cls == "mfma":
            ab = set(regs_of(cons.ops[1])) | set(regs_of(cons.ops[2]))
            if pv & ab:
                n = max(n, a)
            cC = set(cons.srcC)
            if pv & cC:
                same = (regs_of(prod.ops[0]) == list(cons.srcC)) and (("32x32" in cons.op) == big)
                if not same:
                    n = max(n, b)
            if pv & cw and not (pv & cC):
                n = max(n, b)
        elif cons.cls in ("valu", "vmem", "ds"):
            if pv & (cr | cw):
                n = max(n, a)
        if cons.cls == "valu" and set(prod.srcC) & cw:
            n = max(n, c)
    if prod.cls == "salu" and ("s", "m0") in pw and cons.cls == "vmem" and ("s", "m0") in cr:
        n = max(n, 1)
    if prod.cls == "vmem" and "store" in prod.op and ("x4" in prod.op or "x3" in prod.op):
        data = set(regs_of(prod.ops[0]))
        if cons.cls in ("valu", "mfma") and data & cw:
            n = max(n, 2)
        elif data & cw:
            n = max(n, 1)
    return n


MAXBACK = 14


class Asm:
    def __init__(self):
        self.items = []

    def I(self, op, *ops, mods=""):
        ins = Ins(op, [str(x) for x in ops], mods)
        self.items.append(ins)
        return ins

    def label(self, name):
        self.items.append(("label", name))

    def c(self, text):
        self.items.append(("raw", "    ; " + text))

    def raw(self, text):
        self.items.append(("raw", text))

    def nop(self, n):
        while n > 0:
            k = min(n, 16)
            self.I("s_nop", k - 1)
            n -= k

    def wait(self, vm=None, lgkm=None):
        p = []
        if vm is not None:
            assert 0 <= vm <= 63, vm
            p.append(f"vmcnt({vm})")
        if lgkm is not None:
            assert 0 <= lgkm <= 15
            p.append(f"lgkmcnt({lgkm})")
        ins = Ins("s_waitcnt", [], " ".join(p))
        self.items.append(ins)

    def fix(self):
        out = []
        hist = []
        nadded = 0
        for it in self.items:
            if isinstance(it, Ins):
                req = 0
                dist = 0
                for p in reversed(hist[-MAXBACK:]):
                    nd = need(p, it)
                    if nd > dist:
                        req = max(req, nd - dist)
                    dist += p.states()
                    if dist >= MAXBACK:
                        break
                while req > 0:
                    k = min(req, 16)
                    nop = Ins("s_nop", [str(k - 1)], "")
                    out.append(nop)
                    hist.append(nop)
                    req -= k
                    nadded += 1
                out.append(it)
                hist.append(it)
                if it.op in ("s_branch", "s_endpgm"):
                    hist = []
            else:
                out.append(it)
        self.items = out
        self._check_branches()
        return nadded

    def _check_branches(self):
        idx = {}
        for i, it in enumerate(self.items):
            if not isinstance(it, Ins) and it[0] == "label":
                idx[it[1]] = i
        problems = []
        for i, it in enumerate(self.items):
            if isinstance(it, Ins) and it.target:
                if it.target not in idx:
                    raise ValueError("unknown label " + it.target)
                tail = []
                k = i
                while k >= 0 and len(tail) < MAXBACK:
                    x = self.items[k]
                    if isinstance(x, Ins):
                        if x is not it and x.op in ("s_branch", "s_endpgm"):
                            break
                        tail.insert(0, x)
                    k -= 1
                head = []
                k = idx[it.target] + 1
                while k < len(self.items) and len(head) < MAXBACK:
                    x = self.items[k]
                    if isinstance(x, Ins):
                        head.append(x)
                        if x.op in ("s_branch", "s_endpgm"):
                            break
                    k += 1
                for hi, cons in enumerate(head):
                    dist = sum(h.states() for h in head[:hi])
                    for p in reversed(tail):
                        nd = need(p, cons)
                        if nd > dist:
                            problems.append(f"branch to {it.target}: {p.text.strip()} -> {cons.text.strip()} needs {nd} has {dist}")
                        dist += p.states()
                        if dist >= MAXBACK:
                            break
        if problems:
            raise ValueError("hazards across branches:\n" + "\n".join(problems))

    def text(self):
        L = []
        for it in self.items:
            if isinstance(it, Ins):
                L.append(it.text)
            elif it[0] == "label":
                L.append(it[1] + ":")
            else:
                L.append(it[1])
        return "\n".join(L) + "\n"

    def count(self):
        return sum(1 for it in self.items if isinstance(it, Ins))
```

```python
import sys, os, math
sys.path.insert(0, os.path.dirname(os.path.abspath(__file__)))
from asmlib import Asm, v, s

KNAME = "interleave_layers__sliding_block_cached__glu_gated_bilinear__decode_kernel"

LA = 0
LB = 30720
LC = 129024
LM = 159744
XB = LM
ONES = LM + 192
QBL = LM + 384
HBL = LM + 768
MXL = LM + 896
LSL = LM + 928
TSL = LM + 960
LDS_BYTES = 163840

SLOT = 8192
QB = [0, 2048]
OB = [4096, 4608]
GB = [5120, 6144]
XCCOFF = 7168
YBASE = 0x200000
YPK = 81920
WS_BYTES = 0x400000
DBGBASE = 0x300000

sH, sJ, sW, sP = 4, 5, 6, 7
SRD_WS, SRD_DBG, SRD_K, SRD_V, SRD_WQ, SRD_WO, SRD_WG, SRD_WU, SRD_WD, SRD_X, SRD_OUT = 8, 12, 16, 20, 24, 28, 32, 36, 40, 44, 48
sKA = 52
sOwn, sG8, sFast, sTmo = 76, 77, 78, 79
sT0, sT1, sT2, sT3, sT4, sT5 = 80, 81, 82, 83, 84, 85
sM = 86
sPQ, sPO, sPG = 87, 88, 89
sEX = 90
sCM = 92
sPY, sPD = 94, 95
sST = 52

vL, vG, vN = 1, 2, 3
vXB, vXW, vYG, vYP, vDP, vQG, vSG, vOG, vGG = 4, 5, 6, 7, 8, 9, 10, 11, 12
vXR, vCQ, vCG = 13, 14, 15
vCU = 16
vPUB = 17
vQA_ADDR = 18
vOW = 19
vT = 20
vPA = 96
vWT = 112
vWQ = 136
vV = 160
vK = 208

SENT = -1
LOG2E = 1.4426950408889634
QSCALE = (192.0 ** -0.5) * LOG2E


def f2u(x):
    import struct
    return struct.unpack("<I", struct.pack("<f", x))[0]


class Gen:
    def __init__(self, nt_kv=True, nt_w=True, stamps=False, d_q=0, d_o=0, d_y=0, d_g=0, d_d=0, force_slow=False, tmo=0x40000, k_left=0, stamp_sel=None):
        self.a = Asm()
        self.nt_kv = " nt" if nt_kv else ""
        self.nt_w = " nt" if nt_w else ""
        self.stamps = stamps
        self.nstamp = 0
        self.stamp_names = []
        self.d = dict(q=d_q, o=d_o, y=d_y, g=d_g, d=d_d)
        self.force_slow = force_slow
        self.tmo = tmo
        self.uid = 0
        self.k_left = k_left
        self.stamp_sel = stamp_sel

    def L(self, base):
        self.uid += 1
        return f"L_{base}_{self.uid}"

    def stamp(self, name, pair=None):
        if not self.stamps:
            return
        if self.stamp_sel is not None and name not in self.stamp_sel:
            return
        a = self.a
        k = self.nstamp
        if k >= 12:
            return
        self.nstamp += 1
        self.stamp_names.append(name)
        if pair is None:
            a.I("s_memtime", s(sST + 2 * k, 2))
        else:
            lab = self.L("st")
            a.I("s_cmp_lg_u32", s(sP), pair)
            a.I("s_cbranch_scc1", lab)
            a.I("s_memtime", s(sST + 2 * k, 2))
            a.label(lab)

    def srd(self, d, lo, off_s, size):
        a = self.a
        if off_s is None:
            a.I("s_mov_b32", s(d), s(lo))
            a.I("s_mov_b32", s(d + 1), s(lo + 1))
            a.I("s_mov_b32", s(d + 2), size)
        else:
            a.I("s_add_u32", s(d), s(lo), s(off_s))
            a.I("s_addc_u32", s(d + 1), s(lo + 1), 0)
            a.I("s_sub_u32", s(d + 2), size, s(off_s))
        a.I("s_mov_b32", s(d + 3), "0x20000")

    def lane_exec(self, mask64):
        a = self.a
        a.I("s_mov_b32", "exec_lo", hex(mask64 & 0xffffffff))
        a.I("s_mov_b32", "exec_hi", hex(mask64 >> 32))

    def exec_all(self):
        self.a.I("s_mov_b64", "exec", -1)

    def if_wave(self, lo, hi, else_label):
        a = self.a
        if lo > 0:
            a.I("s_cmp_lt_u32", s(sW), lo)
            a.I("s_cbranch_scc1", else_label)
        if hi < 8:
            a.I("s_cmp_ge_u32", s(sW), hi)
            a.I("s_cbranch_scc1", else_label)

    def if_pair0(self, else_label):
        self.a.I("s_cmp_lg_u32", s(sP), 0)
        self.a.I("s_cbranch_scc1", else_label)

    def clamp(self, r):
        self.a.I("v_min_u32", v(r), "0xfffffffe", v(r))

    def store8(self, op, data, vaddr, soff, mods=""):
        a = self.a
        l_slow, l_done = self.L("slow"), self.L("sd")
        a.I("s_cmp_eq_u32", s(sFast), 0)
        a.I("s_cbranch_scc1", l_slow)
        a.I(op, data, vaddr, s(SRD_WS, 4), soff, mods=("offen " + mods).strip())
        a.I("s_branch", l_done)
        a.label(l_slow)
        a.I(op, data, vaddr, s(SRD_WS, 4), soff, mods=("offen " + mods + " sc1").strip())
        a.label(l_done)

    def timeout(self, loop_label):
        a = self.a
        a.I("s_add_u32", s(sTmo), s(sTmo), 1)
        a.I("s_cmp_lt_u32", s(sTmo), hex(self.tmo))
        a.I("s_cbranch_scc1", loop_label)
        a.I("s_branch", "L_end")

    def check_valid(self, regs, tmp, ok_label):
        a = self.a
        regs = list(regs)
        cur = None
        while regs:
            if cur is None:
                if len(regs) >= 3:
                    a.I("v_max3_u32", v(tmp), v(regs[0]), v(regs[1]), v(regs[2]))
                    regs = regs[3:]
                elif len(regs) == 2:
                    a.I("v_max_u32", v(tmp), v(regs[0]), v(regs[1]))
                    regs = []
                else:
                    a.I("v_mov_b32", v(tmp), v(regs[0]))
                    regs = []
                cur = tmp
            elif len(regs) >= 2:
                a.I("v_max3_u32", v(tmp), v(tmp), v(regs[0]), v(regs[1]))
                regs = regs[2:]
            else:
                a.I("v_max_u32", v(tmp), v(tmp), v(regs[0]))
                regs = []
        a.I("v_cmp_eq_u32", "vcc", SENT, v(tmp))
        a.I("s_cmp_eq_u64", "vcc", 0)
        a.I("s_cbranch_scc1", ok_label)

    def wait_by_wave(self, counts, extra):
        a = self.a
        done = self.L("wbw")
        vals = sorted(set(counts.values()))
        for val in vals[:-1]:
            ws_ = [w for w, c in counts.items() if c == val]
            nxt = self.L("wbn")
            hit = self.L("wbh")
            for w in ws_:
                a.I("s_cmp_eq_u32", s(sW), w)
                a.I("s_cbranch_scc1", hit)
            a.I("s_branch", nxt)
            a.label(hit)
            a.wait(vm=val + extra)
            a.I("s_branch", done)
            a.label(nxt)
        a.wait(vm=vals[-1] + extra)
        a.label(done)

    def delay(self, key):
        n = self.d[key]
        if n:
            self.a.I("s_sleep", n)

    def dpp(self, op, dst, src0, src1, ctrl, row=0xf, bank=0xf):
        mods = f"{ctrl} row_mask:{hex(row)} bank_mask:{hex(bank)}"
        if src1 is None:
            self.a.I(op + "_dpp", v(dst), v(src0), mods=mods)
        else:
            self.a.I(op + "_dpp", v(dst), v(src0), v(src1), mods=mods)

    def bfly8(self, op, regs):
        for ctrl in ("quad_perm:[1,0,3,2]", "quad_perm:[2,3,0,1]", "row_half_mirror"):
            for r in regs:
                self.dpp(op, r, r, r, ctrl)

    def reduce_rows4(self, a0, out):
        a = self.a
        a.I("v_permlane32_swap_b32", v(a0), v(a0 + 1))
        a.I("v_permlane32_swap_b32", v(a0 + 2), v(a0 + 3))
        a.I("v_add_f32", v(a0), v(a0), v(a0 + 1))
        a.I("v_add_f32", v(a0 + 2), v(a0 + 2), v(a0 + 3))
        a.I("v_permlane16_swap_b32", v(a0), v(a0 + 2))
        a.I("v_add_f32", v(out), v(a0), v(a0 + 2))

    def stats_finish(self, s1, s2, mean, rstd, t):
        a = self.a
        a.I("v_mul_f32", v(mean), hex(f2u(1.0 / 640)), v(s1))
        a.I("v_mul_f32", v(t), hex(f2u(1.0 / 640)), v(s2))
        a.I("v_fma_f32", v(t), f"-v{mean}", v(mean), v(t))
        a.I("v_max_f32", v(t), 0, v(t))
        a.I("v_add_f32", v(t), hex(f2u(1e-5)), v(t))
        a.I("v_rsq_f32", v(rstd), v(t))

    def prologue(self):
        a = self.a
        a.I("s_cmp_ge_u32", s(2), 256)
        a.I("s_cbranch_scc1", "L_end")
        a.I("s_load_dwordx16", s(sKA, 16), s(0, 2), 0)
        a.I("s_load_dwordx8", s(sKA + 16, 8), s(0, 2), 64)
        a.I("v_readfirstlane_b32", s(sW), v(0))
        a.I("s_and_b32", s(sH), s(2), 7)
        a.I("s_lshl_b32", s(sH), s(sH), 2)
        a.I("s_bfe_u32", s(3), s(2), "0x20003")
        a.I("s_or_b32", s(sH), s(sH), s(3))
        a.I("s_lshr_b32", s(sJ), s(2), 5)
        a.I("s_lshr_b32", s(sW), s(sW), 6)
        a.I("s_mov_b32", s(sP), 0)
        a.I("s_mov_b32", s(sTmo), 0)
        a.I("v_and_b32", v(vL), 63, v(0))
        a.I("v_lshrrev_b32", v(vG), 4, v(vL))
        a.I("v_and_b32", v(vN), 15, v(vL))
        a.I("s_lshl_b32", s(sG8), s(sH), 16)
        a.I("s_lshl_b32", s(3), s(sJ), 13)
        a.I("s_add_u32", s(sOwn), s(sG8), s(3))
        T = vT
        a.I("v_and_b32", v(T + 1), 3, v(vN))
        a.I("v_bfe_u32", v(T + 2), v(vN), 2, 1)
        a.I("v_lshl_add_u32", v(T + 1), v(T + 2), 4, v(T + 1))
        a.I("v_mul_u32_u24", v(T + 1), 384, v(T + 1))
        a.I("v_lshrrev_b32", v(T + 2), 3, v(vN))
        a.I("v_lshl_add_u32", v(T + 1), v(T + 2), 6, v(T + 1))
        a.I("v_lshl_add_u32", v(T + 1), v(vG), 4, v(T + 1))
        a.I("s_mul_i32", s(sT0), s(sW), 12288)
        a.I("v_add_u32", v(T), s(sT0), v(T + 1))
        for k in range(3):
            P, r, pos, ch = T + 10, T + 11, T + 12, T + 13
            a.I("v_add_u32", v(P), 64 * k, v(vL))
            a.I("v_mul_u32_u24", v(r), 2731, v(P))
            a.I("v_lshrrev_b32", v(r), 16, v(r))
            a.I("v_mul_u32_u24", v(pos), 24, v(r))
            a.I("v_sub_u32", v(pos), v(P), v(pos))
            a.I("v_and_b32", v(ch), 6, v(r))
            a.I("v_xor_b32", v(ch), v(ch), v(pos))
            a.I("v_lshlrev_b32", v(ch), 4, v(ch))
            a.I("v_mul_u32_u24", v(T + 14), 384, v(r))
            a.I("v_add3_u32", v(T + 1 + k), v(T + 14), v(ch), s(sT0))
            a.I("v_mul_u32_u24", v(T + 14), 12288, v(r))
            a.I("v_add_u32", v(T + 4 + k), v(T + 14), v(ch))
        a.I("s_min_u32", s(sT1), s(sW), 4)
        a.I("v_bfe_u32", v(T + 10), v(vL), 2, 2)
        a.I("v_lshlrev_b32", v(T + 11), 1, v(T + 10))
        a.I("v_lshrrev_b32", v(T + 12), 1, v(T + 10))
        a.I("v_and_b32", v(T + 11), 2, v(T + 11))
        a.I("v_or_b32", v(T + 11), v(T + 11), v(T + 12))
        a.I("v_lshl_add_u32", v(T + 11), v(vG), 2, v(T + 11))
        a.I("s_lshl_b32", s(sT2), s(sT1), 4)
        a.I("v_add_u32", v(T + 11), s(sT2), v(T + 11))
        a.I("v_lshlrev_b32", v(T + 7), 1, v(T + 11))
        a.I("v_add_u32", v(vXW), XB, v(T + 7))
        a.I("s_lshl_b32", s(sT2), s(sW), 10)
        a.I("s_add_u32", s(sT2), s(sT2), s(sOwn))
        a.I("v_lshlrev_b32", v(T + 8), 4, v(vL))
        a.I("v_add_u32", v(T + 8), s(sT2), v(T + 8))
        for i in range(4):
            a.I("v_mov_b32", v(T + 16 + i), SENT)
        a.wait(lgkm=0)
        px, pk, pv, pq, po, pg, pu = sKA, sKA + 2, sKA + 4, sKA + 6, sKA + 8, sKA + 12, sKA + 14
        pd, pout, pdbg, pws = sKA + 16, sKA + 18, sKA + 20, sKA + 22
        self.srd(SRD_WS, pws, None, hex(WS_BYTES))
        a.I("s_mul_i32", s(sT2), s(sH), 3145728)
        a.I("s_mul_i32", s(sT3), s(sJ), 98304)
        a.I("s_add_u32", s(sT2), s(sT2), s(sT3))
        a.I("s_add_u32", s(sT2), s(sT2), 2359296)
        self.srd(SRD_K, pk, sT2, 100663296)
        self.srd(SRD_V, pv, sT2, 100663296)
        a.I("s_mul_i32", s(sT2), s(sJ), 983040)
        a.I("s_mul_i32", s(sT3), s(sH), 384)
        a.I("s_add_u32", s(sT2), s(sT2), s(sT3))
        self.srd(SRD_WQ, pq, sT2, 7864320)
        a.I("s_mul_i32", s(sT4), s(sJ), 160)
        self.srd(SRD_X, px, sT4, 1280)
        l7, lc = self.L("w7"), self.L("clr")
        a.I("s_cmp_eq_u32", s(sW), 7)
        a.I("s_cbranch_scc1", l7)
        a.I("buffer_store_dwordx4", v(T + 16, 4), v(T + 8), s(SRD_WS, 4), 0, mods="offen sc1")
        a.I("s_branch", lc)
        a.label(l7)
        a.I("s_mul_i32", s(sT2), s(sJ), 10240)
        a.I("s_lshl_b32", s(sT3), s(sH), 6)
        a.I("s_add_u32", s(sT2), s(sT2), s(sT3))
        a.I("s_add_u32", s(sT2), s(sT2), hex(YBASE))
        for half in range(2):
            a.I("v_lshrrev_b32", v(T + 10), 2, v(vL))
            if half:
                a.I("v_add_u32", v(T + 10), 16, v(T + 10))
                a.I("v_min_u32", v(T + 10), 19, v(T + 10))
            a.I("v_mul_u32_u24", v(T + 11), 52, v(T + 10))
            a.I("v_lshrrev_b32", v(T + 11), 8, v(T + 11))
            a.I("v_mul_u32_u24", v(T + 12), 5, v(T + 11))
            a.I("v_sub_u32", v(T + 12), v(T + 10), v(T + 12))
            a.I("v_mul_u32_u24", v(T + 11), YPK, v(T + 11))
            a.I("v_lshl_add_u32", v(T + 11), v(T + 12), 11, v(T + 11))
            a.I("v_and_b32", v(T + 12), 3, v(vL))
            a.I("v_lshl_add_u32", v(T + 11), v(T + 12), 4, v(T + 11))
            a.I("v_add_u32", v(T + 11), s(sT2), v(T + 11))
            a.I("buffer_store_dwordx4", v(T + 16, 4), v(T + 11), s(SRD_WS, 4), 0, mods="offen sc1")
        a.I("s_getreg_b32", s(sT3), "hwreg(HW_REG_XCC_ID, 0, 4)")
        a.I("s_add_u32", s(sT2), s(sOwn), XCCOFF)
        a.I("v_mov_b32", v(T + 10), s(sT3))
        a.I("v_mov_b32", v(T + 11), s(sT2))
        a.I("buffer_store_dword", v(T + 10), v(T + 11), s(SRD_WS, 4), 0, mods="offen sc1")
        a.label(lc)
        a.I("buffer_load_ushort", v(vXR), v(T + 7), s(SRD_X, 4), 0, mods="offen")
        for rep in range(2):
            lab = self.L("wq")
            if rep:
                a.I("s_cmp_ge_u32", s(sW), 2)
                a.I("s_cbranch_scc1", lab)
                a.I("s_add_u32", s(sT2), s(sW), 8)
            else:
                a.I("s_mov_b32", s(sT2), s(sW))
            a.I("s_mul_i32", s(sT3), s(sT2), 98304)
            a.I("s_mul_i32", s(sT2), s(sT2), 3072)
            for k in range(3):
                a.I("s_add_u32", "m0", s(sT2), LA + 1024 * k)
                a.I("buffer_load_dwordx4", v(T + 4 + k), s(SRD_WQ, 4), s(sT3), mods="offen" + self.nt_w + " lds")
            a.label(lab)
        a.I("s_mov_b32", s(sT2), 3072)
        for t in range(4):
            for l in range(3):
                so = 0 if t < 2 else s(sT2)
                off = 1536 * (t & 1) + 128 * l
                a.I("buffer_load_dwordx4", v(vK + 12 * t + 4 * l, 4), v(T), s(SRD_K, 4), so, mods=f"offen offset:{off}" + self.nt_kv)
        self.v_dma(0)
        a.I("s_mul_i32", s(sT2), s(sH), 245760)
        a.I("s_add_u32", s(sT2), s(sT2), s(sT4))
        self.srd(SRD_WO, po, sT2, 7864320)
        a.I("s_mul_i32", s(sT2), s(sJ), 245760)
        a.I("s_mul_i32", s(sT3), s(sH), 96)
        a.I("s_add_u32", s(sT2), s(sT2), s(sT3))
        self.srd(SRD_WG, pg, sT2, 1966080)
        self.srd(SRD_WU, pu, sT2, 1966080)
        a.I("s_mul_i32", s(sT2), s(sH), 61440)
        a.I("s_add_u32", s(sT2), s(sT2), s(sT4))
        self.srd(SRD_WD, pd, sT2, 1966080)
        self.srd(SRD_OUT, pout, sT4, 1280)
        self.srd(SRD_DBG, pdbg, None, 256)
        self.stamp("issued")

    def v_dma(self, part):
        a = self.a
        a.I("s_mul_i32", s(sT2), s(sW), 12288)
        a.I("s_add_u32", s(sT2), s(sT2), LB + 6144 * part)
        for grp in range(2):
            a.I("s_mov_b32", s(sT3), 6144 * part + 3072 * grp)
            for k in range(3):
                a.I("s_add_u32", "m0", s(sT2), 3072 * grp + 1024 * k)
                a.I("buffer_load_dwordx4", v(self.vVOFF + k), s(SRD_V, 4), s(sT3), mods="offen" + self.nt_kv + " lds")

    @property
    def vVOFF(self):
        return vT + 1

    def setup2(self):
        a = self.a
        T = vT + 24
        for k in range(3):
            a.I("v_mov_b32", v(vWT + 20 + k), v(vT + 1 + k))
        for i in range(16):
            a.I("v_mov_b32", v(vPA + i), 0)
        a.I("v_lshlrev_b32", v(T), 3, v(vG))
        a.I("v_add_u32", v(vXB), XB, v(T))
        a.I("v_add_u32", v(T + 1), ONES, v(T))
        a.I("v_cmp_eq_u32", "vcc", 1, v(vN))
        a.I("v_cndmask_b32", v(vXB), v(vXB), v(T + 1), "vcc")
        a.I("v_lshlrev_b32", v(T), 4, v(vG))
        a.I("v_add_u32", v(vPUB), s(sOwn), v(T))
        a.I("v_and_b32", v(T), 1, v(vN))
        a.I("v_lshlrev_b32", v(T), 6, v(T))
        a.I("v_lshl_add_u32", v(T), v(vG), 4, v(T))
        a.I("v_add_u32", v(vQA_ADDR), QBL, v(T))
        a.I("s_mul_i32", s(sT0), s(sW), 12288)
        a.I("s_add_u32", s(sT0), s(sT0), LB)
        a.I("v_lshlrev_b32", v(T), 2, v(vL))
        a.I("v_add_u32", v(vOW), s(sT0), v(T))
        a.I("s_min_u32", s(sT1), s(sW), 4)
        a.I("s_mul_i32", s(sT0), s(sJ), 10240)
        a.I("s_lshl_b32", s(sT2), s(sT1), 11)
        a.I("s_add_u32", s(sT0), s(sT0), s(sT2))
        a.I("s_add_u32", s(sT0), s(sT0), hex(YBASE))
        a.I("v_lshlrev_b32", v(T), 6, v(vN))
        a.I("v_lshl_add_u32", v(T), v(vG), 4, v(T))
        a.I("v_add_u32", v(vYG), s(sT0), v(T))
        a.I("s_lshl_b32", s(sT2), s(sH), 6)
        a.I("s_add_u32", s(sT0), s(sT0), s(sT2))
        a.I("v_lshlrev_b32", v(T), 4, v(vG))
        a.I("v_add_u32", v(vDP), s(sT0), v(T))
        a.I("v_lshrrev_b32", v(T + 1), 2, v(vN))
        a.I("v_lshl_add_u32", v(vYP), v(T + 1), 3, v(vDP))
        a.I("s_lshl_b32", s(sT0), s(sW), 8)
        a.I("s_add_u32", s(sT0), s(sT0), s(sG8))
        a.I("v_lshlrev_b32", v(T), 13, v(vG))
        a.I("v_lshl_add_u32", v(T), v(vN), 4, v(T))
        a.I("v_add_u32", v(vQG), s(sT0), v(T))
        a.I("v_and_b32", v(T), 7, v(vL))
        a.I("v_lshlrev_b32", v(T), 13, v(T))
        a.I("v_add_u32", v(vSG), s(sG8), v(T))
        a.I("v_lshl_add_u32", v(vOG), v(vG), 4, v(vSG))
        a.I("v_min_u32", v(T), 11, v(vN))
        a.I("v_lshlrev_b32", v(T), 4, v(T))
        a.I("v_lshl_add_u32", v(T), v(vG), 13, v(T))
        a.I("v_add_u32", v(vGG), s(sG8), v(T))
        lab = self.L("c0")
        a.I("s_cmp_lg_u32", s(sW), 0)
        a.I("s_cbranch_scc1", lab)
        a.I("v_lshlrev_b32", v(T), 2, v(vL))
        a.I("v_add_u32", v(T), LM, v(T))
        a.I("v_mov_b32", v(T + 1), "0x3f803f80")
        a.I("v_mov_b32", v(T + 2), 0)
        self.lane_exec((1 << 48) - 1)
        a.I("ds_write_b32", v(T), v(T + 1), mods=f"offset:{ONES - LM}")
        self.lane_exec((1 << 16) - 1)
        a.I("ds_write_b32", v(T), v(T + 2), mods=f"offset:{TSL - LM}")
        self.exec_all()
        a.label(lab)

    def handshake_arrive(self):
        a = self.a
        a.wait(vm=22, lgkm=0)
        a.I("s_barrier")
        lab = self.L("arr")
        a.I("s_cmp_lg_u32", s(sW), 0)
        a.I("s_cbranch_scc1", lab)
        T = vT + 24
        a.I("s_and_b32", s(sT1), s(2), 7)
        a.I("s_lshl_b32", s(sT1), s(sT1), 5)
        a.I("v_mov_b32", v(T), s(sT1))
        a.I("v_mov_b32", v(T + 1), 1)
        self.lane_exec(1)
        a.I("buffer_atomic_add", v(T + 1), v(T), s(SRD_DBG, 4), 0, mods="offen")
        self.exec_all()
        a.label(lab)

    def wq_frags(self):
        a = self.a
        T = vT + 24
        a.wait(vm=18)
        a.I("s_barrier")
        self.tr_base(T, 384, swz=True)
        for slot in range(2):
            lab = self.L("wqf")
            if slot == 0:
                a.I("s_lshl_b32", s(sT0), s(sW), 1)
                a.I("s_add_u32", s(sT1), s(sW), 4)
                a.I("s_cmp_lt_u32", s(sW), 4)
                a.I("s_cselect_b32", s(sT0), s(sT0), s(sT1))
            else:
                a.I("s_cmp_ge_u32", s(sW), 4)
                a.I("s_cbranch_scc1", lab)
                a.I("s_lshl_b32", s(sT0), s(sW), 1)
                a.I("s_add_u32", s(sT0), s(sT0), 1)
            a.I("s_and_b32", s(sT1), s(sT0), 3)
            a.I("s_lshl_b32", s(sT1), s(sT1), 5)
            a.I("s_lshr_b32", s(sT2), s(sT0), 2)
            a.I("s_lshl_b32", s(sT2), s(sT2), 7)
            a.I("v_xor_b32", v(T + 1), s(sT1), v(T))
            a.I("v_add_u32", v(T + 1), s(sT2), v(T + 1))
            base = vWQ + 12 * slot
            for st in range(3):
                for p in range(2):
                    if st == 2 and p == 1:
                        continue
                    a.I("ds_read_b64_tr_b16", v(base + 4 * st + 2 * p, 2), v(T + 1), mods=f"offset:{LA + 384 * (32 * st + 16 * p)}")
            a.label(lab)
        for slot in range(2):
            a.I("v_mov_b32", v(vWQ + 12 * slot + 10), 0)
            a.I("v_mov_b32", v(vWQ + 12 * slot + 11), 0)

    def tr_base(self, dst, pitch, swz=False):
        a = self.a
        a.I("v_lshrrev_b32", v(dst + 1), 2, v(vN))
        a.I("v_lshl_add_u32", v(dst + 1), v(vG), 2, v(dst + 1))
        a.I("v_mul_u32_u24", v(dst), pitch, v(dst + 1))
        if swz:
            a.I("v_and_b32", v(dst + 1), 6, v(dst + 1))
            a.I("v_bfe_u32", v(dst + 2), v(vN), 1, 1)
            a.I("v_xor_b32", v(dst + 1), v(dst + 1), v(dst + 2))
            a.I("v_lshl_add_u32", v(dst), v(dst + 1), 4, v(dst))
            a.I("v_and_b32", v(dst + 2), 1, v(vN))
            a.I("v_lshl_add_u32", v(dst), v(dst + 2), 3, v(dst))
        else:
            a.I("v_and_b32", v(dst + 2), 3, v(vN))
            a.I("v_lshl_add_u32", v(dst), v(dst + 2), 3, v(dst))

    def x_stage(self, xin):
        a = self.a
        T = vT + 60
        a.I("v_cvt_pk_bf16_f32", v(T), v(xin), v(xin))
        a.I("ds_write_b16", v(vXW), v(T))
        a.I("v_lshlrev_b32", v(vXR), 16, v(T))
        a.I("v_mul_f32", v(T + 2), v(vXR), v(vXR))
        a.I("v_mov_b32", v(T + 1), v(vXR))
        for ctrl, row in (("row_ror:4", 0xf), ("row_ror:8", 0xf), ("row_bcast:15", 0xa), ("row_bcast:31", 0xc)):
            self.dpp("v_add_f32", T + 1, T + 1, T + 1, ctrl, row=row)
            self.dpp("v_add_f32", T + 2, T + 2, T + 2, ctrl, row=row)
        a.I("s_lshl_b32", s(sT0), s(sW), 3)
        a.I("s_add_u32", s(sT0), s(sT0), TSL)
        a.I("v_mov_b32", v(T + 4), s(sT0))
        a.I("v_mov_b32", v(T + 6), v(T + 1))
        a.I("v_mov_b32", v(T + 7), v(T + 2))
        self.lane_exec(1 << 63)
        a.I("ds_write_b64", v(T + 4), v(T + 6, 2))
        self.exec_all()

    def read_xfrags(self, B):
        a = self.a
        for st in range(3):
            for p in range(2):
                if st == 2 and p == 1:
                    continue
                a.I("ds_read_b64", v(B + 4 * st + 2 * p, 2), v(vXB), mods=f"offset:{64 * st + 32 * p}")
        a.I("v_mov_b32", v(B + 10), 0)
        a.I("v_mov_b32", v(B + 11), 0)

    def publish_tile(self, D, soff_s, tile_imm_s, cs_off):
        a = self.a
        T = vT + 56
        for i in range(4):
            self.clamp(D + i)
        a.I("v_mul_u32_u24", v(T), cs_off, v(vN))
        a.I("v_add_u32", v(T), v(vPUB), v(T))
        self.lane_exec(0x0003000300030003)
        self.store8("buffer_store_dwordx4", v(D, 4), v(T), s(soff_s))
        self.exec_all()

    def publish_stats(self, off_s, imm):
        a = self.a
        T = vT + 40
        a.I("v_and_b32", v(T), 7, v(vL))
        a.I("v_lshlrev_b32", v(T), 3, v(T))
        a.I("v_add_u32", v(T), TSL, v(T))
        a.I("ds_read_b64", v(T + 2, 2), v(T))
        a.wait(lgkm=0)
        self.bfly8("v_add_f32", [T + 2, T + 3])
        self.clamp(T + 2)
        self.clamp(T + 3)
        a.I("v_mov_b32", v(T), s(sOwn))
        self.lane_exec(1)
        self.store8("buffer_store_dwordx2", v(T + 2, 2), v(T), s(off_s), mods=f"offset:{imm}")
        self.exec_all()

    def q_phase(self):
        a = self.a
        B = vT
        D = vT + 16
        self.read_xfrags(B)
        a.I("s_lshl_b32", s(sT0), s(sW), 1)
        a.I("s_add_u32", s(sT1), s(sW), 4)
        a.I("s_cmp_lt_u32", s(sW), 4)
        a.I("s_cselect_b32", s(sT0), s(sT0), s(sT1))
        a.I("s_lshl_b32", s(sT0), s(sT0), 6)
        a.I("s_add_u32", s(sT0), s(sT0), s(sPQ))
        a.wait(lgkm=0)
        for st in range(3):
            a.I("v_mfma_f32_16x16x32_bf16", v(D, 4), v(vWQ + 4 * st, 4), v(B + 4 * st, 4), 0 if st == 0 else v(D, 4))
        lab, lab2 = self.L("q1"), self.L("q2")
        a.I("s_cmp_ge_u32", s(sW), 4)
        a.I("s_cbranch_scc1", lab)
        for st in range(3):
            a.I("v_mfma_f32_16x16x32_bf16", v(D + 4, 4), v(vWQ + 12 + 4 * st, 4), v(B + 4 * st, 4), 0 if st == 0 else v(D + 4, 4))
        self.publish_tile(D, sT0, None, 768)
        a.I("s_add_u32", s(sT0), s(sT0), 64)
        self.publish_tile(D + 4, sT0, None, 768)
        a.I("s_branch", lab2)
        a.label(lab)
        a.nop(8)
        self.publish_tile(D, sT0, None, 768)
        a.label(lab2)
        lab = self.L("q3")
        a.I("s_cmp_lg_u32", s(sW), 7)
        a.I("s_cbranch_scc1", lab)
        self.publish_stats(sPQ, 1536)
        a.label(lab)

    def group_handshake(self):
        a = self.a
        dbg = SRD_DBG
        l_ok, l_loop, l_ok2 = self.L("hs_ok"), self.L("hs_loop"), self.L("hs2")
        tmp = [sT0, sT1, sT2, sT3, sT4, sT5, sCM, sCM + 1]
        for k in range(8):
            a.I("s_load_dword", s(tmp[k]), s(dbg, 2), 32 * k)
        a.wait(lgkm=0)
        for k in range(1, 8):
            a.I("s_add_u32", s(sT0), s(sT0), s(tmp[k]))
        a.I("s_cmp_eq_u32", s(sT0), 256)
        a.I("s_cbranch_scc1", l_ok)
        T = vT + 24
        a.I("v_and_b32", v(T), 7, v(vL))
        a.I("v_lshlrev_b32", v(T), 5, v(T))
        a.label(l_loop)
        a.I("buffer_load_dword", v(T + 1), v(T), s(dbg, 4), 0, mods="offen sc1")
        a.wait(vm=0)
        self.bfly8("v_add_u32", [T + 1])
        a.I("v_readfirstlane_b32", s(sT2), v(T + 1))
        a.I("s_cmp_eq_u32", s(sT2), 256)
        a.I("s_cbranch_scc1", l_ok)
        a.I("s_sleep", 8)
        self.timeout(l_loop)
        a.label(l_ok)
        T = vT + 24
        a.I("s_add_u32", s(sT0), s(sG8), XCCOFF)
        for k in range(4):
            a.I("s_add_u32", s(sT1), s(sT0), 8192 * k)
            a.I("s_load_dword", s(sT2 + k), s(SRD_WS, 2), s(sT1))
        a.wait(lgkm=0)
        a.I("s_xor_b32", s(sT3), s(sT3), s(sT2))
        a.I("s_xor_b32", s(sT4), s(sT4), s(sT2))
        a.I("s_xor_b32", s(sT5), s(sT5), s(sT2))
        a.I("s_or_b32", s(sT3), s(sT3), s(sT4))
        a.I("s_or_b32", s(sFast), s(sT3), s(sT5))
        a.I("s_mov_b32", s(3), s(sT2))
        for k in range(4):
            a.I("s_add_u32", s(sT1), s(sT0), 8192 * (4 + k))
            a.I("s_load_dword", s(sT2 + k), s(SRD_WS, 2), s(sT1))
        a.wait(lgkm=0)
        for k in range(4):
            a.I("s_xor_b32", s(sT2 + k), s(sT2 + k), s(3))
            a.I("s_or_b32", s(sFast), s(sFast), s(sT2 + k))
        a.I("s_cmp_eq_u32", s(sFast), 0)
        a.I("s_cselect_b32", s(sFast), 1, 0)
        if self.force_slow:
            a.I("s_mov_b32", s(sFast), 0)

    def qg_issue(self):
        a = self.a
        A, Bq, CA, CB, S = vT, vT + 4, vT + 8, vT + 12, vT + 16
        a.I("buffer_load_dwordx4", v(A, 4), v(vQG), s(SRD_WS, 4), s(sPQ), mods="offen sc1")
        a.I("s_add_u32", s(sT0), s(sPQ), 32768)
        a.I("buffer_load_dwordx4", v(Bq, 4), v(vQG), s(SRD_WS, 4), s(sT0), mods="offen sc1")
        a.I("buffer_load_dwordx2", v(S, 2), v(vSG), s(SRD_WS, 4), s(sPQ), mods="offen offset:1536 sc1")
        a.I("buffer_load_dwordx4", v(CA, 4), v(vQG), s(SRD_WS, 4), s(sPQ), mods="offen offset:768 sc1")
        a.I("buffer_load_dwordx4", v(CB, 4), v(vQG), s(SRD_WS, 4), s(sT0), mods="offen offset:768 sc1")

    def q_gather(self):
        a = self.a
        A, Bq, CA, CB, S = vT, vT + 4, vT + 8, vT + 12, vT + 16
        l_skip, l_skip2, l_p1, l_chk, l_ok, l_retry, l_w = [self.L(x) for x in ("qg_s", "qg_s2", "qg_p1", "qg_c", "qg_ok", "qg_r", "qg_w")]
        self.if_wave(0, 3, l_skip)
        self.delay("q")
        self.qg_issue()
        a.label(l_skip)
        self.if_pair0(l_p1)
        a.I("s_barrier")
        self.v_dma_part2()
        self.wo_dma()
        self.if_wave(0, 3, l_skip2)
        a.wait(vm=10)
        a.I("s_branch", l_chk)
        a.label(l_p1)
        self.if_wave(0, 3, l_skip2)
        a.label(l_w)
        a.wait(vm=0)
        a.label(l_chk)
        self.check_valid(list(range(A, A + 18)), vT + 20, l_ok)
        self.qg_issue()
        self.timeout(l_w)
        a.label(l_ok)
        self.stamp("qg_ok0", 0)
        self.stamp("qg_ok1", 1)
        for i in range(4):
            a.I("v_add_f32", v(A + i), v(A + i), v(Bq + i))
            a.I("v_add_f32", v(CA + i), v(CA + i), v(CB + i))
        self.bfly8("v_add_f32", [S, S + 1])
        self.reduce_rows4(A, vT + 21)
        self.reduce_rows4(CA, vCQ)
        mean, rstd, t = vT + 22, vT + 23, vT + 24
        self.stats_finish(S, S + 1, mean, rstd, t)
        a.I("v_fma_f32", v(vT + 21), f"-v{mean}", v(vCQ), v(vT + 21))
        a.I("v_mul_f32", v(rstd), hex(f2u(QSCALE)), v(rstd))
        a.I("v_mul_f32", v(vT + 21), v(vT + 21), v(rstd))
        a.I("v_cvt_pk_bf16_f32", v(vT + 21), v(vT + 21), v(vT + 21))
        a.I("v_lshlrev_b32", v(t), 1, v(vG))
        a.I("v_lshrrev_b32", v(t + 1), 1, v(vG))
        a.I("v_and_b32", v(t), 2, v(t))
        a.I("v_or_b32", v(t), v(t), v(t + 1))
        a.I("v_lshl_add_u32", v(t), v(vN), 2, v(t))
        a.I("s_lshl_b32", s(sT0), s(sW), 7)
        a.I("s_add_u32", s(sT0), s(sT0), QBL)
        a.I("v_lshl_add_u32", v(t), v(t), 1, s(sT0))
        a.I("ds_write_b16", v(t), v(vT + 21))
        a.label(l_skip2)
        a.wait(lgkm=0)
        a.I("s_barrier")

    def v_dma_part2(self):
        a = self.a
        a.I("s_mul_i32", s(sT2), s(sW), 12288)
        a.I("s_add_u32", s(sT2), s(sT2), LB + 6144)
        for grp in range(2):
            a.I("s_mov_b32", s(sT3), 6144 + 3072 * grp)
            for k in range(3):
                a.I("s_add_u32", "m0", s(sT2), 3072 * grp + 1024 * k)
                a.I("buffer_load_dwordx4", v(vWT + 20 + k), s(SRD_V, 4), s(sT3), mods="offen" + self.nt_kv + " lds")

    def rowblock_dma(self, srd, idx_s, ncol, rowbytes, mul, lds_base, clampP=None, T=vT + 40):
        a = self.a
        a.I("s_lshl_b32", s(sT4), s(idx_s), 6)
        a.I("v_add_u32", v(T), s(sT4), v(vL))
        if clampP is not None:
            a.I("v_min_u32", v(T), clampP, v(T))
        a.I("v_mul_u32_u24", v(T + 1), mul, v(T))
        a.I("v_lshrrev_b32", v(T + 1), 16, v(T + 1))
        a.I("v_mul_u32_u24", v(T + 2), ncol, v(T + 1))
        a.I("v_sub_u32", v(T + 2), v(T), v(T + 2))
        a.I("v_mul_u32_u24", v(T + 1), rowbytes, v(T + 1))
        a.I("v_lshl_add_u32", v(T + 3), v(T + 2), 4, v(T + 1))
        a.I("s_lshl_b32", s(sT4), s(idx_s), 10)
        a.I("s_add_u32", "m0", s(sT4), lds_base)
        a.I("buffer_load_dwordx4", v(T + 3), s(srd, 4), 0, mods="offen" + self.nt_w + " lds")

    def wo_dma(self):
        a = self.a
        for k in range(4):
            a.I("s_add_u32", s(sT0), s(sW), 8 * k)
            a.I("s_min_u32", s(sT0), s(sT0), 29)
            self.rowblock_dma(SRD_WO, sT0, 10, 1280, 6554, LC)

    def gud_dma(self):
        a = self.a
        l6, l7, le = self.L("g6"), self.L("g7"), self.L("ge")
        a.I("s_cmp_eq_u32", s(sW), 6)
        a.I("s_cbranch_scc1", l6)
        a.I("s_cmp_eq_u32", s(sW), 7)
        a.I("s_cbranch_scc1", l7)
        for k in range(8):
            a.I("s_mov_b32", s(sT0), k)
            self.rowblock_dma(SRD_WG, sT0, 6, 3072, 10923, LA, clampP=479)
        a.I("s_branch", le)
        a.label(l6)
        for k in range(8):
            a.I("s_mov_b32", s(sT0), k)
            self.rowblock_dma(SRD_WU, sT0, 6, 3072, 10923, LA + 8192, clampP=479)
        a.I("s_branch", le)
        a.label(l7)
        for k in range(8):
            a.I("s_mov_b32", s(sT0), k)
            self.rowblock_dma(SRD_WD, sT0, 10, 1280, 6554, LA + 16384, clampP=479)
        a.label(le)

    def v_frags(self, p):
        a = self.a
        T = vT + 70
        self.tr_base(T, 384, swz=True)
        a.I("s_mul_i32", s(sT0), s(sW), 12288)
        a.I("s_add_u32", s(sT0), s(sT0), LB + 6144 * p)
        a.I("v_add_u32", v(T), s(sT0), v(T))
        for t in range(4):
            if t:
                a.I("v_xor_b32", v(T + 3), 32 * t, v(T))
            ad = T if t == 0 else T + 3
            for hi in range(3):
                tile = 4 * hi + t
                a.I("ds_read_b64_tr_b16", v(vV + 4 * tile + 2 * p, 2), v(ad), mods=f"offset:{128 * hi}")

    def attention(self):
        a = self.a
        QA = vT
        S4 = vT + 12
        S = vT + 28
        M = vT + 29
        PK = vT + 30
        O = vT + 32
        Ls = vT + 44
        F = vT + 45
        lab = self.L("v0")
        for l in range(3):
            a.I("ds_read_b128", v(QA + 4 * l, 4), v(vQA_ADDR), mods=f"offset:{128 * l}")
        a.I("v_mov_b32", v(S), "0xff800000")
        self.if_pair0(lab)
        a.wait(vm=10)
        self.v_frags(0)
        a.label(lab)
        a.wait(lgkm=0)
        for t in range(4):
            for l in range(3):
                a.I("v_mfma_f32_16x16x32_bf16", v(S4 + 4 * t, 4), v(QA + 4 * l, 4), v(vK + 12 * t + 4 * l, 4), 0 if l == 0 else v(S4 + 4 * t, 4))
        for t in range(4):
            a.I("v_add_f32_dpp", v(S), v(S4 + 4 * t + 1), v(S4 + 4 * t), mods=f"row_ror:8 row_mask:{hex(1 << t)} bank_mask:0x3")
        a.I("v_mov_b32", v(M), v(S))
        for ctrl, row in (("quad_perm:[1,0,3,2]", 0xf), ("quad_perm:[2,3,0,1]", 0xf), ("row_half_mirror", 0xf), ("row_ror:8", 0xf), ("row_bcast:15", 0xa), ("row_bcast:31", 0xc)):
            self.dpp("v_max_f32", M, M, M, ctrl, row=row)
        a.I("v_readlane_b32", s(sM), v(M), 63)
        a.I("s_lshl_b32", s(sT0), s(sW), 2)
        a.I("s_add_u32", s(sT0), s(sT0), MXL)
        a.I("v_mov_b32", v(vT + 60), s(sT0))
        a.I("v_subrev_f32", v(S), s(sM), v(S))
        a.I("v_mov_b32", v(F), s(sM))
        a.I("v_exp_f32", v(S), v(S))
        self.lane_exec(1)
        a.I("ds_write_b32", v(vT + 60), v(F))
        self.exec_all()
        self.dpp("v_mov_b32", PK, S, None, "row_shl:1")
        a.I("v_cvt_pk_bf16_f32", v(PK), v(S), v(PK))
        a.I("v_mov_b32", v(Ls), v(S))
        lab = self.L("v1")
        self.if_pair0(lab)
        self.stamp("softmax0")
        a.wait(vm=4)
        self.stamp("v_landed")
        self.v_frags(1)
        a.label(lab)
        for g2 in range(4):
            for i in range(4):
                a.I("v_mov_b32_dpp", v(vPA + 4 * g2 + i), v(PK), mods=f"row_newbcast:{2 * i} row_mask:0xf bank_mask:{hex(1 << g2)}")
        a.wait(lgkm=0)
        for g2 in range(4):
            for i in range(3):
                a.I("v_mfma_f32_16x16x32_bf16", v(O + 4 * i, 4), v(vPA + 4 * g2, 4), v(vV + 4 * (4 * i + g2), 4), 0 if g2 == 0 else v(O + 4 * i, 4))
        for ctrl, row in (("quad_perm:[1,0,3,2]", 0xf), ("quad_perm:[2,3,0,1]", 0xf), ("row_half_mirror", 0xf), ("row_ror:8", 0xf), ("row_bcast:15", 0xa), ("row_bcast:31", 0xc)):
            self.dpp("v_add_f32", Ls, Ls, Ls, ctrl, row=row)
        a.I("s_barrier")
        a.I("v_mov_b32", v(vT + 61), MXL)
        a.I("ds_read_b128", v(vT + 48, 4), v(vT + 61))
        a.I("ds_read_b128", v(vT + 52, 4), v(vT + 61), mods="offset:16")
        a.wait(lgkm=0)
        X = vT + 48
        a.I("v_max3_f32", v(X), v(X), v(X + 1), v(X + 2))
        a.I("v_max3_f32", v(X + 3), v(X + 3), v(X + 4), v(X + 5))
        a.I("v_max3_f32", v(X), v(X), v(X + 6), v(X + 7))
        a.I("v_max_f32", v(X), v(X), v(X + 3))
        a.I("v_sub_f32", v(F), v(F), v(X))
        a.I("v_exp_f32", v(F), v(F))
        a.I("v_mul_f32", v(Ls), v(Ls), v(F))
        for i in range(3):
            a.I("v_mul_f32", v(O + 4 * i), v(O + 4 * i), v(F))
        for i in range(3):
            a.I("ds_write_b32", v(vOW), v(O + 4 * i), mods=f"offset:{256 * i}")
        self.lane_exec(1 << 63)
        a.I("ds_write_b32", v(vT + 60), v(Ls), mods=f"offset:{LSL - MXL}")
        self.exec_all()
        a.wait(lgkm=0)
        a.I("s_barrier")
        l_skip = self.L("fc")
        self.if_wave(0, 3, l_skip)
        R = vT
        a.I("s_lshl_b32", s(sT0), s(sW), 8)
        a.I("s_add_u32", s(sT0), s(sT0), LB)
        a.I("v_lshlrev_b32", v(R + 20), 2, v(vL))
        a.I("v_add_u32", v(R + 20), s(sT0), v(R + 20))
        for w2 in range(8):
            if w2 < 5:
                a.I("ds_read_b32", v(R + w2), v(R + 20), mods=f"offset:{12288 * w2}")
        a.I("v_add_u32", v(R + 21), 12288 * 5, v(R + 20))
        for w2 in range(5, 8):
            a.I("ds_read_b32", v(R + w2), v(R + 21), mods=f"offset:{12288 * (w2 - 5)}")
        a.I("v_mov_b32", v(R + 22), LSL)
        a.I("ds_read_b128", v(R + 8, 4), v(R + 22))
        a.I("ds_read_b128", v(R + 12, 4), v(R + 22), mods="offset:16")
        a.I("v_lshrrev_b32", v(R + 23), 5, v(vL))
        a.I("v_lshlrev_b32", v(R + 23), 6, v(R + 23))
        a.I("v_bfe_u32", v(R + 24), v(vL), 2, 2)
        a.I("v_lshl_add_u32", v(R + 23), v(R + 24), 4, v(R + 23))
        a.I("v_bfe_u32", v(R + 24), v(vL), 4, 1)
        a.I("v_lshl_add_u32", v(R + 23), v(R + 24), 3, v(R + 23))
        a.I("s_lshl_b32", s(sT0), s(sW), 7)
        a.I("s_add_u32", s(sT0), s(sT0), s(sOwn))
        a.I("v_add_u32", v(R + 23), s(sT0), v(R + 23))
        a.wait(lgkm=0)
        a.I("v_add_f32", v(R), v(R), v(R + 1))
        a.I("v_add_f32", v(R + 2), v(R + 2), v(R + 3))
        a.I("v_add_f32", v(R + 4), v(R + 4), v(R + 5))
        a.I("v_add_f32", v(R + 6), v(R + 6), v(R + 7))
        a.I("v_add_f32", v(R), v(R), v(R + 2))
        a.I("v_add_f32", v(R + 4), v(R + 4), v(R + 6))
        a.I("v_add_f32", v(R), v(R), v(R + 4))
        self.dpp("v_mov_b32", R + 1, R, None, "row_shl:1")
        a.I("v_cvt_pk_bf16_f32", v(R + 2), v(R), v(R + 1))
        self.dpp("v_mov_b32", R + 3, R + 2, None, "row_shl:2")
        self.clamp(R + 2)
        self.clamp(R + 3)
        self.lane_exec(0x1111111111111111)
        self.store8("buffer_store_dwordx2", v(R + 2, 2), v(R + 23), s(sPO))
        self.exec_all()
        l_ml = self.L("ml")
        a.I("s_cmp_lg_u32", s(sW), 0)
        a.I("s_cbranch_scc1", l_ml)
        for i in range(0, 8, 2):
            a.I("v_add_f32", v(R + 8 + i), v(R + 8 + i), v(R + 9 + i))
        a.I("v_add_f32", v(R + 8), v(R + 8), v(R + 10))
        a.I("v_add_f32", v(R + 12), v(R + 12), v(R + 14))
        a.I("v_add_f32", v(R + 7), v(R + 8), v(R + 12))
        a.I("v_mov_b32", v(R + 6), v(vT + 48))
        self.clamp(R + 6)
        self.clamp(R + 7)
        a.I("v_mov_b32", v(R + 20), s(sOwn))
        self.lane_exec(1)
        self.store8("buffer_store_dwordx2", v(R + 6, 2), v(R + 20), s(sPO), mods="offset:384")
        self.exec_all()
        a.label(l_ml)
        a.label(l_skip)
        self.stamp("o_pub0", 0)
        self.stamp("o_pub1", 1)

    def wo_frags(self):
        a = self.a
        T = vT + 70
        self.tr_base(T, 160)
        a.I("s_lshl_b32", s(sT0), s(sW), 5)
        a.I("s_add_u32", s(sT0), s(sT0), LC)
        a.I("v_add_u32", v(T), s(sT0), v(T))
        for st in range(6):
            for p in range(2):
                a.I("ds_read_b64_tr_b16", v(vWT + 4 * st + 2 * p, 2), v(T), mods=f"offset:{160 * (32 * st + 16 * p)}")

    def og_issue(self):
        a = self.a
        B = vT
        for st in range(6):
            a.I("buffer_load_dwordx4", v(B + 4 * st, 4), v(vOG), s(SRD_WS, 4), s(sPO), mods=f"offen offset:{64 * st} sc1")
        a.I("buffer_load_dwordx2", v(B + 24, 2), v(vSG), s(SRD_WS, 4), s(sPO), mods="offen offset:384 sc1")

    def o_phase(self):
        a = self.a
        B, ML, D = vT, vT + 24, vT + 28
        l_p1, l_skip, l_skip2, l_w, l_ok = [self.L(x) for x in ("o_p1", "o_s", "o_s2", "o_w", "o_ok")]
        self.if_pair0(l_p1)
        a.wait(vm=0)
        a.I("s_barrier")
        a.label(l_p1)
        self.if_wave(0, 5, l_skip)
        self.wo_frags()
        self.delay("o")
        self.og_issue()
        a.label(l_skip)
        l_p1b = self.L("o_p1b")
        self.if_pair0(l_p1b)
        a.I("s_barrier")
        l_x = self.L("o_x")
        self.if_wave(5, 8, l_x)
        self.gud_dma()
        a.label(l_x)
        a.label(l_p1b)
        self.if_wave(0, 5, l_skip2)
        a.label(l_w)
        a.wait(vm=0, lgkm=0)
        for st in range(6):
            a.I("v_mfma_f32_16x16x32_bf16", v(D, 4), v(vWT + 4 * st, 4), v(B + 4 * st, 4), 0 if st == 0 else v(D, 4))
        self.check_valid(list(range(B, B + 26)), vT + 32, l_ok)
        self.og_issue()
        self.timeout(l_w)
        a.label(l_ok)
        self.stamp("og_ok0", 0)
        self.stamp("og_ok1", 1)
        Mx, W = vT + 33, vT + 34
        a.I("v_mov_b32", v(Mx), v(ML))
        self.bfly8("v_max_f32", [Mx])
        a.I("v_sub_f32", v(W), v(ML), v(Mx))
        a.I("v_exp_f32", v(W), v(W))
        a.I("v_mul_f32", v(Mx), v(W), v(ML + 1))
        self.bfly8("v_add_f32", [Mx])
        a.I("v_rcp_f32", v(Mx), v(Mx))
        a.I("v_mul_f32", v(W), v(W), v(Mx))
        for i in range(4):
            a.I("v_mul_f32", v(D + i), v(D + i), v(W))
        U = vT + 36
        a.I("v_add_f32_dpp", v(U), v(D), v(D), mods="row_shl:4 row_mask:0xf bank_mask:0x5")
        a.I("v_add_f32_dpp", v(U + 1), v(D + 1), v(D + 1), mods="row_shl:4 row_mask:0xf bank_mask:0x5")
        a.I("v_add_f32_dpp", v(U), v(D + 2), v(D + 2), mods="row_shr:4 row_mask:0xf bank_mask:0xa")
        a.I("v_add_f32_dpp", v(U + 1), v(D + 3), v(D + 3), mods="row_shr:4 row_mask:0xf bank_mask:0xa")
        for ctrl in ("quad_perm:[1,0,3,2]", "quad_perm:[2,3,0,1]"):
            self.dpp("v_add_f32", U, U, U, ctrl)
            self.dpp("v_add_f32", U + 1, U + 1, U + 1, ctrl)
        self.clamp(U)
        self.clamp(U + 1)
        self.lane_exec(0x0011001100110011)
        a.I("buffer_store_dwordx2", v(U, 2), v(vYP), s(SRD_WS, 4), s(sPY), mods="offen sc1")
        self.exec_all()
        a.label(l_skip2)

    def xg_issue(self, soff):
        a = self.a
        A = vT
        a.I("buffer_load_dwordx4", v(A, 4), v(vYG), s(SRD_WS, 4), s(soff), mods="offen sc1")
        a.I("buffer_load_dwordx4", v(A + 4, 4), v(vYG), s(SRD_WS, 4), s(soff), mods="offen offset:1024 sc1")

    def x_gather(self, soff, key, tag):
        a = self.a
        A = vT
        l_w, l_ok = self.L("x_w"), self.L("x_ok")
        self.delay(key)
        self.xg_issue(soff)
        a.label(l_w)
        a.wait(vm=0)
        self.check_valid(list(range(A, A + 8)), vT + 8, l_ok)
        self.xg_issue(soff)
        self.timeout(l_w)
        a.label(l_ok)
        self.stamp(tag + "0", 0)
        self.stamp(tag + "1", 1)
        for i in range(4):
            a.I("v_add_f32", v(A + i), v(A + i), v(A + 4 + i))
        r01, r23, r = vT + 8, vT + 9, vT + 10
        a.I("v_add_f32_dpp", v(r01), v(A), v(A), mods="row_ror:8 row_mask:0xf bank_mask:0x3")
        a.I("v_add_f32_dpp", v(r23), v(A + 2), v(A + 2), mods="row_ror:8 row_mask:0xf bank_mask:0x3")
        a.I("v_add_f32_dpp", v(r01), v(A + 1), v(A + 1), mods="row_ror:8 row_mask:0xf bank_mask:0xc")
        a.I("v_add_f32_dpp", v(r23), v(A + 3), v(A + 3), mods="row_ror:8 row_mask:0xf bank_mask:0xc")
        a.I("v_add_f32_dpp", v(r), v(r01), v(r01), mods="row_shl:4 row_mask:0xf bank_mask:0x5")
        a.I("v_add_f32_dpp", v(r), v(r23), v(r23), mods="row_shr:4 row_mask:0xf bank_mask:0xa")
        self.dpp("v_add_f32", r, r, r, "quad_perm:[1,0,3,2]")
        self.dpp("v_add_f32", r, r, r, "quad_perm:[2,3,0,1]")
        a.I("v_add_f32", v(r), v(r), v(vXR))
        return r

    def gu_phase(self):
        a = self.a
        B, D, T = vT, vT + 16, vT + 70
        l_skip = self.L("gu_s")
        l_st = self.L("gu_st")
        self.if_wave(0, 6, l_skip)
        self.tr_base(T, 96)
        a.I("s_cmp_ge_u32", s(sW), 3)
        a.I("s_cselect_b32", s(sT0), 8192 - 96, 0)
        a.I("s_lshl_b32", s(sT1), s(sW), 5)
        a.I("s_add_u32", s(sT0), s(sT0), s(sT1))
        a.I("s_add_u32", s(sT0), s(sT0), LA)
        a.I("v_add_u32", v(T), s(sT0), v(T))
        for st in range(3):
            for p in range(2):
                if st == 2 and p == 1:
                    continue
                a.I("ds_read_b64_tr_b16", v(vWT + 4 * st + 2 * p, 2), v(T), mods=f"offset:{96 * (32 * st + 16 * p)}")
        a.I("v_mov_b32", v(vWT + 10), 0)
        a.I("v_mov_b32", v(vWT + 11), 0)
        self.read_xfrags(B)
        a.I("s_lshl_b32", s(sT0), s(sW), 6)
        a.I("s_add_u32", s(sT0), s(sT0), s(sPG))
        a.wait(lgkm=0)
        for st in range(3):
            a.I("v_mfma_f32_16x16x32_bf16", v(D, 4), v(vWT + 4 * st, 4), v(B + 4 * st, 4), 0 if st == 0 else v(D, 4))
        self.publish_tile(D, sT0, None, 384)
        a.label(l_skip)
        a.I("s_cmp_lg_u32", s(sW), 7)
        a.I("s_cbranch_scc1", l_st)
        self.publish_stats(sPG, 768)
        a.label(l_st)

    def gg_issue(self):
        a = self.a
        A = vT
        a.I("s_add_u32", s(sT0), s(sPG), 32768)
        for k, off in enumerate((0, 192, 384, 576)):
            a.I("buffer_load_dwordx4", v(A + 8 * k, 4), v(vGG), s(SRD_WS, 4), s(sPG), mods=f"offen offset:{off} sc1")
            a.I("buffer_load_dwordx4", v(A + 8 * k + 4, 4), v(vGG), s(SRD_WS, 4), s(sT0), mods=f"offen offset:{off} sc1")
        a.I("buffer_load_dwordx2", v(A + 32, 2), v(vSG), s(SRD_WS, 4), s(sPG), mods="offen offset:768 sc1")

    def g_gather(self):
        a = self.a
        A = vT
        l_skip, l_w, l_ok = self.L("gg_s"), self.L("gg_w"), self.L("gg_ok")
        self.if_wave(6, 7, l_skip)
        self.delay("g")
        self.gg_issue()
        a.label(l_w)
        a.wait(vm=0)
        self.check_valid(list(range(A, A + 34)), vT + 34, l_ok)
        self.gg_issue()
        self.timeout(l_w)
        a.label(l_ok)
        self.stamp("gg_ok0", 0)
        self.stamp("gg_ok1", 1)
        for k in range(4):
            for i in range(4):
                a.I("v_add_f32", v(A + 8 * k + i), v(A + 8 * k + i), v(A + 8 * k + 4 + i))
        S = A + 32
        self.bfly8("v_add_f32", [S, S + 1])
        G, U = vT + 36, vT + 37
        self.reduce_rows4(A, G)
        self.reduce_rows4(A + 8, U)
        self.reduce_rows4(A + 16, vCG)
        self.reduce_rows4(A + 24, vCU)
        mean, rstd, t = vT + 38, vT + 39, vT + 40
        self.stats_finish(S, S + 1, mean, rstd, t)
        a.I("v_fma_f32", v(G), f"-v{mean}", v(vCG), v(G))
        a.I("v_fma_f32", v(U), f"-v{mean}", v(vCU), v(U))
        a.I("v_mul_f32", v(G), v(G), v(rstd))
        a.I("v_mul_f32", v(U), v(U), v(rstd))
        a.I("v_mul_f32", v(G), v(G), v(U))
        a.I("v_cvt_pk_bf16_f32", v(G), v(G), v(G))
        a.I("v_lshlrev_b32", v(t), 1, v(vG))
        a.I("v_lshrrev_b32", v(t + 1), 1, v(vG))
        a.I("v_and_b32", v(t), 2, v(t))
        a.I("v_or_b32", v(t), v(t), v(t + 1))
        a.I("v_min_u32", v(t + 1), 11, v(vN))
        a.I("v_lshl_add_u32", v(t), v(t + 1), 2, v(t))
        a.I("v_lshlrev_b32", v(t), 1, v(t))
        a.I("v_add_u32", v(t), HBL, v(t))
        a.I("ds_write_b16", v(t), v(G))
        a.label(l_skip)
        a.wait(lgkm=0)
        a.I("s_barrier")

    def d_phase(self):
        a = self.a
        B, D, T = vT, vT + 16, vT + 70
        l_skip = self.L("d_s")
        self.if_wave(0, 5, l_skip)
        self.tr_base(T, 160)
        a.I("s_lshl_b32", s(sT0), s(sW), 5)
        a.I("s_add_u32", s(sT0), s(sT0), LA + 16384)
        a.I("v_add_u32", v(T), s(sT0), v(T))
        for st, p in ((0, 0), (0, 1), (1, 0)):
            a.I("ds_read_b64_tr_b16", v(vWT + 4 * st + 2 * p, 2), v(T), mods=f"offset:{160 * (32 * st + 16 * p)}")
        a.I("v_mov_b32", v(vWT + 6), 0)
        a.I("v_mov_b32", v(vWT + 7), 0)
        a.I("v_lshlrev_b32", v(T + 4), 3, v(vG))
        a.I("v_add_u32", v(T + 4), HBL, v(T + 4))
        for st, p in ((0, 0), (0, 1), (1, 0)):
            a.I("ds_read_b64", v(B + 4 * st + 2 * p, 2), v(T + 4), mods=f"offset:{64 * st + 32 * p}")
        a.I("v_mov_b32", v(B + 6), 0)
        a.I("v_mov_b32", v(B + 7), 0)
        a.wait(lgkm=0)
        for st in range(2):
            a.I("v_mfma_f32_16x16x32_bf16", v(D, 4), v(vWT + 4 * st, 4), v(B + 4 * st, 4), 0 if st == 0 else v(D, 4))
        for i in range(4):
            self.clamp(D + i)
        self.lane_exec(0x0001000100010001)
        a.I("buffer_store_dwordx4", v(D, 4), v(vDP), s(SRD_WS, 4), s(sPD), mods="offen sc1")
        self.exec_all()
        a.label(l_skip)

    def set_pair_offsets(self):
        a = self.a
        a.I("s_lshl_b32", s(sPQ), s(sP), 11)
        a.I("s_lshl_b32", s(sPO), s(sP), 9)
        a.I("s_add_u32", s(sPO), s(sPO), 4096)
        a.I("s_lshl_b32", s(sPG), s(sP), 10)
        a.I("s_add_u32", s(sPG), s(sPG), 5120)
        a.I("s_mul_i32", s(sPY), s(sP), 2 * YPK)
        a.I("s_add_u32", s(sPD), s(sPY), YPK)

    def build(self):
        a = self.a
        self.prologue()
        self.setup2()
        self.handshake_arrive()
        self.wq_frags()
        self.stamp("wq_landed")
        a.I("v_lshlrev_b32", v(vT + 10), 16, v(vXR))
        a.I("s_mov_b32", s(sFast), 0)
        a.wait(lgkm=0)
        a.label("L_pair")
        self.set_pair_offsets()
        l_skip = self.L("xs")
        self.if_wave(0, 5, l_skip)
        self.x_stage(vT + 10)
        a.label(l_skip)
        a.wait(lgkm=0)
        a.I("s_barrier")
        self.q_phase()
        l_p1 = self.L("p1")
        self.if_pair0(l_p1)
        self.wait_by_wave({0: 9, 1: 8, 2: 8, 3: 8, 4: 7, 5: 7, 6: 7, 7: 8}, self.k_left)
        self.stamp("k_landed")
        self.group_handshake()
        a.label(l_p1)
        self.q_gather()
        self.attention()
        self.o_phase()
        l_skip = self.L("xs2")
        l_w = self.L("xw")
        self.if_wave(0, 5, l_w)
        r = self.x_gather(sPY, "y", "yg_ok")
        self.x_stage(r)
        a.I("s_branch", l_skip)
        a.label(l_w)
        a.wait(vm=0)
        a.label(l_skip)
        a.wait(lgkm=0)
        a.I("s_barrier")
        self.gu_phase()
        self.g_gather()
        self.d_phase()
        l_fin = self.L("fin")
        a.I("s_cmp_eq_u32", s(sP), 1)
        a.I("s_cbranch_scc1", l_fin)
        l_skip = self.L("xs3")
        self.if_wave(0, 5, l_skip)
        r = self.x_gather(sPD, "d", "dg_ok")
        assert r == vT + 10
        a.label(l_skip)
        a.I("s_mov_b32", s(sP), 1)
        a.I("s_branch", "L_pair")
        a.label(l_fin)
        a.I("s_cmp_lg_u32", s(sH), 0)
        a.I("s_cbranch_scc1", "L_dump")
        self.if_wave(0, 5, "L_dump")
        r = self.x_gather(sPD, "d", "fin_ok")
        a.I("v_cvt_pk_bf16_f32", v(r), v(r), v(r))
        a.I("v_subrev_u32", v(r + 1), XB, v(vXW))
        self.lane_exec(0x1111111111111111)
        a.I("buffer_store_short", v(r), v(r + 1), s(SRD_OUT, 4), 0, mods="offen")
        self.exec_all()
        a.label("L_dump")
        if self.stamps:
            self.stamp("end")
            a.wait(lgkm=0)
            T = vT
            for k in range(self.nstamp):
                a.I("v_writelane_b32", v(T), s(sST + 2 * k), k)
            a.I("s_lshl_b32", s(sT0), s(2), 3)
            a.I("s_add_u32", s(sT0), s(sT0), s(sW))
            a.I("s_lshl_b32", s(sT0), s(sT0), 6)
            a.I("s_add_u32", s(sT0), s(sT0), hex(DBGBASE))
            a.I("v_lshlrev_b32", v(T + 1), 2, v(vL))
            a.I("v_add_u32", v(T + 1), s(sT0), v(T + 1))
            self.lane_exec((1 << 16) - 1)
            a.I("buffer_store_dword", v(T), v(T + 1), s(SRD_WS, 4), 0, mods="offen")
            self.exec_all()
        a.label("L_end")
        a.I("s_endpgm")
        n = a.fix()
        return n

    def text(self):
        hdr = open(os.path.join(os.path.dirname(os.path.abspath(__file__)), "header.txt")).read()
        body = self.a.text()
        return f"""{hdr}; @launch grid=(256,1,1) block=(512,1,1) lds={LDS_BYTES}
.amdgcn_target "amdgcn-amd-amdhsa--gfx950"
.text
.globl {KNAME}
.p2align 8
.type {KNAME},@function
{KNAME}:
{body}.section .rodata,"a"
.p2align 6
.amdhsa_kernel {KNAME}
  .amdhsa_next_free_vgpr 256
  .amdhsa_next_free_sgpr 96
  .amdhsa_accum_offset 256
  .amdhsa_group_segment_fixed_size 0
  .amdhsa_kernarg_size 96
  .amdhsa_user_sgpr_count 2
  .amdhsa_user_sgpr_kernarg_segment_ptr 1
  .amdhsa_system_sgpr_workgroup_id_x 1
.end_amdhsa_kernel
"""


def make(**kw):
    g = Gen(**kw)
    n = g.build()
    return g, g.text()


if __name__ == "__main__":
    out = sys.argv[1] if len(sys.argv) > 1 else "interleave_layers__sliding_block_cached__glu_gated_bilinear__decode.s"
    kw = {}
    for x in sys.argv[2:]:
        k, val = x.split("=")
        kw[k] = int(val)
    g, t = make(**kw)
    open(out, "w").write(t)
    print("instructions:", g.a.count(), "stamps:", g.stamp_names)
```

```python
import sys, os, math
sys.path.insert(0, os.path.dirname(os.path.abspath(__file__)))
from asmlib import Asm, v, s

KNAME = "interleave_layers__sliding_block_cached__glu_gated_bilinear__decode_kernel"

LA = 0
LB = 30720
LC = 129024
LM = 159744
XB = LM
ONES = LM + 192
QBL = LM + 384
HBL = LM + 768
MXL = LM + 896
LSL = LM + 928
TSL = LM + 960
FSL = LM + 1024
LDS_BYTES = 163840

SLOT = 8192
QB = [0, 2048]
OB = [4096, 4608]
GB = [5120, 6144]
XCCOFF = 7168
YBASE = 0x200000
YPK = 81920
WS_BYTES = 0x400000
DBGBASE = 0x300000

sH, sJ, sW, sP = 4, 5, 6, 7
SRD_WS, SRD_DBG, SRD_K, SRD_V, SRD_WQ, SRD_WO, SRD_WG, SRD_WU, SRD_WD, SRD_X, SRD_OUT = 8, 12, 16, 20, 24, 28, 32, 36, 40, 44, 48
sKA = 52
sOwn, sG8, sFast, sTmo = 76, 77, 78, 79
sT0, sT1, sT2, sT3, sT4, sT5 = 80, 81, 82, 83, 84, 85
sM = 86
sPQ, sPO, sPG = 87, 88, 89
sEX = 90
sCM = 92
sPY, sPD = 94, 95
sST = 52

vL, vG, vN = 1, 2, 3
vXB, vXW, vYG, vYP, vDP, vQG, vSG, vOG, vGG = 4, 5, 6, 7, 8, 9, 10, 11, 12
vXR, vCQ, vCG = 13, 14, 15
vCU = 16
vPUB = 17
vQA_ADDR = 18
vOW = 19
vT = 20
vPA = 96
vWT = 112
vWQ = 136
vV = 160
vK = 208

SENT = -1
LOG2E = 1.4426950408889634
QSCALE = (192.0 ** -0.5) * LOG2E


def f2u(x):
    import struct
    return struct.unpack("<I", struct.pack("<f", x))[0]


class Gen:
    def __init__(self, nt_kv=True, nt_w=True, stamps=False, d_q=0, d_o=0, d_y=0, d_g=0, d_d=0, force_slow=False, tmo=0x40000, k_left=0, stamp_sel=None, rt=True):
        self.a = Asm()
        self.nt_kv = " nt" if nt_kv else ""
        self.nt_w = " nt" if nt_w else ""
        self.stamps = stamps
        self.nstamp = 0
        self.stamp_names = []
        self.d = dict(q=d_q, o=d_o, y=d_y, g=d_g, d=d_d)
        self.force_slow = force_slow
        self.tmo = tmo
        self.uid = 0
        self.k_left = k_left
        self.rt = rt
        self.stamp_sel = stamp_sel

    def L(self, base):
        self.uid += 1
        return f"L_{base}_{self.uid}"

    def stamp(self, name, pair=None):
        if not self.stamps:
            return
        if self.stamp_sel is not None and name not in self.stamp_sel:
            return
        a = self.a
        k = self.nstamp
        if k >= 12:
            return
        self.nstamp += 1
        self.stamp_names.append(name)
        if pair is None:
            a.I("s_memrealtime" if self.rt else "s_memtime", s(sST + 2 * k, 2))
        else:
            lab = self.L("st")
            a.I("s_cmp_lg_u32", s(sP), pair)
            a.I("s_cbranch_scc1", lab)
            a.I("s_memrealtime" if self.rt else "s_memtime", s(sST + 2 * k, 2))
            a.label(lab)

    def srd(self, d, lo, off_s, size):
        a = self.a
        if off_s is None:
            a.I("s_mov_b32", s(d), s(lo))
            a.I("s_mov_b32", s(d + 1), s(lo + 1))
            a.I("s_mov_b32", s(d + 2), size)
        else:
            a.I("s_add_u32", s(d), s(lo), s(off_s))
            a.I("s_addc_u32", s(d + 1), s(lo + 1), 0)
            a.I("s_sub_u32", s(d + 2), size, s(off_s))
        a.I("s_mov_b32", s(d + 3), "0x20000")

    def lane_exec(self, mask64):
        a = self.a
        a.I("s_mov_b32", "exec_lo", hex(mask64 & 0xffffffff))
        a.I("s_mov_b32", "exec_hi", hex(mask64 >> 32))

    def exec_all(self):
        self.a.I("s_mov_b64", "exec", -1)

    def if_wave(self, lo, hi, else_label):
        a = self.a
        if lo > 0:
            a.I("s_cmp_lt_u32", s(sW), lo)
            a.I("s_cbranch_scc1", else_label)
        if hi < 8:
            a.I("s_cmp_ge_u32", s(sW), hi)
            a.I("s_cbranch_scc1", else_label)

    def if_pair0(self, else_label):
        self.a.I("s_cmp_lg_u32", s(sP), 0)
        self.a.I("s_cbranch_scc1", else_label)

    def clamp(self, r):
        self.a.I("v_min_u32", v(r), "0xfffffffe", v(r))

    def store8(self, op, data, vaddr, soff, mods=""):
        a = self.a
        l_slow, l_done = self.L("slow"), self.L("sd")
        a.I("s_cmp_eq_u32", s(sFast), 0)
        a.I("s_cbranch_scc1", l_slow)
        a.I(op, data, vaddr, s(SRD_WS, 4), soff, mods=("offen " + mods).strip())
        a.I("s_branch", l_done)
        a.label(l_slow)
        a.I(op, data, vaddr, s(SRD_WS, 4), soff, mods=("offen " + mods + " sc1").strip())
        a.label(l_done)

    def timeout(self, loop_label):
        a = self.a
        a.I("s_add_u32", s(sTmo), s(sTmo), 1)
        a.I("s_cmp_lt_u32", s(sTmo), hex(self.tmo))
        a.I("s_cbranch_scc1", loop_label)
        a.I("s_branch", "L_end")

    def check_valid(self, regs, tmp, ok_label):
        a = self.a
        regs = list(regs)
        cur = None
        while regs:
            if cur is None:
                if len(regs) >= 3:
                    a.I("v_max3_u32", v(tmp), v(regs[0]), v(regs[1]), v(regs[2]))
                    regs = regs[3:]
                elif len(regs) == 2:
                    a.I("v_max_u32", v(tmp), v(regs[0]), v(regs[1]))
                    regs = []
                else:
                    a.I("v_mov_b32", v(tmp), v(regs[0]))
                    regs = []
                cur = tmp
            elif len(regs) >= 2:
                a.I("v_max3_u32", v(tmp), v(tmp), v(regs[0]), v(regs[1]))
                regs = regs[2:]
            else:
                a.I("v_max_u32", v(tmp), v(tmp), v(regs[0]))
                regs = []
        a.I("v_cmp_eq_u32", "vcc", SENT, v(tmp))
        a.I("s_cmp_eq_u64", "vcc", 0)
        a.I("s_cbranch_scc1", ok_label)

    def wait_by_wave(self, counts, extra):
        a = self.a
        done = self.L("wbw")
        vals = sorted(set(counts.values()))
        for val in vals[:-1]:
            ws_ = [w for w, c in counts.items() if c == val]
            nxt = self.L("wbn")
            hit = self.L("wbh")
            for w in ws_:
                a.I("s_cmp_eq_u32", s(sW), w)
                a.I("s_cbranch_scc1", hit)
            a.I("s_branch", nxt)
            a.label(hit)
            a.wait(vm=val + extra)
            a.I("s_branch", done)
            a.label(nxt)
        a.wait(vm=vals[-1] + extra)
        a.label(done)

    def delay(self, key):
        n = self.d[key]
        if n:
            self.a.I("s_sleep", n)

    def dpp(self, op, dst, src0, src1, ctrl, row=0xf, bank=0xf):
        mods = f"{ctrl} row_mask:{hex(row)} bank_mask:{hex(bank)}"
        if src1 is None:
            self.a.I(op + "_dpp", v(dst), v(src0), mods=mods)
        else:
            self.a.I(op + "_dpp", v(dst), v(src0), v(src1), mods=mods)

    def bfly8(self, op, regs):
        for ctrl in ("quad_perm:[1,0,3,2]", "quad_perm:[2,3,0,1]", "row_half_mirror"):
            for r in regs:
                self.dpp(op, r, r, r, ctrl)

    def reduce_rows4(self, a0, out):
        a = self.a
        a.I("v_permlane32_swap_b32", v(a0), v(a0 + 1))
        a.I("v_permlane32_swap_b32", v(a0 + 2), v(a0 + 3))
        a.I("v_add_f32", v(a0), v(a0), v(a0 + 1))
        a.I("v_add_f32", v(a0 + 2), v(a0 + 2), v(a0 + 3))
        a.I("v_permlane16_swap_b32", v(a0), v(a0 + 2))
        a.I("v_add_f32", v(out), v(a0), v(a0 + 2))

    def stats_finish(self, s1, s2, mean, rstd, t):
        a = self.a
        a.I("v_mul_f32", v(mean), hex(f2u(1.0 / 640)), v(s1))
        a.I("v_mul_f32", v(t), hex(f2u(1.0 / 640)), v(s2))
        a.I("v_fma_f32", v(t), f"-v{mean}", v(mean), v(t))
        a.I("v_max_f32", v(t), 0, v(t))
        a.I("v_add_f32", v(t), hex(f2u(1e-5)), v(t))
        a.I("v_rsq_f32", v(rstd), v(t))

    def prologue(self):
        a = self.a
        a.I("s_cmp_ge_u32", s(2), 256)
        a.I("s_cbranch_scc1", "L_end")
        a.I("s_load_dwordx16", s(sKA, 16), s(0, 2), 0)
        a.I("s_load_dwordx8", s(sKA + 16, 8), s(0, 2), 64)
        a.I("v_readfirstlane_b32", s(sW), v(0))
        a.I("s_and_b32", s(sH), s(2), 7)
        a.I("s_lshl_b32", s(sH), s(sH), 2)
        a.I("s_bfe_u32", s(3), s(2), "0x20003")
        a.I("s_or_b32", s(sH), s(sH), s(3))
        a.I("s_lshr_b32", s(sJ), s(2), 5)
        a.I("s_lshr_b32", s(sW), s(sW), 6)
        a.I("s_mov_b32", s(sP), 0)
        a.I("s_mov_b32", s(sTmo), 0)
        a.I("v_and_b32", v(vL), 63, v(0))
        a.I("v_lshrrev_b32", v(vG), 4, v(vL))
        a.I("v_and_b32", v(vN), 15, v(vL))
        a.I("s_lshl_b32", s(sG8), s(sH), 16)
        a.I("s_lshl_b32", s(3), s(sJ), 13)
        a.I("s_add_u32", s(sOwn), s(sG8), s(3))
        T = vT
        a.I("v_and_b32", v(T + 1), 3, v(vN))
        a.I("v_bfe_u32", v(T + 2), v(vN), 2, 1)
        a.I("v_lshl_add_u32", v(T + 1), v(T + 2), 4, v(T + 1))
        a.I("v_mul_u32_u24", v(T + 1), 384, v(T + 1))
        a.I("v_lshrrev_b32", v(T + 2), 3, v(vN))
        a.I("v_lshl_add_u32", v(T + 1), v(T + 2), 6, v(T + 1))
        a.I("v_lshl_add_u32", v(T + 1), v(vG), 4, v(T + 1))
        a.I("s_mul_i32", s(sT0), s(sW), 12288)
        a.I("v_add_u32", v(T), s(sT0), v(T + 1))
        for k in range(3):
            P, r, pos, ch = T + 10, T + 11, T + 12, T + 13
            a.I("v_add_u32", v(P), 64 * k, v(vL))
            a.I("v_mul_u32_u24", v(r), 2731, v(P))
            a.I("v_lshrrev_b32", v(r), 16, v(r))
            a.I("v_mul_u32_u24", v(pos), 24, v(r))
            a.I("v_sub_u32", v(pos), v(P), v(pos))
            a.I("v_and_b32", v(ch), 6, v(r))
            a.I("v_xor_b32", v(ch), v(ch), v(pos))
            a.I("v_lshlrev_b32", v(ch), 4, v(ch))
            a.I("v_mul_u32_u24", v(T + 14), 384, v(r))
            a.I("v_add3_u32", v(T + 1 + k), v(T + 14), v(ch), s(sT0))
            a.I("v_mul_u32_u24", v(T + 14), 12288, v(r))
            a.I("v_add_u32", v(T + 4 + k), v(T + 14), v(ch))
        a.I("s_min_u32", s(sT1), s(sW), 4)
        a.I("v_bfe_u32", v(T + 10), v(vL), 2, 2)
        a.I("v_lshlrev_b32", v(T + 11), 1, v(T + 10))
        a.I("v_lshrrev_b32", v(T + 12), 1, v(T + 10))
        a.I("v_and_b32", v(T + 11), 2, v(T + 11))
        a.I("v_or_b32", v(T + 11), v(T + 11), v(T + 12))
        a.I("v_lshl_add_u32", v(T + 11), v(vG), 2, v(T + 11))
        a.I("s_lshl_b32", s(sT2), s(sT1), 4)
        a.I("v_add_u32", v(T + 11), s(sT2), v(T + 11))
        a.I("v_lshlrev_b32", v(T + 7), 1, v(T + 11))
        a.I("v_add_u32", v(vXW), XB, v(T + 7))
        for i in range(4):
            a.I("v_mov_b32", v(T + 16 + i), SENT)
        a.wait(lgkm=0)
        px, pk, pv, pq, po, pg, pu = sKA, sKA + 2, sKA + 4, sKA + 6, sKA + 8, sKA + 12, sKA + 14
        pd, pout, pdbg, pws = sKA + 16, sKA + 18, sKA + 20, sKA + 22
        self.srd(SRD_WS, pws, None, hex(WS_BYTES))
        a.I("s_mul_i32", s(sT2), s(sH), 3145728)
        a.I("s_mul_i32", s(sT3), s(sJ), 98304)
        a.I("s_add_u32", s(sT2), s(sT2), s(sT3))
        a.I("s_add_u32", s(sT2), s(sT2), 2359296)
        self.srd(SRD_K, pk, sT2, 100663296)
        self.srd(SRD_V, pv, sT2, 100663296)
        a.I("s_mul_i32", s(sT2), s(sJ), 983040)
        a.I("s_mul_i32", s(sT3), s(sH), 384)
        a.I("s_add_u32", s(sT2), s(sT2), s(sT3))
        self.srd(SRD_WQ, pq, sT2, 7864320)
        a.I("s_mul_i32", s(sT4), s(sJ), 160)
        self.srd(SRD_X, px, sT4, 1280)
        lc = self.L("clr")
        self.srd(SRD_DBG, pdbg, None, 256)
        a.I("s_cmp_lg_u32", s(sW), 7)
        a.I("s_cbranch_scc1", lc)
        a.I("v_lshlrev_b32", v(T + 8), 4, v(vL))
        a.I("v_add_u32", v(T + 8), s(sOwn), v(T + 8))
        for k in range(7):
            a.I("s_mov_b32", s(sT2), 1024 * k)
            a.I("buffer_store_dwordx4", v(T + 16, 4), v(T + 8), s(SRD_WS, 4), s(sT2), mods="offen sc1")
        a.I("s_mul_i32", s(sT2), s(sJ), 10240)
        a.I("s_lshl_b32", s(sT3), s(sH), 6)
        a.I("s_add_u32", s(sT2), s(sT2), s(sT3))
        a.I("s_add_u32", s(sT2), s(sT2), hex(YBASE))
        for half in range(2):
            a.I("v_lshrrev_b32", v(T + 10), 2, v(vL))
            if half:
                a.I("v_add_u32", v(T + 10), 16, v(T + 10))
                a.I("v_min_u32", v(T + 10), 19, v(T + 10))
            a.I("v_mul_u32_u24", v(T + 11), 52, v(T + 10))
            a.I("v_lshrrev_b32", v(T + 11), 8, v(T + 11))
            a.I("v_mul_u32_u24", v(T + 12), 5, v(T + 11))
            a.I("v_sub_u32", v(T + 12), v(T + 10), v(T + 12))
            a.I("v_mul_u32_u24", v(T + 11), YPK, v(T + 11))
            a.I("v_lshl_add_u32", v(T + 11), v(T + 12), 11, v(T + 11))
            a.I("v_and_b32", v(T + 12), 3, v(vL))
            a.I("v_lshl_add_u32", v(T + 11), v(T + 12), 4, v(T + 11))
            a.I("v_add_u32", v(T + 11), s(sT2), v(T + 11))
            a.I("buffer_store_dwordx4", v(T + 16, 4), v(T + 11), s(SRD_WS, 4), 0, mods="offen sc1")
        a.I("s_getreg_b32", s(sT3), "hwreg(HW_REG_XCC_ID, 0, 4)")
        a.I("s_add_u32", s(sT2), s(sOwn), XCCOFF)
        a.I("v_mov_b32", v(T + 10), s(sT3))
        a.I("v_mov_b32", v(T + 11), s(sT2))
        a.I("buffer_store_dword", v(T + 10), v(T + 11), s(SRD_WS, 4), 0, mods="offen sc1")
        a.I("s_and_b32", s(sT2), s(2), 7)
        a.I("s_lshl_b32", s(sT2), s(sT2), 5)
        a.I("v_mov_b32", v(T + 10), s(sT2))
        a.I("v_mov_b32", v(T + 11), 1)
        a.wait(vm=0)
        self.lane_exec(1)
        a.I("buffer_atomic_add", v(T + 11), v(T + 10), s(SRD_DBG, 4), 0, mods="offen")
        self.exec_all()
        a.label(lc)
        a.I("buffer_load_ushort", v(vXR), v(T + 7), s(SRD_X, 4), 0, mods="offen")
        for rep in range(2):
            lab = self.L("wq")
            if rep:
                a.I("s_cmp_ge_u32", s(sW), 2)
                a.I("s_cbranch_scc1", lab)
                a.I("s_add_u32", s(sT2), s(sW), 8)
            else:
                a.I("s_mov_b32", s(sT2), s(sW))
            a.I("s_mul_i32", s(sT3), s(sT2), 98304)
            a.I("s_mul_i32", s(sT2), s(sT2), 3072)
            for k in range(3):
                a.I("s_add_u32", "m0", s(sT2), LA + 1024 * k)
                a.I("buffer_load_dwordx4", v(T + 4 + k), s(SRD_WQ, 4), s(sT3), mods="offen" + self.nt_w + " lds")
            a.label(lab)
        a.I("s_mov_b32", s(sT2), 3072)
        for t in range(4):
            for l in range(3):
                so = 0 if t < 2 else s(sT2)
                off = 1536 * (t & 1) + 128 * l
                a.I("buffer_load_dwordx4", v(vK + 12 * t + 4 * l, 4), v(T), s(SRD_K, 4), so, mods=f"offen offset:{off}" + self.nt_kv)
        self.v_dma(0)
        a.I("s_mul_i32", s(sT2), s(sH), 245760)
        a.I("s_add_u32", s(sT2), s(sT2), s(sT4))
        self.srd(SRD_WO, po, sT2, 7864320)
        a.I("s_mul_i32", s(sT2), s(sJ), 245760)
        a.I("s_mul_i32", s(sT3), s(sH), 96)
        a.I("s_add_u32", s(sT2), s(sT2), s(sT3))
        self.srd(SRD_WG, pg, sT2, 1966080)
        self.srd(SRD_WU, pu, sT2, 1966080)
        a.I("s_mul_i32", s(sT2), s(sH), 61440)
        a.I("s_add_u32", s(sT2), s(sT2), s(sT4))
        self.srd(SRD_WD, pd, sT2, 1966080)
        self.srd(SRD_OUT, pout, sT4, 1280)
        self.stamp("issued")

    def v_dma(self, part):
        a = self.a
        a.I("s_mul_i32", s(sT2), s(sW), 12288)
        a.I("s_add_u32", s(sT2), s(sT2), LB + 6144 * part)
        for grp in range(2):
            a.I("s_mov_b32", s(sT3), 6144 * part + 3072 * grp)
            for k in range(3):
                a.I("s_add_u32", "m0", s(sT2), 3072 * grp + 1024 * k)
                a.I("buffer_load_dwordx4", v(self.vVOFF + k), s(SRD_V, 4), s(sT3), mods="offen" + self.nt_kv + " lds")

    @property
    def vVOFF(self):
        return vT + 1

    def setup2(self):
        a = self.a
        T = vT + 24
        for k in range(3):
            a.I("v_mov_b32", v(vWT + 20 + k), v(vT + 1 + k))
        for i in range(16):
            a.I("v_mov_b32", v(vPA + i), 0)
        a.I("v_lshlrev_b32", v(T), 3, v(vG))
        a.I("v_add_u32", v(vXB), XB, v(T))
        a.I("v_add_u32", v(T + 1), ONES, v(T))
        a.I("v_cmp_eq_u32", "vcc", 1, v(vN))
        a.I("v_cndmask_b32", v(vXB), v(vXB), v(T + 1), "vcc")
        a.I("v_lshlrev_b32", v(T), 4, v(vG))
        a.I("v_add_u32", v(vPUB), s(sOwn), v(T))
        a.I("v_and_b32", v(T), 1, v(vN))
        a.I("v_lshlrev_b32", v(T), 6, v(T))
        a.I("v_lshl_add_u32", v(T), v(vG), 4, v(T))
        a.I("v_add_u32", v(vQA_ADDR), QBL, v(T))
        a.I("s_mul_i32", s(sT0), s(sW), 12288)
        a.I("s_add_u32", s(sT0), s(sT0), LB)
        a.I("v_lshlrev_b32", v(T), 2, v(vL))
        a.I("v_add_u32", v(vOW), s(sT0), v(T))
        a.I("s_min_u32", s(sT1), s(sW), 4)
        a.I("s_mul_i32", s(sT0), s(sJ), 10240)
        a.I("s_lshl_b32", s(sT2), s(sT1), 11)
        a.I("s_add_u32", s(sT0), s(sT0), s(sT2))
        a.I("s_add_u32", s(sT0), s(sT0), hex(YBASE))
        a.I("v_lshlrev_b32", v(T), 6, v(vN))
        a.I("v_lshl_add_u32", v(T), v(vG), 4, v(T))
        a.I("v_add_u32", v(vYG), s(sT0), v(T))
        a.I("s_lshl_b32", s(sT2), s(sH), 6)
        a.I("s_add_u32", s(sT0), s(sT0), s(sT2))
        a.I("v_lshlrev_b32", v(T), 4, v(vG))
        a.I("v_add_u32", v(vDP), s(sT0), v(T))
        a.I("v_lshrrev_b32", v(T + 1), 2, v(vN))
        a.I("v_lshl_add_u32", v(vYP), v(T + 1), 3, v(vDP))
        a.I("s_lshl_b32", s(sT0), s(sW), 8)
        a.I("s_add_u32", s(sT0), s(sT0), s(sG8))
        a.I("v_lshlrev_b32", v(T), 13, v(vG))
        a.I("v_lshl_add_u32", v(T), v(vN), 4, v(T))
        a.I("v_add_u32", v(vQG), s(sT0), v(T))
        a.I("v_and_b32", v(T), 7, v(vL))
        a.I("v_lshlrev_b32", v(T), 13, v(T))
        a.I("v_add_u32", v(vSG), s(sG8), v(T))
        a.I("v_lshl_add_u32", v(vOG), v(vG), 4, v(vSG))
        a.I("v_min_u32", v(T), 11, v(vN))
        a.I("v_lshlrev_b32", v(T), 4, v(T))
        a.I("v_lshl_add_u32", v(T), v(vG), 13, v(T))
        a.I("v_add_u32", v(vGG), s(sG8), v(T))
        lab = self.L("c0")
        a.I("s_cmp_lg_u32", s(sW), 0)
        a.I("s_cbranch_scc1", lab)
        a.I("v_lshlrev_b32", v(T), 2, v(vL))
        a.I("v_add_u32", v(T), LM, v(T))
        a.I("v_mov_b32", v(T + 1), "0x3f803f80")
        a.I("v_mov_b32", v(T + 2), 0)
        self.lane_exec((1 << 48) - 1)
        a.I("ds_write_b32", v(T), v(T + 1), mods=f"offset:{ONES - LM}")
        self.lane_exec((1 << 16) - 1)
        a.I("ds_write_b32", v(T), v(T + 2), mods=f"offset:{TSL - LM}")
        self.exec_all()
        a.label(lab)

    def wq_frags(self):
        a = self.a
        T = vT + 24
        a.wait(vm=18, lgkm=0)
        a.I("s_barrier")
        self.tr_base(T, 384, swz=True)
        for slot in range(2):
            lab = self.L("wqf")
            if slot == 0:
                a.I("s_lshl_b32", s(sT0), s(sW), 1)
                a.I("s_add_u32", s(sT1), s(sW), 4)
                a.I("s_cmp_lt_u32", s(sW), 4)
                a.I("s_cselect_b32", s(sT0), s(sT0), s(sT1))
            else:
                a.I("s_cmp_ge_u32", s(sW), 4)
                a.I("s_cbranch_scc1", lab)
                a.I("s_lshl_b32", s(sT0), s(sW), 1)
                a.I("s_add_u32", s(sT0), s(sT0), 1)
            a.I("s_and_b32", s(sT1), s(sT0), 3)
            a.I("s_lshl_b32", s(sT1), s(sT1), 5)
            a.I("s_lshr_b32", s(sT2), s(sT0), 2)
            a.I("s_lshl_b32", s(sT2), s(sT2), 7)
            a.I("v_xor_b32", v(T + 1), s(sT1), v(T))
            a.I("v_add_u32", v(T + 1), s(sT2), v(T + 1))
            base = vWQ + 12 * slot
            for st in range(3):
                for p in range(2):
                    if st == 2 and p == 1:
                        continue
                    a.I("ds_read_b64_tr_b16", v(base + 4 * st + 2 * p, 2), v(T + 1), mods=f"offset:{LA + 384 * (32 * st + 16 * p)}")
            a.label(lab)
        for slot in range(2):
            a.I("v_mov_b32", v(vWQ + 12 * slot + 10), 0)
            a.I("v_mov_b32", v(vWQ + 12 * slot + 11), 0)

    def tr_base(self, dst, pitch, swz=False):
        a = self.a
        a.I("v_lshrrev_b32", v(dst + 1), 2, v(vN))
        a.I("v_lshl_add_u32", v(dst + 1), v(vG), 2, v(dst + 1))
        a.I("v_mul_u32_u24", v(dst), pitch, v(dst + 1))
        if swz:
            a.I("v_and_b32", v(dst + 1), 6, v(dst + 1))
            a.I("v_bfe_u32", v(dst + 2), v(vN), 1, 1)
            a.I("v_xor_b32", v(dst + 1), v(dst + 1), v(dst + 2))
            a.I("v_lshl_add_u32", v(dst), v(dst + 1), 4, v(dst))
            a.I("v_and_b32", v(dst + 2), 1, v(vN))
            a.I("v_lshl_add_u32", v(dst), v(dst + 2), 3, v(dst))
        else:
            a.I("v_and_b32", v(dst + 2), 3, v(vN))
            a.I("v_lshl_add_u32", v(dst), v(dst + 2), 3, v(dst))

    def x_stage(self, xin):
        a = self.a
        T = vT + 60
        a.I("v_cvt_pk_bf16_f32", v(T), v(xin), v(xin))
        a.I("ds_write_b16", v(vXW), v(T))
        a.I("v_lshlrev_b32", v(vXR), 16, v(T))
        a.I("v_mul_f32", v(T + 2), v(vXR), v(vXR))
        a.I("v_mov_b32", v(T + 1), v(vXR))
        for ctrl, row in (("row_ror:4", 0xf), ("row_ror:8", 0xf), ("row_bcast:15", 0xa), ("row_bcast:31", 0xc)):
            self.dpp("v_add_f32", T + 1, T + 1, T + 1, ctrl, row=row)
            self.dpp("v_add_f32", T + 2, T + 2, T + 2, ctrl, row=row)
        a.I("s_lshl_b32", s(sT0), s(sW), 3)
        a.I("s_add_u32", s(sT0), s(sT0), TSL)
        a.I("v_mov_b32", v(T + 4), s(sT0))
        a.I("v_mov_b32", v(T + 6), v(T + 1))
        a.I("v_mov_b32", v(T + 7), v(T + 2))
        self.lane_exec(1 << 63)
        a.I("ds_write_b64", v(T + 4), v(T + 6, 2))
        self.exec_all()

    def read_xfrags(self, B):
        a = self.a
        for st in range(3):
            for p in range(2):
                if st == 2 and p == 1:
                    continue
                a.I("ds_read_b64", v(B + 4 * st + 2 * p, 2), v(vXB), mods=f"offset:{64 * st + 32 * p}")
        a.I("v_mov_b32", v(B + 10), 0)
        a.I("v_mov_b32", v(B + 11), 0)

    def publish_tile(self, D, soff_s, tile_imm_s, cs_off):
        a = self.a
        T = vT + 56
        for i in range(4):
            self.clamp(D + i)
        a.I("v_mul_u32_u24", v(T), cs_off, v(vN))
        a.I("v_add_u32", v(T), v(vPUB), v(T))
        self.lane_exec(0x0003000300030003)
        self.store8("buffer_store_dwordx4", v(D, 4), v(T), s(soff_s))
        self.exec_all()

    def publish_stats(self, off_s, imm):
        a = self.a
        T = vT + 40
        a.I("v_and_b32", v(T), 7, v(vL))
        a.I("v_lshlrev_b32", v(T), 3, v(T))
        a.I("v_add_u32", v(T), TSL, v(T))
        a.I("ds_read_b64", v(T + 2, 2), v(T))
        a.wait(lgkm=0)
        self.bfly8("v_add_f32", [T + 2, T + 3])
        self.clamp(T + 2)
        self.clamp(T + 3)
        a.I("v_mov_b32", v(T), s(sOwn))
        self.lane_exec(1)
        self.store8("buffer_store_dwordx2", v(T + 2, 2), v(T), s(off_s), mods=f"offset:{imm}")
        self.exec_all()

    def q_phase(self):
        a = self.a
        B = vT
        D = vT + 16
        self.read_xfrags(B)
        a.I("s_lshl_b32", s(sT0), s(sW), 1)
        a.I("s_add_u32", s(sT1), s(sW), 4)
        a.I("s_cmp_lt_u32", s(sW), 4)
        a.I("s_cselect_b32", s(sT0), s(sT0), s(sT1))
        a.I("s_lshl_b32", s(sT0), s(sT0), 6)
        a.I("s_add_u32", s(sT0), s(sT0), s(sPQ))
        a.wait(lgkm=0)
        for st in range(3):
            a.I("v_mfma_f32_16x16x32_bf16", v(D, 4), v(vWQ + 4 * st, 4), v(B + 4 * st, 4), 0 if st == 0 else v(D, 4))
        lab, lab2 = self.L("q1"), self.L("q2")
        a.I("s_cmp_ge_u32", s(sW), 4)
        a.I("s_cbranch_scc1", lab)
        for st in range(3):
            a.I("v_mfma_f32_16x16x32_bf16", v(D + 4, 4), v(vWQ + 12 + 4 * st, 4), v(B + 4 * st, 4), 0 if st == 0 else v(D + 4, 4))
        self.publish_tile(D, sT0, None, 768)
        a.I("s_add_u32", s(sT0), s(sT0), 64)
        self.publish_tile(D + 4, sT0, None, 768)
        a.I("s_branch", lab2)
        a.label(lab)
        a.nop(8)
        self.publish_tile(D, sT0, None, 768)
        a.label(lab2)
        lab = self.L("q3")
        a.I("s_cmp_lg_u32", s(sW), 7)
        a.I("s_cbranch_scc1", lab)
        self.publish_stats(sPQ, 1536)
        a.label(lab)

    def group_handshake(self):
        a = self.a
        dbg = SRD_DBG
        l_ok, l_loop, l_skip = self.L("hs_ok"), self.L("hs_loop"), self.L("hs_skip")
        T = vT + 24
        a.I("s_cmp_lg_u32", s(sW), 0)
        a.I("s_cbranch_scc1", l_skip)
        tmp = [sT0, sT1, sT2, sT3, sT4, sT5, sCM, sCM + 1]
        for k in range(8):
            a.I("s_load_dword", s(tmp[k]), s(dbg, 2), 32 * k)
        a.wait(lgkm=0)
        for k in range(1, 8):
            a.I("s_add_u32", s(sT0), s(sT0), s(tmp[k]))
        a.I("s_cmp_ge_u32", s(sT0), 256)
        a.I("s_cbranch_scc1", l_ok)
        a.I("v_and_b32", v(T), 7, v(vL))
        a.I("v_lshlrev_b32", v(T), 5, v(T))
        a.label(l_loop)
        a.I("s_sleep", 32)
        a.I("buffer_load_dword", v(T + 1), v(T), s(dbg, 4), 0, mods="offen sc1")
        a.wait(vm=0)
        self.bfly8("v_add_u32", [T + 1])
        a.I("v_readfirstlane_b32", s(sT2), v(T + 1))
        a.I("s_cmp_ge_u32", s(sT2), 256)
        a.I("s_cbranch_scc1", l_ok)
        self.timeout(l_loop)
        a.label(l_ok)
        a.I("s_add_u32", s(3), s(sG8), XCCOFF)
        for k in range(8):
            a.I("s_add_u32", s(sFast), s(3), 8192 * k)
            a.I("s_load_dword", s(tmp[k]), s(SRD_WS, 2), s(sFast))
        a.wait(lgkm=0)
        a.I("s_mov_b32", s(sFast), 0)
        for k in range(1, 8):
            a.I("s_xor_b32", s(tmp[k]), s(tmp[k]), s(tmp[0]))
            a.I("s_or_b32", s(sFast), s(sFast), s(tmp[k]))
        a.I("s_cmp_eq_u32", s(sFast), 0)
        a.I("s_cselect_b32", s(sFast), 0 if self.force_slow else 1, 0)
        a.I("v_mov_b32", v(T), FSL)
        a.I("v_mov_b32", v(T + 1), s(sFast))
        a.I("ds_write_b32", v(T), v(T + 1))
        a.wait(lgkm=0)
        a.label(l_skip)
        a.I("s_barrier")
        a.I("v_mov_b32", v(T), FSL)
        a.I("ds_read_b32", v(T + 1), v(T))
        a.wait(lgkm=0)
        a.I("v_readfirstlane_b32", s(sFast), v(T + 1))

    def qg_issue(self):
        a = self.a
        A, Bq, CA, CB, S = vT, vT + 4, vT + 8, vT + 12, vT + 16
        a.I("buffer_load_dwordx4", v(A, 4), v(vQG), s(SRD_WS, 4), s(sPQ), mods="offen sc1")
        a.I("s_add_u32", s(sT0), s(sPQ), 32768)
        a.I("buffer_load_dwordx4", v(Bq, 4), v(vQG), s(SRD_WS, 4), s(sT0), mods="offen sc1")
        a.I("buffer_load_dwordx2", v(S, 2), v(vSG), s(SRD_WS, 4), s(sPQ), mods="offen offset:1536 sc1")
        a.I("buffer_load_dwordx4", v(CA, 4), v(vQG), s(SRD_WS, 4), s(sPQ), mods="offen offset:768 sc1")
        a.I("buffer_load_dwordx4", v(CB, 4), v(vQG), s(SRD_WS, 4), s(sT0), mods="offen offset:768 sc1")

    def q_gather(self):
        a = self.a
        A, Bq, CA, CB, S = vT, vT + 4, vT + 8, vT + 12, vT + 16
        l_skip, l_skip2, l_p1, l_chk, l_ok, l_retry, l_w = [self.L(x) for x in ("qg_s", "qg_s2", "qg_p1", "qg_c", "qg_ok", "qg_r", "qg_w")]
        self.if_wave(0, 3, l_skip)
        self.delay("q")
        self.qg_issue()
        a.label(l_skip)
        self.if_pair0(l_p1)
        a.I("s_barrier")
        self.v_dma_part2()
        self.wo_dma()
        self.if_wave(0, 3, l_skip2)
        a.wait(vm=10)
        a.I("s_branch", l_chk)
        a.label(l_p1)
        self.if_wave(0, 3, l_skip2)
        a.label(l_w)
        a.wait(vm=0)
        a.label(l_chk)
        self.check_valid(list(range(A, A + 18)), vT + 20, l_ok)
        self.qg_issue()
        self.timeout(l_w)
        a.label(l_ok)
        self.stamp("qg_ok0", 0)
        self.stamp("qg_ok1", 1)
        for i in range(4):
            a.I("v_add_f32", v(A + i), v(A + i), v(Bq + i))
            a.I("v_add_f32", v(CA + i), v(CA + i), v(CB + i))
        self.bfly8("v_add_f32", [S, S + 1])
        self.reduce_rows4(A, vT + 21)
        self.reduce_rows4(CA, vCQ)
        mean, rstd, t = vT + 22, vT + 23, vT + 24
        self.stats_finish(S, S + 1, mean, rstd, t)
        a.I("v_fma_f32", v(vT + 21), f"-v{mean}", v(vCQ), v(vT + 21))
        a.I("v_mul_f32", v(rstd), hex(f2u(QSCALE)), v(rstd))
        a.I("v_mul_f32", v(vT + 21), v(vT + 21), v(rstd))
        a.I("v_cvt_pk_bf16_f32", v(vT + 21), v(vT + 21), v(vT + 21))
        a.I("v_lshlrev_b32", v(t), 1, v(vG))
        a.I("v_lshrrev_b32", v(t + 1), 1, v(vG))
        a.I("v_and_b32", v(t), 2, v(t))
        a.I("v_or_b32", v(t), v(t), v(t + 1))
        a.I("v_lshl_add_u32", v(t), v(vN), 2, v(t))
        a.I("s_lshl_b32", s(sT0), s(sW), 7)
        a.I("s_add_u32", s(sT0), s(sT0), QBL)
        a.I("v_lshl_add_u32", v(t), v(t), 1, s(sT0))
        a.I("ds_write_b16", v(t), v(vT + 21))
        a.label(l_skip2)
        a.wait(lgkm=0)
        a.I("s_barrier")

    def v_dma_part2(self):
        a = self.a
        a.I("s_mul_i32", s(sT2), s(sW), 12288)
        a.I("s_add_u32", s(sT2), s(sT2), LB + 6144)
        for grp in range(2):
            a.I("s_mov_b32", s(sT3), 6144 + 3072 * grp)
            for k in range(3):
                a.I("s_add_u32", "m0", s(sT2), 3072 * grp + 1024 * k)
                a.I("buffer_load_dwordx4", v(vWT + 20 + k), s(SRD_V, 4), s(sT3), mods="offen" + self.nt_kv + " lds")

    def rowblock_dma(self, srd, idx_s, ncol, rowbytes, mul, lds_base, clampP=None, T=vT + 40):
        a = self.a
        a.I("s_lshl_b32", s(sT4), s(idx_s), 6)
        a.I("v_add_u32", v(T), s(sT4), v(vL))
        if clampP is not None:
            a.I("v_min_u32", v(T), clampP, v(T))
        a.I("v_mul_u32_u24", v(T + 1), mul, v(T))
        a.I("v_lshrrev_b32", v(T + 1), 16, v(T + 1))
        a.I("v_mul_u32_u24", v(T + 2), ncol, v(T + 1))
        a.I("v_sub_u32", v(T + 2), v(T), v(T + 2))
        a.I("v_mul_u32_u24", v(T + 1), rowbytes, v(T + 1))
        a.I("v_lshl_add_u32", v(T + 3), v(T + 2), 4, v(T + 1))
        a.I("s_lshl_b32", s(sT4), s(idx_s), 10)
        a.I("s_add_u32", "m0", s(sT4), lds_base)
        a.I("buffer_load_dwordx4", v(T + 3), s(srd, 4), 0, mods="offen" + self.nt_w + " lds")

    def wo_dma(self):
        a = self.a
        for k in range(4):
            a.I("s_add_u32", s(sT0), s(sW), 8 * k)
            a.I("s_min_u32", s(sT0), s(sT0), 29)
            self.rowblock_dma(SRD_WO, sT0, 10, 1280, 6554, LC)

    def gud_dma(self):
        a = self.a
        l6, l7, le = self.L("g6"), self.L("g7"), self.L("ge")
        a.I("s_cmp_eq_u32", s(sW), 6)
        a.I("s_cbranch_scc1", l6)
        a.I("s_cmp_eq_u32", s(sW), 7)
        a.I("s_cbranch_scc1", l7)
        for k in range(8):
            a.I("s_mov_b32", s(sT0), k)
            self.rowblock_dma(SRD_WG, sT0, 6, 3072, 10923, LA, clampP=479)
        a.I("s_branch", le)
        a.label(l6)
        for k in range(8):
            a.I("s_mov_b32", s(sT0), k)
            self.rowblock_dma(SRD_WU, sT0, 6, 3072, 10923, LA + 8192, clampP=479)
        a.I("s_branch", le)
        a.label(l7)
        for k in range(8):
            a.I("s_mov_b32", s(sT0), k)
            self.rowblock_dma(SRD_WD, sT0, 10, 1280, 6554, LA + 16384, clampP=479)
        a.label(le)

    def v_frags(self, p):
        a = self.a
        T = vT + 70
        self.tr_base(T, 384, swz=True)
        a.I("s_mul_i32", s(sT0), s(sW), 12288)
        a.I("s_add_u32", s(sT0), s(sT0), LB + 6144 * p)
        a.I("v_add_u32", v(T), s(sT0), v(T))
        for t in range(4):
            if t:
                a.I("v_xor_b32", v(T + 3), 32 * t, v(T))
            ad = T if t == 0 else T + 3
            for hi in range(3):
                tile = 4 * hi + t
                a.I("ds_read_b64_tr_b16", v(vV + 4 * tile + 2 * p, 2), v(ad), mods=f"offset:{128 * hi}")

    def attention(self):
        a = self.a
        QA = vT
        S4 = vT + 12
        S = vT + 28
        M = vT + 29
        PK = vT + 30
        O = vT + 32
        Ls = vT + 44
        F = vT + 45
        lab = self.L("v0")
        for l in range(3):
            a.I("ds_read_b128", v(QA + 4 * l, 4), v(vQA_ADDR), mods=f"offset:{128 * l}")
        a.I("v_mov_b32", v(S), "0xff800000")
        self.if_pair0(lab)
        a.wait(vm=10)
        self.v_frags(0)
        a.label(lab)
        a.wait(lgkm=0)
        for t in range(4):
            for l in range(3):
                a.I("v_mfma_f32_16x16x32_bf16", v(S4 + 4 * t, 4), v(QA + 4 * l, 4), v(vK + 12 * t + 4 * l, 4), 0 if l == 0 else v(S4 + 4 * t, 4))
        for t in range(4):
            a.I("v_add_f32_dpp", v(S), v(S4 + 4 * t + 1), v(S4 + 4 * t), mods=f"row_ror:8 row_mask:{hex(1 << t)} bank_mask:0x3")
        a.I("v_mov_b32", v(M), v(S))
        for ctrl, row in (("quad_perm:[1,0,3,2]", 0xf), ("quad_perm:[2,3,0,1]", 0xf), ("row_half_mirror", 0xf), ("row_ror:8", 0xf), ("row_bcast:15", 0xa), ("row_bcast:31", 0xc)):
            self.dpp("v_max_f32", M, M, M, ctrl, row=row)
        a.I("v_readlane_b32", s(sM), v(M), 63)
        a.I("s_lshl_b32", s(sT0), s(sW), 2)
        a.I("s_add_u32", s(sT0), s(sT0), MXL)
        a.I("v_mov_b32", v(vT + 60), s(sT0))
        a.I("v_subrev_f32", v(S), s(sM), v(S))
        a.I("v_mov_b32", v(F), s(sM))
        a.I("v_exp_f32", v(S), v(S))
        self.lane_exec(1)
        a.I("ds_write_b32", v(vT + 60), v(F))
        self.exec_all()
        self.dpp("v_mov_b32", PK, S, None, "row_shl:1")
        a.I("v_cvt_pk_bf16_f32", v(PK), v(S), v(PK))
        a.I("v_mov_b32", v(Ls), v(S))
        lab = self.L("v1")
        self.if_pair0(lab)
        self.stamp("softmax0")
        a.wait(vm=4)
        self.stamp("v_landed")
        self.v_frags(1)
        a.label(lab)
        for g2 in range(4):
            for i in range(4):
                a.I("v_mov_b32_dpp", v(vPA + 4 * g2 + i), v(PK), mods=f"row_newbcast:{2 * i} row_mask:0xf bank_mask:{hex(1 << g2)}")
        a.wait(lgkm=0)
        for g2 in range(4):
            for i in range(3):
                a.I("v_mfma_f32_16x16x32_bf16", v(O + 4 * i, 4), v(vPA + 4 * g2, 4), v(vV + 4 * (4 * i + g2), 4), 0 if g2 == 0 else v(O + 4 * i, 4))
        for ctrl, row in (("quad_perm:[1,0,3,2]", 0xf), ("quad_perm:[2,3,0,1]", 0xf), ("row_half_mirror", 0xf), ("row_ror:8", 0xf), ("row_bcast:15", 0xa), ("row_bcast:31", 0xc)):
            self.dpp("v_add_f32", Ls, Ls, Ls, ctrl, row=row)
        self.stamp("pv_iss1", 1)
        a.I("s_barrier")
        a.I("v_mov_b32", v(vT + 61), MXL)
        a.I("ds_read_b128", v(vT + 48, 4), v(vT + 61))
        a.I("ds_read_b128", v(vT + 52, 4), v(vT + 61), mods="offset:16")
        a.wait(lgkm=0)
        X = vT + 48
        a.I("v_max3_f32", v(X), v(X), v(X + 1), v(X + 2))
        a.I("v_max3_f32", v(X + 3), v(X + 3), v(X + 4), v(X + 5))
        a.I("v_max3_f32", v(X), v(X), v(X + 6), v(X + 7))
        a.I("v_max_f32", v(X), v(X), v(X + 3))
        a.I("v_sub_f32", v(F), v(F), v(X))
        a.I("v_exp_f32", v(F), v(F))
        a.I("v_mul_f32", v(Ls), v(Ls), v(F))
        for i in range(3):
            a.I("v_mul_f32", v(O + 4 * i), v(O + 4 * i), v(F))
        for i in range(3):
            a.I("ds_write_b32", v(vOW), v(O + 4 * i), mods=f"offset:{256 * i}")
        self.lane_exec(1 << 63)
        a.I("ds_write_b32", v(vT + 60), v(Ls), mods=f"offset:{LSL - MXL}")
        self.exec_all()
        a.wait(lgkm=0)
        a.I("s_barrier")
        l_skip = self.L("fc")
        self.if_wave(0, 3, l_skip)
        R = vT
        a.I("s_lshl_b32", s(sT0), s(sW), 8)
        a.I("s_add_u32", s(sT0), s(sT0), LB)
        a.I("v_lshlrev_b32", v(R + 20), 2, v(vL))
        a.I("v_add_u32", v(R + 20), s(sT0), v(R + 20))
        for w2 in range(8):
            if w2 < 5:
                a.I("ds_read_b32", v(R + w2), v(R + 20), mods=f"offset:{12288 * w2}")
        a.I("v_add_u32", v(R + 21), 12288 * 5, v(R + 20))
        for w2 in range(5, 8):
            a.I("ds_read_b32", v(R + w2), v(R + 21), mods=f"offset:{12288 * (w2 - 5)}")
        a.I("v_mov_b32", v(R + 22), LSL)
        a.I("ds_read_b128", v(R + 8, 4), v(R + 22))
        a.I("ds_read_b128", v(R + 12, 4), v(R + 22), mods="offset:16")
        a.I("v_lshrrev_b32", v(R + 23), 5, v(vL))
        a.I("v_lshlrev_b32", v(R + 23), 6, v(R + 23))
        a.I("v_bfe_u32", v(R + 24), v(vL), 2, 2)
        a.I("v_lshl_add_u32", v(R + 23), v(R + 24), 4, v(R + 23))
        a.I("v_bfe_u32", v(R + 24), v(vL), 4, 1)
        a.I("v_lshl_add_u32", v(R + 23), v(R + 24), 3, v(R + 23))
        a.I("s_lshl_b32", s(sT0), s(sW), 7)
        a.I("s_add_u32", s(sT0), s(sT0), s(sOwn))
        a.I("v_add_u32", v(R + 23), s(sT0), v(R + 23))
        a.wait(lgkm=0)
        a.I("v_add_f32", v(R), v(R), v(R + 1))
        a.I("v_add_f32", v(R + 2), v(R + 2), v(R + 3))
        a.I("v_add_f32", v(R + 4), v(R + 4), v(R + 5))
        a.I("v_add_f32", v(R + 6), v(R + 6), v(R + 7))
        a.I("v_add_f32", v(R), v(R), v(R + 2))
        a.I("v_add_f32", v(R + 4), v(R + 4), v(R + 6))
        a.I("v_add_f32", v(R), v(R), v(R + 4))
        self.dpp("v_mov_b32", R + 1, R, None, "row_shl:1")
        a.I("v_cvt_pk_bf16_f32", v(R + 2), v(R), v(R + 1))
        self.dpp("v_mov_b32", R + 3, R + 2, None, "row_shl:2")
        self.clamp(R + 2)
        self.clamp(R + 3)
        self.lane_exec(0x1111111111111111)
        self.store8("buffer_store_dwordx2", v(R + 2, 2), v(R + 23), s(sPO))
        self.exec_all()
        l_ml = self.L("ml")
        a.I("s_cmp_lg_u32", s(sW), 0)
        a.I("s_cbranch_scc1", l_ml)
        for i in range(0, 8, 2):
            a.I("v_add_f32", v(R + 8 + i), v(R + 8 + i), v(R + 9 + i))
        a.I("v_add_f32", v(R + 8), v(R + 8), v(R + 10))
        a.I("v_add_f32", v(R + 12), v(R + 12), v(R + 14))
        a.I("v_add_f32", v(R + 7), v(R + 8), v(R + 12))
        a.I("v_mov_b32", v(R + 6), v(vT + 48))
        self.clamp(R + 6)
        self.clamp(R + 7)
        a.I("v_mov_b32", v(R + 20), s(sOwn))
        self.lane_exec(1)
        self.store8("buffer_store_dwordx2", v(R + 6, 2), v(R + 20), s(sPO), mods="offset:384")
        self.exec_all()
        a.label(l_ml)
        a.label(l_skip)
        self.stamp("o_pub0", 0)
        self.stamp("o_pub1", 1)

    def wo_frags(self):
        a = self.a
        T = vT + 70
        self.tr_base(T, 160)
        a.I("s_lshl_b32", s(sT0), s(sW), 5)
        a.I("s_add_u32", s(sT0), s(sT0), LC)
        a.I("v_add_u32", v(T), s(sT0), v(T))
        for st in range(6):
            for p in range(2):
                a.I("ds_read_b64_tr_b16", v(vWT + 4 * st + 2 * p, 2), v(T), mods=f"offset:{160 * (32 * st + 16 * p)}")

    def og_issue(self):
        a = self.a
        B = vT
        for st in range(6):
            a.I("buffer_load_dwordx4", v(B + 4 * st, 4), v(vOG), s(SRD_WS, 4), s(sPO), mods=f"offen offset:{64 * st} sc1")
        a.I("buffer_load_dwordx2", v(B + 24, 2), v(vSG), s(SRD_WS, 4), s(sPO), mods="offen offset:384 sc1")

    def o_phase(self):
        a = self.a
        B, ML, D = vT, vT + 24, vT + 28
        l_p1, l_skip, l_skip2, l_w, l_ok = [self.L(x) for x in ("o_p1", "o_s", "o_s2", "o_w", "o_ok")]
        self.if_pair0(l_p1)
        a.wait(vm=0)
        a.I("s_barrier")
        a.label(l_p1)
        self.if_wave(0, 5, l_skip)
        self.wo_frags()
        self.delay("o")
        self.og_issue()
        a.label(l_skip)
        l_p1b = self.L("o_p1b")
        self.if_pair0(l_p1b)
        a.I("s_barrier")
        l_x = self.L("o_x")
        self.if_wave(5, 8, l_x)
        self.gud_dma()
        a.label(l_x)
        a.label(l_p1b)
        self.if_wave(0, 5, l_skip2)
        a.label(l_w)
        a.wait(vm=0, lgkm=0)
        for st in range(6):
            a.I("v_mfma_f32_16x16x32_bf16", v(D, 4), v(vWT + 4 * st, 4), v(B + 4 * st, 4), 0 if st == 0 else v(D, 4))
        self.check_valid(list(range(B, B + 26)), vT + 32, l_ok)
        self.og_issue()
        self.timeout(l_w)
        a.label(l_ok)
        self.stamp("og_ok0", 0)
        self.stamp("og_ok1", 1)
        Mx, W = vT + 33, vT + 34
        a.I("v_mov_b32", v(Mx), v(ML))
        self.bfly8("v_max_f32", [Mx])
        a.I("v_sub_f32", v(W), v(ML), v(Mx))
        a.I("v_exp_f32", v(W), v(W))
        a.I("v_mul_f32", v(Mx), v(W), v(ML + 1))
        self.bfly8("v_add_f32", [Mx])
        a.I("v_rcp_f32", v(Mx), v(Mx))
        a.I("v_mul_f32", v(W), v(W), v(Mx))
        for i in range(4):
            a.I("v_mul_f32", v(D + i), v(D + i), v(W))
        U = vT + 36
        a.I("v_add_f32_dpp", v(U), v(D), v(D), mods="row_shl:4 row_mask:0xf bank_mask:0x5")
        a.I("v_add_f32_dpp", v(U + 1), v(D + 1), v(D + 1), mods="row_shl:4 row_mask:0xf bank_mask:0x5")
        a.I("v_add_f32_dpp", v(U), v(D + 2), v(D + 2), mods="row_shr:4 row_mask:0xf bank_mask:0xa")
        a.I("v_add_f32_dpp", v(U + 1), v(D + 3), v(D + 3), mods="row_shr:4 row_mask:0xf bank_mask:0xa")
        for ctrl in ("quad_perm:[1,0,3,2]", "quad_perm:[2,3,0,1]"):
            self.dpp("v_add_f32", U, U, U, ctrl)
            self.dpp("v_add_f32", U + 1, U + 1, U + 1, ctrl)
        self.clamp(U)
        self.clamp(U + 1)
        self.lane_exec(0x0011001100110011)
        a.I("buffer_store_dwordx2", v(U, 2), v(vYP), s(SRD_WS, 4), s(sPY), mods="offen sc1")
        self.exec_all()
        a.label(l_skip2)

    def xg_issue(self, soff):
        a = self.a
        A = vT
        a.I("buffer_load_dwordx4", v(A, 4), v(vYG), s(SRD_WS, 4), s(soff), mods="offen sc1")
        a.I("buffer_load_dwordx4", v(A + 4, 4), v(vYG), s(SRD_WS, 4), s(soff), mods="offen offset:1024 sc1")

    def x_gather(self, soff, key, tag):
        a = self.a
        A = vT
        l_w, l_ok = self.L("x_w"), self.L("x_ok")
        self.delay(key)
        self.xg_issue(soff)
        a.label(l_w)
        a.wait(vm=0)
        self.check_valid(list(range(A, A + 8)), vT + 8, l_ok)
        self.xg_issue(soff)
        self.timeout(l_w)
        a.label(l_ok)
        self.stamp(tag + "0", 0)
        self.stamp(tag + "1", 1)
        for i in range(4):
            a.I("v_add_f32", v(A + i), v(A + i), v(A + 4 + i))
        r01, r23, r = vT + 8, vT + 9, vT + 10
        a.I("v_add_f32_dpp", v(r01), v(A), v(A), mods="row_ror:8 row_mask:0xf bank_mask:0x3")
        a.I("v_add_f32_dpp", v(r23), v(A + 2), v(A + 2), mods="row_ror:8 row_mask:0xf bank_mask:0x3")
        a.I("v_add_f32_dpp", v(r01), v(A + 1), v(A + 1), mods="row_ror:8 row_mask:0xf bank_mask:0xc")
        a.I("v_add_f32_dpp", v(r23), v(A + 3), v(A + 3), mods="row_ror:8 row_mask:0xf bank_mask:0xc")
        a.I("v_add_f32_dpp", v(r), v(r01), v(r01), mods="row_shl:4 row_mask:0xf bank_mask:0x5")
        a.I("v_add_f32_dpp", v(r), v(r23), v(r23), mods="row_shr:4 row_mask:0xf bank_mask:0xa")
        self.dpp("v_add_f32", r, r, r, "quad_perm:[1,0,3,2]")
        self.dpp("v_add_f32", r, r, r, "quad_perm:[2,3,0,1]")
        a.I("v_add_f32", v(r), v(r), v(vXR))
        return r

    def gu_phase(self):
        a = self.a
        B, D, T = vT, vT + 16, vT + 70
        l_skip = self.L("gu_s")
        l_st = self.L("gu_st")
        self.if_wave(0, 6, l_skip)
        self.tr_base(T, 96)
        a.I("s_cmp_ge_u32", s(sW), 3)
        a.I("s_cselect_b32", s(sT0), 8192 - 96, 0)
        a.I("s_lshl_b32", s(sT1), s(sW), 5)
        a.I("s_add_u32", s(sT0), s(sT0), s(sT1))
        a.I("s_add_u32", s(sT0), s(sT0), LA)
        a.I("v_add_u32", v(T), s(sT0), v(T))
        for st in range(3):
            for p in range(2):
                if st == 2 and p == 1:
                    continue
                a.I("ds_read_b64_tr_b16", v(vWT + 4 * st + 2 * p, 2), v(T), mods=f"offset:{96 * (32 * st + 16 * p)}")
        a.I("v_mov_b32", v(vWT + 10), 0)
        a.I("v_mov_b32", v(vWT + 11), 0)
        self.read_xfrags(B)
        a.I("s_lshl_b32", s(sT0), s(sW), 6)
        a.I("s_add_u32", s(sT0), s(sT0), s(sPG))
        a.wait(lgkm=0)
        for st in range(3):
            a.I("v_mfma_f32_16x16x32_bf16", v(D, 4), v(vWT + 4 * st, 4), v(B + 4 * st, 4), 0 if st == 0 else v(D, 4))
        self.publish_tile(D, sT0, None, 384)
        a.label(l_skip)
        a.I("s_cmp_lg_u32", s(sW), 7)
        a.I("s_cbranch_scc1", l_st)
        self.publish_stats(sPG, 768)
        a.label(l_st)

    def gg_issue(self):
        a = self.a
        A = vT
        a.I("s_add_u32", s(sT0), s(sPG), 32768)
        for k, off in enumerate((0, 192, 384, 576)):
            a.I("buffer_load_dwordx4", v(A + 8 * k, 4), v(vGG), s(SRD_WS, 4), s(sPG), mods=f"offen offset:{off} sc1")
            a.I("buffer_load_dwordx4", v(A + 8 * k + 4, 4), v(vGG), s(SRD_WS, 4), s(sT0), mods=f"offen offset:{off} sc1")
        a.I("buffer_load_dwordx2", v(A + 32, 2), v(vSG), s(SRD_WS, 4), s(sPG), mods="offen offset:768 sc1")

    def g_gather(self):
        a = self.a
        A = vT
        l_skip, l_w, l_ok = self.L("gg_s"), self.L("gg_w"), self.L("gg_ok")
        self.if_wave(6, 7, l_skip)
        self.delay("g")
        self.gg_issue()
        a.label(l_w)
        a.wait(vm=0)
        self.check_valid(list(range(A, A + 34)), vT + 34, l_ok)
        self.gg_issue()
        self.timeout(l_w)
        a.label(l_ok)
        self.stamp("gg_ok0", 0)
        self.stamp("gg_ok1", 1)
        for k in range(4):
            for i in range(4):
                a.I("v_add_f32", v(A + 8 * k + i), v(A + 8 * k + i), v(A + 8 * k + 4 + i))
        S = A + 32
        self.bfly8("v_add_f32", [S, S + 1])
        G, U = vT + 36, vT + 37
        self.reduce_rows4(A, G)
        self.reduce_rows4(A + 8, U)
        self.reduce_rows4(A + 16, vCG)
        self.reduce_rows4(A + 24, vCU)
        mean, rstd, t = vT + 38, vT + 39, vT + 40
        self.stats_finish(S, S + 1, mean, rstd, t)
        a.I("v_fma_f32", v(G), f"-v{mean}", v(vCG), v(G))
        a.I("v_fma_f32", v(U), f"-v{mean}", v(vCU), v(U))
        a.I("v_mul_f32", v(G), v(G), v(rstd))
        a.I("v_mul_f32", v(U), v(U), v(rstd))
        a.I("v_mul_f32", v(G), v(G), v(U))
        a.I("v_cvt_pk_bf16_f32", v(G), v(G), v(G))
        a.I("v_lshlrev_b32", v(t), 1, v(vG))
        a.I("v_lshrrev_b32", v(t + 1), 1, v(vG))
        a.I("v_and_b32", v(t), 2, v(t))
        a.I("v_or_b32", v(t), v(t), v(t + 1))
        a.I("v_min_u32", v(t + 1), 11, v(vN))
        a.I("v_lshl_add_u32", v(t), v(t + 1), 2, v(t))
        a.I("v_lshlrev_b32", v(t), 1, v(t))
        a.I("v_add_u32", v(t), HBL, v(t))
        a.I("ds_write_b16", v(t), v(G))
        a.label(l_skip)
        a.wait(lgkm=0)
        a.I("s_barrier")

    def d_phase(self):
        a = self.a
        B, D, T = vT, vT + 16, vT + 70
        l_skip = self.L("d_s")
        self.if_wave(0, 5, l_skip)
        self.tr_base(T, 160)
        a.I("s_lshl_b32", s(sT0), s(sW), 5)
        a.I("s_add_u32", s(sT0), s(sT0), LA + 16384)
        a.I("v_add_u32", v(T), s(sT0), v(T))
        for st, p in ((0, 0), (0, 1), (1, 0)):
            a.I("ds_read_b64_tr_b16", v(vWT + 4 * st + 2 * p, 2), v(T), mods=f"offset:{160 * (32 * st + 16 * p)}")
        a.I("v_mov_b32", v(vWT + 6), 0)
        a.I("v_mov_b32", v(vWT + 7), 0)
        a.I("v_lshlrev_b32", v(T + 4), 3, v(vG))
        a.I("v_add_u32", v(T + 4), HBL, v(T + 4))
        for st, p in ((0, 0), (0, 1), (1, 0)):
            a.I("ds_read_b64", v(B + 4 * st + 2 * p, 2), v(T + 4), mods=f"offset:{64 * st + 32 * p}")
        a.I("v_mov_b32", v(B + 6), 0)
        a.I("v_mov_b32", v(B + 7), 0)
        a.wait(lgkm=0)
        for st in range(2):
            a.I("v_mfma_f32_16x16x32_bf16", v(D, 4), v(vWT + 4 * st, 4), v(B + 4 * st, 4), 0 if st == 0 else v(D, 4))
        for i in range(4):
            self.clamp(D + i)
        self.lane_exec(0x0001000100010001)
        a.I("buffer_store_dwordx4", v(D, 4), v(vDP), s(SRD_WS, 4), s(sPD), mods="offen sc1")
        self.exec_all()
        a.label(l_skip)

    def set_pair_offsets(self):
        a = self.a
        a.I("s_lshl_b32", s(sPQ), s(sP), 11)
        a.I("s_lshl_b32", s(sPO), s(sP), 9)
        a.I("s_add_u32", s(sPO), s(sPO), 4096)
        a.I("s_lshl_b32", s(sPG), s(sP), 10)
        a.I("s_add_u32", s(sPG), s(sPG), 5120)
        a.I("s_mul_i32", s(sPY), s(sP), 2 * YPK)
        a.I("s_add_u32", s(sPD), s(sPY), YPK)

    def build(self):
        a = self.a
        self.prologue()
        self.setup2()
        self.wq_frags()
        self.stamp("wq_landed")
        a.I("v_lshlrev_b32", v(vT + 10), 16, v(vXR))
        a.I("s_mov_b32", s(sFast), 0)
        a.wait(lgkm=0)
        a.label("L_pair")
        self.set_pair_offsets()
        l_skip = self.L("xs")
        self.if_wave(0, 5, l_skip)
        self.x_stage(vT + 10)
        a.label(l_skip)
        a.wait(lgkm=0)
        a.I("s_barrier")
        self.stamp("B2_1", 1)
        self.q_phase()
        self.stamp("q_pub1", 1)
        l_p1 = self.L("p1")
        self.if_pair0(l_p1)
        self.wait_by_wave({0: 8, 1: 8, 2: 8, 3: 8, 4: 7, 5: 7, 6: 7, 7: 8}, self.k_left)
        self.stamp("k_landed")
        self.group_handshake()
        self.stamp("hs_done")
        a.label(l_p1)
        self.q_gather()
        self.stamp("B3_1", 1)
        self.attention()
        self.o_phase()
        self.stamp("y_pub1", 1)
        l_skip = self.L("xs2")
        l_w = self.L("xw")
        self.if_wave(0, 5, l_w)
        r = self.x_gather(sPY, "y", "yg_ok")
        self.x_stage(r)
        a.I("s_branch", l_skip)
        a.label(l_w)
        a.wait(vm=0)
        a.label(l_skip)
        a.wait(lgkm=0)
        a.I("s_barrier")
        self.stamp("B6_1", 1)
        self.gu_phase()
        self.stamp("g_pub1", 1)
        self.g_gather()
        self.stamp("B7_1", 1)
        self.d_phase()
        self.stamp("d_pub1", 1)
        l_fin = self.L("fin")
        a.I("s_cmp_eq_u32", s(sP), 1)
        a.I("s_cbranch_scc1", l_fin)
        l_skip = self.L("xs3")
        self.if_wave(0, 5, l_skip)
        r = self.x_gather(sPD, "d", "dg_ok")
        assert r == vT + 10
        a.label(l_skip)
        a.I("s_mov_b32", s(sP), 1)
        a.I("s_branch", "L_pair")
        a.label(l_fin)
        a.I("s_cmp_lg_u32", s(sH), 0)
        a.I("s_cbranch_scc1", "L_dump")
        self.if_wave(0, 5, "L_dump")
        r = self.x_gather(sPD, "d", "fin_ok")
        a.I("v_cvt_pk_bf16_f32", v(r), v(r), v(r))
        a.I("v_subrev_u32", v(r + 1), XB, v(vXW))
        self.lane_exec(0x1111111111111111)
        a.I("buffer_store_short", v(r), v(r + 1), s(SRD_OUT, 4), 0, mods="offen")
        self.exec_all()
        a.label("L_dump")
        if self.stamps:
            self.stamp("end")
            a.wait(lgkm=0)
            T = vT
            for k in range(self.nstamp):
                a.I("v_writelane_b32", v(T), s(sST + 2 * k), k)
            a.I("v_writelane_b32", v(T), s(sTmo), 14)
            a.I("v_writelane_b32", v(T), s(sFast), 15)
            a.I("s_lshl_b32", s(sT0), s(2), 3)
            a.I("s_add_u32", s(sT0), s(sT0), s(sW))
            a.I("s_lshl_b32", s(sT0), s(sT0), 6)
            a.I("s_add_u32", s(sT0), s(sT0), hex(DBGBASE))
            a.I("v_lshlrev_b32", v(T + 1), 2, v(vL))
            a.I("v_add_u32", v(T + 1), s(sT0), v(T + 1))
            self.lane_exec((1 << 16) - 1)
            a.I("buffer_store_dword", v(T), v(T + 1), s(SRD_WS, 4), 0, mods="offen")
            self.exec_all()
        a.label("L_end")
        a.I("s_endpgm")
        n = a.fix()
        return n

    def text(self):
        hdr = open(os.path.join(os.path.dirname(os.path.abspath(__file__)), "header.txt")).read()
        body = self.a.text()
        return f"""{hdr}; @launch grid=(256,1,1) block=(512,1,1) lds={LDS_BYTES}
.amdgcn_target "amdgcn-amd-amdhsa--gfx950"
.text
.globl {KNAME}
.p2align 8
.type {KNAME},@function
{KNAME}:
{body}.section .rodata,"a"
.p2align 6
.amdhsa_kernel {KNAME}
  .amdhsa_next_free_vgpr 256
  .amdhsa_next_free_sgpr 96
  .amdhsa_accum_offset 256
  .amdhsa_group_segment_fixed_size 0
  .amdhsa_kernarg_size 96
  .amdhsa_user_sgpr_count 2
  .amdhsa_user_sgpr_kernarg_segment_ptr 1
  .amdhsa_system_sgpr_workgroup_id_x 1
.end_amdhsa_kernel
"""


def make(**kw):
    g = Gen(**kw)
    n = g.build()
    return g, g.text()


if __name__ == "__main__":
    out = sys.argv[1] if len(sys.argv) > 1 else "interleave_layers__sliding_block_cached__glu_gated_bilinear__decode.s"
    kw = {}
    for x in sys.argv[2:]:
        k, val = x.split("=")
        kw[k] = int(val)
    g, t = make(**kw)
    open(out, "w").write(t)
    print("instructions:", g.a.count(), "stamps:", g.stamp_names)
```

```python
import sys, os, struct
sys.path.insert(0, os.path.dirname(os.path.abspath(__file__)))
from asmlib import Asm, v, s

KNAME = "interleave_layers__sliding_block_cached__glu_gated_bilinear__decode_kernel"

LA = 0
LB = 30720
LC = 129024
LM = 159744
XB = LM
ONES = LM + 192
QBL = LM + 384
HBL = LM + 768
MXL = LM + 896
FSL = LM + 928
LSL = LM + 960
CLF = LM + 1024
LDS_BYTES = 163840

SLOT = 8192
QB = [0, 2048]
OB = [4096, 4608]
GB = [5120, 6144]
XCCOFF = 7168
YBASE = 0x200000
YPK = 81920
WS_BYTES = 0x400000
DBGBASE = 0x300000

sH, sJ, sW, sP = 4, 5, 6, 7
SRD_WS, SRD_DBG, SRD_K, SRD_V, SRD_W, SRD_X = 8, 12, 16, 20, 24, 28
mN0, mN01, mQ0, mY, mN8, m63 = 32, 34, 36, 38, 40, 42
sOwn, sG8, sFast, sTmo, sM, sPQ, sPO, sPG, sPY, sPD = 44, 45, 46, 47, 48, 49, 50, 51, 52, 53
sT0, sT1, sT2, sT3, sT4, sT5, sT6, sT7 = 54, 55, 56, 57, 58, 59, 60, 61
sJ160 = 62
sQT = 63
HSR = [16, 17, 18, 19, 28, 29, 30, 31]
sKA = 64
pX, pK, pV, pWQ, pWO, pWG, pWU, pWD, pOUT, pDBG, pWS = 64, 66, 68, 70, 72, 76, 78, 80, 82, 84, 86
STAMP_SLOTS = [88, 90, 92, 94, 96, 98, 100, 64, 66, 68, 70, 74, 84, 86]

vL, vG, vN = 1, 2, 3
vXB, vXW, vYG, vYP, vDP, vQG, vSG, vOG, vGG = 4, 5, 6, 7, 8, 9, 10, 11, 12
vXR, vCQ, vCG, vCU = 13, 14, 15, 16
vQPUB, vGPUB, vQA = 17, 18, 19
vT = 20
vQW, vHW, vHB, vOAC, vOPUB, vMXW, vVOF, vORD, vDBG = 68, 69, 70, 71, 72, 73, 74, 77, 79
vPA = 80
vWT = 96
vWQ = 120
vV = 160
vK = 208

SENT = -1
LOG2E = 1.4426950408889634
QSCALE = (192.0 ** -0.5) * LOG2E


def f2u(x):
    return struct.unpack("<I", struct.pack("<f", x))[0]


LOADER = 4


class Gen:
    def __init__(self, nt_kv=True, nt_w=False, stamps=False, d_q=0, d_o=0, d_y=0, d_g=0, d_d=0, force_slow=False,
                 tmo=0x40000, stamp_sel=None, rt=True, rsleep=0):
        self.a = Asm()
        self.ool = []
        self.nt_kv = " nt" if nt_kv else ""
        self.nt_w = " nt" if nt_w else ""
        self.stamps = stamps
        self.stamp_names = []
        self.stamp_sel = stamp_sel
        self.rt = rt
        self.d = dict(q=d_q, o=d_o, y=d_y, g=d_g, d=d_d)
        self.force_slow = force_slow
        self.tmo = tmo
        self.rsleep = rsleep
        self.uid = 0
        self.nretry = 0

    def L(self, base):
        self.uid += 1
        return f"L_{base}_{self.uid}"

    def stamp(self, name, pair=None):
        if not self.stamps or (self.stamp_sel is not None and name not in self.stamp_sel):
            return
        a = self.a
        k = len(self.stamp_names)
        if k >= len(STAMP_SLOTS):
            return
        self.stamp_names.append(name)
        op = "s_memrealtime" if self.rt else "s_memtime"
        if pair is None:
            a.I(op, s(STAMP_SLOTS[k], 2))
        else:
            lab = self.L("st")
            a.I("s_cmp_lg_u32", s(sP), pair)
            a.I("s_cbranch_scc1", lab)
            a.I(op, s(STAMP_SLOTS[k], 2))
            a.label(lab)

    def log_retries(self, hop):
        if not self.stamps:
            return
        a = self.a
        a.I("s_lshl_b32", s(sT7), s(sP), 3)
        a.I("s_add_u32", s(sT7), s(sT7), hop)
        a.I("s_mov_b32", "m0", s(sT7))
        a.I("v_writelane_b32", v(vDBG), s(sTmo), "m0")

    def srd(self, d, lo, off_s, size):
        a = self.a
        if off_s is None:
            a.I("s_mov_b32", s(d), s(lo))
            a.I("s_mov_b32", s(d + 1), s(lo + 1))
            a.I("s_mov_b32", s(d + 2), size)
        else:
            a.I("s_add_u32", s(d), s(lo), s(off_s))
            a.I("s_addc_u32", s(d + 1), s(lo + 1), 0)
            a.I("s_sub_u32", s(d + 2), size, s(off_s))
        a.I("s_mov_b32", s(d + 3), "0x20000")

    def ex(self, mask):
        self.a.I("s_mov_b64", "exec", s(mask, 2) if isinstance(mask, int) and mask >= 32 else mask)

    def exi(self, imm):
        self.a.I("s_mov_b64", "exec", imm)

    def exec_all(self):
        self.a.I("s_mov_b64", "exec", -1)

    def if_wave(self, lo, hi, else_label):
        a = self.a
        if hi - lo == 1:
            a.I("s_cmp_lg_u32", s(sW), lo)
            a.I("s_cbranch_scc1", else_label)
            return
        if lo > 0:
            a.I("s_cmp_lt_u32", s(sW), lo)
            a.I("s_cbranch_scc1", else_label)
        if hi < 8:
            a.I("s_cmp_ge_u32", s(sW), hi)
            a.I("s_cbranch_scc1", else_label)

    def if_pair0(self, else_label):
        self.a.I("s_cmp_lg_u32", s(sP), 0)
        self.a.I("s_cbranch_scc1", else_label)

    def if_pair1(self, else_label):
        self.a.I("s_cmp_eq_u32", s(sP), 0)
        self.a.I("s_cbranch_scc1", else_label)

    def store8(self, op, data, vaddr, soff, mods=""):
        a = self.a
        l_slow, l_done = self.L("slow"), self.L("sd")
        a.I("s_cmp_eq_u32", s(sFast), 0)
        a.I("s_cbranch_scc1", l_slow)
        a.I(op, data, vaddr, s(SRD_WS, 4), soff, mods=("offen " + mods).strip())
        a.label(l_done)
        self.ool.append((l_slow, op, data, vaddr, soff, ("offen " + mods + " sc1").strip(), l_done))

    def retry(self, loop_label):
        a = self.a
        if self.rsleep:
            a.I("s_sleep", self.rsleep)
        a.I("s_add_u32", s(sTmo), s(sTmo), 1)
        a.I("s_cmp_lt_u32", s(sTmo), hex(self.tmo))
        a.I("s_cbranch_scc1", loop_label)
        a.I("s_branch", "L_end")

    def maxtree(self, regs, tmp):
        a = self.a
        regs = list(regs)
        first = True
        while regs:
            if first:
                if len(regs) >= 3:
                    a.I("v_max3_u32", v(tmp), v(regs[0]), v(regs[1]), v(regs[2]))
                    regs = regs[3:]
                else:
                    a.I("v_max_u32", v(tmp), v(regs[0]), v(regs[-1]))
                    regs = []
                first = False
            elif len(regs) >= 2:
                a.I("v_max3_u32", v(tmp), v(tmp), v(regs[0]), v(regs[1]))
                regs = regs[2:]
            else:
                a.I("v_max_u32", v(tmp), v(tmp), v(regs[0]))
                regs = []

    def branch_if_invalid(self, tmp, retry_label):
        a = self.a
        a.I("v_cmp_eq_u32", "vcc", SENT, v(tmp))
        a.I("s_cmp_lg_u64", "vcc", 0)
        a.I("s_cbranch_scc1", retry_label)

    def wait_by_wave(self, counts):
        a = self.a
        done = self.L("wbw")
        vals = sorted(set(counts.values()))
        for val in vals[:-1]:
            nxt, hit = self.L("wbn"), self.L("wbh")
            for w in [w for w, c in counts.items() if c == val]:
                a.I("s_cmp_eq_u32", s(sW), w)
                a.I("s_cbranch_scc1", hit)
            a.I("s_branch", nxt)
            a.label(hit)
            a.wait(vm=val)
            a.I("s_branch", done)
            a.label(nxt)
        a.wait(vm=vals[-1])
        a.label(done)

    def k_addr(self):
        a = self.a
        T = vT + 40
        a.I("v_and_b32", v(T + 2), 3, v(vN))
        a.I("v_bfe_u32", v(T + 3), v(vN), 2, 1)
        a.I("v_mul_u32_u24", v(T), 384, v(T + 2))
        a.I("v_mul_u32_u24", v(T + 3), 3072, v(T + 3))
        a.I("v_add_u32", v(T), v(T), v(T + 3))
        a.I("v_lshrrev_b32", v(T + 3), 3, v(vN))
        a.I("v_lshl_add_u32", v(T + 3), v(T + 3), 2, v(vG))
        a.I("v_and_b32", v(T + 2), 2, v(T + 2))
        a.I("v_xor_b32", v(T + 3), v(T + 3), v(T + 2))
        a.I("v_lshl_add_u32", v(T), v(T + 3), 4, v(T))
        a.I("s_mul_i32", s(sT2), s(sW), 12288)
        a.I("s_add_u32", s(sT2), s(sT2), LB)
        a.I("v_add_u32", v(T), s(sT2), v(T))
        a.I("v_xor_b32", v(T + 1), 64, v(T))
        a.I("v_add_u32", v(T + 1), 1536, v(T + 1))

    def k_frags(self, part):
        T = vT + 40
        for tt in range(2):
            t = 2 * part + tt
            for l in range(3):
                self.a.I("ds_read_b128", v(vK + 12 * t + 4 * l, 4), v(T + tt), mods=f"offset:{6144 * part + 128 * l}")

    def delay(self, key):
        n = self.d[key]
        if n:
            self.a.I("s_sleep", n)

    def dpp(self, op, dst, src0, src1, ctrl, row=0xf, bank=0xf):
        mods = f"{ctrl} row_mask:{hex(row)} bank_mask:{hex(bank)}"
        if src1 is None:
            self.a.I(op + "_dpp", v(dst), v(src0), mods=mods)
        else:
            self.a.I(op + "_dpp", v(dst), v(src0), v(src1), mods=mods)

    BF8 = ("quad_perm:[1,0,3,2]", "quad_perm:[2,3,0,1]", "row_half_mirror")

    def bfly8(self, op, regs):
        for ctrl in self.BF8:
            for r in regs:
                self.dpp(op, r, r, r, ctrl)

    def rr4_a(self, a0):
        a = self.a
        a.I("v_permlane32_swap_b32", v(a0), v(a0 + 1))
        a.I("v_permlane32_swap_b32", v(a0 + 2), v(a0 + 3))

    def rr4_b(self, a0):
        a = self.a
        a.I("v_add_f32", v(a0), v(a0), v(a0 + 1))
        a.I("v_add_f32", v(a0 + 2), v(a0 + 2), v(a0 + 3))

    def rr4_c(self, a0):
        self.a.I("v_permlane16_swap_b32", v(a0), v(a0 + 2))

    def rr4_d(self, a0, out):
        self.a.I("v_add_f32", v(out), v(a0), v(a0 + 2))

    def sigma_row(self, dst, tmp):
        a = self.a
        a.I("v_lshlrev_b32", v(dst), 1, v(vG))
        a.I("v_lshrrev_b32", v(tmp), 1, v(vG))
        a.I("v_and_b32", v(dst), 2, v(dst))
        a.I("v_or_b32", v(dst), v(dst), v(tmp))

    def tr_base(self, dst, pitch, swz=False):
        a = self.a
        a.I("v_lshrrev_b32", v(dst + 1), 2, v(vN))
        a.I("v_lshl_add_u32", v(dst + 1), v(vG), 2, v(dst + 1))
        a.I("v_mul_u32_u24", v(dst), pitch, v(dst + 1))
        if swz:
            a.I("v_and_b32", v(dst + 1), 6, v(dst + 1))
            a.I("v_bfe_u32", v(dst + 2), v(vN), 1, 1)
            a.I("v_xor_b32", v(dst + 1), v(dst + 1), v(dst + 2))
            a.I("v_lshl_add_u32", v(dst), v(dst + 1), 4, v(dst))
            a.I("v_and_b32", v(dst + 2), 1, v(vN))
            a.I("v_lshl_add_u32", v(dst), v(dst + 2), 3, v(dst))
        else:
            a.I("v_and_b32", v(dst + 2), 3, v(vN))
            a.I("v_lshl_add_u32", v(dst), v(dst + 2), 3, v(dst))

    def prologue(self):
        a = self.a
        T = vT
        a.I("s_cmp_ge_u32", s(2), 256)
        a.I("s_cbranch_scc1", "L_end")
        self.stamp("start")
        a.I("s_load_dwordx16", s(sKA, 16), s(0, 2), 0)
        a.I("s_load_dwordx8", s(sKA + 16, 8), s(0, 2), 64)
        a.I("v_readfirstlane_b32", s(sW), v(0))
        a.I("s_and_b32", s(sH), s(2), 7)
        a.I("s_lshl_b32", s(sH), s(sH), 2)
        a.I("s_bfe_u32", s(3), s(2), "0x20003")
        a.I("s_or_b32", s(sH), s(sH), s(3))
        a.I("s_lshr_b32", s(sJ), s(2), 5)
        a.I("s_lshr_b32", s(sW), s(sW), 6)
        a.I("v_and_b32", v(vL), 63, v(0))
        a.I("v_lshrrev_b32", v(vG), 4, v(vL))
        a.I("v_and_b32", v(vN), 15, v(vL))
        a.I("s_lshl_b32", s(sG8), s(sH), 16)
        a.I("s_lshl_b32", s(3), s(sJ), 13)
        a.I("s_add_u32", s(sOwn), s(sG8), s(3))
        a.I("s_mul_i32", s(sJ160), s(sJ), 160)
        a.I("s_mul_i32", s(sT0), s(sW), 12288)
        a.I("s_mov_b32", s(sTmo), 0)
        a.I("s_mov_b32", s(sFast), 0)
        a.I("s_mov_b32", s(sP), 0)
        for k in range(3):
            P, r, pos, ch = T + 10, T + 11, T + 12, T + 13
            a.I("v_add_u32", v(P), 64 * k, v(vL))
            a.I("v_mul_u32_u24", v(r), 2731, v(P))
            a.I("v_lshrrev_b32", v(r), 16, v(r))
            a.I("v_mul_u32_u24", v(pos), 24, v(r))
            a.I("v_sub_u32", v(pos), v(P), v(pos))
            a.I("v_and_b32", v(ch), 6, v(r))
            a.I("v_xor_b32", v(ch), v(ch), v(pos))
            a.I("v_lshlrev_b32", v(ch), 4, v(ch))
            a.I("v_mul_u32_u24", v(T + 14), 384, v(r))
            a.I("v_add_u32", v(vVOF + k), v(T + 14), v(ch))
            a.I("v_mul_u32_u24", v(T + 14), 12288, v(r))
            a.I("v_add_u32", v(T + 4 + k), v(T + 14), v(ch))
        a.I("s_min_u32", s(sT1), s(sW), 4)
        a.I("v_bfe_u32", v(T + 10), v(vL), 2, 2)
        a.I("v_lshlrev_b32", v(T + 11), 1, v(T + 10))
        a.I("v_lshrrev_b32", v(T + 12), 1, v(T + 10))
        a.I("v_and_b32", v(T + 11), 2, v(T + 11))
        a.I("v_or_b32", v(T + 11), v(T + 11), v(T + 12))
        a.I("v_lshl_add_u32", v(T + 11), v(vG), 2, v(T + 11))
        a.I("s_lshl_b32", s(sT2), s(sT1), 4)
        a.I("v_add_u32", v(T + 11), s(sT2), v(T + 11))
        a.I("v_lshlrev_b32", v(T + 30), 1, v(T + 11))
        a.I("v_add_u32", v(vXW), XB, v(T + 30))
        a.wait(lgkm=0)
        self.srd(SRD_WS, pWS, None, hex(WS_BYTES))
        self.srd(SRD_X, pX, sJ160, 1280)
        l7 = self.L("p7")
        self.if_wave(7, 8, l7)
        self.clears()
        a.label(l7)
        a.I("s_barrier")
        a.I("s_mul_i32", s(sT2), s(sH), 3145728)
        a.I("s_mul_i32", s(sT3), s(sJ), 98304)
        a.I("s_add_u32", s(sT2), s(sT2), s(sT3))
        a.I("s_add_u32", s(sT2), s(sT2), 2359296)
        self.srd(SRD_K, pK, sT2, 100663296)
        self.srd(SRD_V, pV, sT2, 100663296)
        self.srd(SRD_DBG, pDBG, None, 256)
        a.I("buffer_load_ushort", v(vXR), v(T + 30), s(SRD_X, 4), 0, mods="offen")

    def kv_dma(self, srd, groups, slot):
        a = self.a
        lab = self.L("kv")
        a.I("s_mov_b32", s(sT2), LB + 6144 * slot)
        a.I("s_mov_b32", s(sT3), 3072 * groups[0])
        a.I("s_mov_b32", s(sT4), 3072 * groups[1])
        a.I("s_mov_b32", s(sT5), 0)
        a.label(lab)
        for pos in range(2):
            for k in range(3):
                a.I("s_add_u32", "m0", s(sT2), 3072 * pos + 1024 * k)
                a.I("buffer_load_dwordx4", v(vVOF + k), s(srd, 4), s(sT3 + pos), mods="offen" + self.nt_kv + " lds")
        a.I("s_add_u32", s(sT2), s(sT2), 12288)
        a.I("s_add_u32", s(sT3), s(sT3), 12288)
        a.I("s_add_u32", s(sT4), s(sT4), 12288)
        a.I("s_add_u32", s(sT5), s(sT5), 1)
        a.I("s_cmp_lt_u32", s(sT5), 8)
        a.I("s_cbranch_scc1", lab)

    def wq_dma(self):
        a = self.a
        T = vT
        a.I("s_mul_i32", s(sT2), s(sJ), 983040)
        a.I("s_mul_i32", s(sT3), s(sH), 384)
        a.I("s_add_u32", s(sT2), s(sT2), s(sT3))
        self.srd(SRD_W, pWQ, sT2, 7864320)
        lab = self.L("wq")
        a.I("s_mov_b32", s(sT2), LA)
        a.I("s_mov_b32", s(sT3), 0)
        a.label(lab)
        for k in range(3):
            a.I("s_add_u32", "m0", s(sT2), 1024 * k)
            a.I("buffer_load_dwordx4", v(T + 4 + k), s(SRD_W, 4), s(sT3), mods="offen" + self.nt_kv + " lds")
        a.I("s_add_u32", s(sT2), s(sT2), 3072)
        a.I("s_add_u32", s(sT3), s(sT3), 98304)
        a.I("s_cmp_lt_u32", s(sT2), LA + 30720)
        a.I("s_cbranch_scc1", lab)

    def clears(self):
        a = self.a
        T = vT
        for i in range(4):
            a.I("v_mov_b32", v(T + 16 + i), SENT)
        a.I("v_lshlrev_b32", v(T + 8), 4, v(vL))
        a.I("v_add_u32", v(T + 8), s(sOwn), v(T + 8))
        for k in range(7):
            a.I("s_mov_b32", s(sT2), 1024 * k)
            a.I("buffer_store_dwordx4", v(T + 16, 4), v(T + 8), s(SRD_WS, 4), s(sT2), mods="offen sc1")
        a.I("s_mul_i32", s(sT2), s(sJ), 10240)
        a.I("s_lshl_b32", s(sT3), s(sH), 6)
        a.I("s_add_u32", s(sT2), s(sT2), s(sT3))
        a.I("s_add_u32", s(sT2), s(sT2), hex(YBASE))
        for half in range(2):
            a.I("v_lshrrev_b32", v(T + 10), 2, v(vL))
            if half:
                a.I("v_add_u32", v(T + 10), 16, v(T + 10))
                a.I("v_min_u32", v(T + 10), 19, v(T + 10))
            a.I("v_mul_u32_u24", v(T + 11), 52, v(T + 10))
            a.I("v_lshrrev_b32", v(T + 11), 8, v(T + 11))
            a.I("v_mul_u32_u24", v(T + 12), 5, v(T + 11))
            a.I("v_sub_u32", v(T + 12), v(T + 10), v(T + 12))
            a.I("v_mul_u32_u24", v(T + 11), YPK, v(T + 11))
            a.I("v_lshl_add_u32", v(T + 11), v(T + 12), 11, v(T + 11))
            a.I("v_and_b32", v(T + 12), 3, v(vL))
            a.I("v_lshl_add_u32", v(T + 11), v(T + 12), 4, v(T + 11))
            a.I("v_add_u32", v(T + 11), s(sT2), v(T + 11))
            a.I("buffer_store_dwordx4", v(T + 16, 4), v(T + 11), s(SRD_WS, 4), 0, mods="offen sc1")
        a.I("s_getreg_b32", s(sT3), "hwreg(HW_REG_XCC_ID, 0, 4)")
        a.I("s_add_u32", s(sT2), s(sOwn), XCCOFF)
        a.I("v_mov_b32", v(T + 10), s(sT3))
        a.I("v_mov_b32", v(T + 11), s(sT2))
        a.I("buffer_store_dword", v(T + 10), v(T + 11), s(SRD_WS, 4), 0, mods="offen sc1")
        a.I("v_mov_b32", v(T + 40), 0)
        a.I("v_lshlrev_b32", v(T + 41), 2, v(vL))
        a.I("s_mov_b32", s(sT0), -1)
        a.I("s_mov_b32", s(sT1), "0xff")
        a.I("s_mov_b64", "exec", s(sT0, 2))
        a.I("buffer_load_dword", v(T + 40), v(T + 41), s(SRD_X, 4), 0, mods="offen")
        self.exec_all()

    def clears_finish(self):
        a = self.a
        T = vT
        a.I("s_and_b32", s(sT2), s(2), 7)
        a.I("s_lshl_b32", s(sT2), s(sT2), 5)
        a.I("v_mov_b32", v(T + 10), s(sT2))
        a.I("v_mov_b32", v(T + 11), 1)
        a.wait(vm=0)
        self.exi(1)
        a.I("buffer_atomic_add", v(T + 11), v(T + 10), s(SRD_DBG, 4), 0, mods="offen")
        self.exec_all()

    def loader(self, fn):
        lab = self.L("ld")
        self.if_wave(LOADER, LOADER + 1, lab)
        fn()
        self.a.label(lab)

    def layer1_load(self):
        a = self.a
        B = vT
        self.loader(lambda: (a.I("s_setprio", 3), self.wq_dma(), self.kv_dma(SRD_K, (0, 2), 0)))
        self.stamp("ka_issued")
        la = self.L("l1a")
        self.if_wave(0, 4, la)
        a.I("v_lshlrev_b32", v(B + 12), 3, v(vG))
        for st in range(3):
            for p in range(2):
                if st == 2 and p == 1:
                    continue
                a.I("buffer_load_dwordx2", v(B + 4 * st + 2 * p, 2), v(B + 12), s(SRD_X, 4), 0, mods=f"offen offset:{64 * st + 32 * p}")
        a.label(la)
        self.setup2()
        T = vT + 44
        self.tr_base(T, 384, swz=True)
        l7 = self.L("l17")
        self.if_wave(7, 8, l7)
        self.clears_finish()
        a.label(l7)
        self.loader(lambda: a.wait(vm=48))
        a.wait(lgkm=0)
        a.I("s_barrier")
        self.stamp("Ba")
        self.loader(lambda: (self.kv_dma(SRD_K, (1, 3), 1), a.wait(vm=48)))
        l7 = self.L("l17s")
        self.if_wave(7, 8, l7)
        self.stats_publish(vT + 40, sPQ, 1536)
        a.label(l7)
        la = self.L("l1q")
        self.if_wave(0, 4, la)
        for k in range(3):
            a.I("s_mul_i32", s(sT0), s(sW), 3)
            a.I("s_add_u32", s(sT0), s(sT0), k)
            a.I("s_and_b32", s(sT1), s(sT0), 3)
            a.I("s_lshl_b32", s(sT1), s(sT1), 5)
            a.I("s_lshr_b32", s(sT2), s(sT0), 2)
            a.I("s_lshl_b32", s(sT2), s(sT2), 7)
            a.I("v_xor_b32", v(T + 3), s(sT1), v(T))
            a.I("v_add_u32", v(T + 3), s(sT2), v(T + 3))
            for st in range(3):
                for p in range(2):
                    if st == 2 and p == 1:
                        continue
                    a.I("ds_read_b64_tr_b16", v(vWQ + 12 * k + 4 * st + 2 * p, 2), v(T + 3), mods=f"offset:{LA + 384 * (32 * st + 16 * p)}")
            a.I("v_mov_b32", v(vWQ + 12 * k + 10), 0)
            a.I("v_mov_b32", v(vWQ + 12 * k + 11), 0)
        a.wait(vm=0)
        self.mask(sT0, 0x0002000200020002)
        a.I("s_mov_b64", "exec", s(sT0, 2))
        for i in range(10):
            a.I("v_mov_b32", v(B + i), "0x3f803f80")
        self.exec_all()
        a.I("v_mov_b32", v(B + 10), 0)
        a.I("v_mov_b32", v(B + 11), 0)
        self.pub_mask()
        a.wait(lgkm=0)
        self.q_mfma()
        self.stamp("q_pub0")
        a.label(la)
        self.k_addr()
        a.I("s_barrier")
        self.stamp("Bb1")
        a.I("v_lshlrev_b32", v(vXR), 16, v(vXR))
        self.k_frags(0)
        a.wait(lgkm=0)
        a.I("s_barrier")
        self.loader(lambda: (self.kv_dma(SRD_V, (0, 1), 0), a.wait(vm=48)))
        self.handshake_issue()
        a.I("s_barrier")
        self.stamp("Bc1")
        self.k_frags(1)
        a.wait(lgkm=0)
        self.handshake()
        self.stamp("hs_done")
        l_s = self.L("qg0s")
        self.if_wave(0, 3, l_s)
        self.qg_issue(0)
        a.label(l_s)
        a.I("s_barrier")
        self.loader(lambda: (self.kv_dma(SRD_V, (2, 3), 1), a.wait(vm=48)))
        a.I("s_barrier")
        self.stamp("Be")
        self.loader(lambda: (self.wo_dma(), a.I("s_setprio", 0)))
        T = self.v_frags(0, vT + 28)
        self.v_frag_reads(T, 0)

    def mask(self, m, val):
        self.a.I("s_mov_b32", s(m), hex(val & 0xffffffff))
        self.a.I("s_mov_b32", s(m + 1), hex(val >> 32))

    def setup2(self):
        a = self.a
        T = vT + 24
        self.mask(mN0, 0x0001000100010001)
        self.mask(mN01, 0x0003000300030003)
        self.mask(mQ0, 0x1111111111111111)
        self.mask(mY, 0x0011001100110011)
        self.mask(mN8, 0x00ff00ff00ff00ff)
        self.mask(m63, 1 << 63)
        for i in range(16):
            a.I("v_mov_b32", v(vPA + i), 0)
        if self.stamps:
            a.I("v_mov_b32", v(vDBG), 0)
        a.I("v_lshlrev_b32", v(T), 3, v(vG))
        a.I("v_add_u32", v(vXB), XB, v(T))
        a.I("v_add_u32", v(vHB), HBL, v(T))
        a.I("v_add_u32", v(T + 1), ONES, v(T))
        a.I("v_cmp_eq_u32", "vcc", 1, v(vN))
        a.I("v_cndmask_b32", v(vXB), v(vXB), v(T + 1), "vcc")
        a.I("s_mul_i32", s(sT0), s(sW), 192)
        a.I("s_add_u32", s(sT0), s(sT0), s(sOwn))
        a.I("v_lshlrev_b32", v(T), 4, v(vG))
        a.I("v_mul_u32_u24", v(T + 1), 768, v(vN))
        a.I("v_add3_u32", v(vQPUB), v(T), v(T + 1), s(sT0))
        a.I("s_lshl_b32", s(sT0), s(sW), 6)
        a.I("s_add_u32", s(sT0), s(sT0), s(sOwn))
        a.I("v_mul_u32_u24", v(T + 1), 384, v(vN))
        a.I("v_add3_u32", v(vGPUB), v(T), v(T + 1), s(sT0))
        a.I("v_and_b32", v(T + 1), 1, v(vN))
        a.I("v_lshl_add_u32", v(T + 1), v(T + 1), 6, v(T))
        a.I("v_add_u32", v(vQA), QBL, v(T + 1))
        a.I("s_mul_i32", s(sT0), s(sW), 12288)
        a.I("s_add_u32", s(sT0), s(sT0), LB)
        a.I("v_lshlrev_b32", v(T), 2, v(vL))
        a.I("v_add_u32", v(vOAC), s(sT0), v(T))
        a.I("s_lshl_b32", s(sT0), s(sW), 8)
        a.I("s_add_u32", s(sT0), s(sT0), LB)
        a.I("v_add_u32", v(vORD), s(sT0), v(T))
        a.I("v_add_u32", v(vORD + 1), 12288 * 5, v(vORD))
        a.I("s_lshl_b32", s(sT0), s(sW), 2)
        a.I("s_add_u32", s(sT0), s(sT0), MXL)
        a.I("v_mov_b32", v(vMXW), s(sT0))
        a.I("s_min_u32", s(sT1), s(sW), 4)
        a.I("s_mul_i32", s(sT0), s(sJ), 10240)
        a.I("s_lshl_b32", s(sT2), s(sT1), 11)
        a.I("s_add_u32", s(sT0), s(sT0), s(sT2))
        a.I("s_add_u32", s(sT0), s(sT0), hex(YBASE))
        a.I("v_lshlrev_b32", v(T), 6, v(vN))
        a.I("v_lshl_add_u32", v(T), v(vG), 4, v(T))
        a.I("v_add_u32", v(vYG), s(sT0), v(T))
        a.I("s_lshl_b32", s(sT2), s(sH), 6)
        a.I("s_add_u32", s(sT0), s(sT0), s(sT2))
        a.I("v_lshlrev_b32", v(T), 4, v(vG))
        a.I("v_add_u32", v(vDP), s(sT0), v(T))
        a.I("v_lshrrev_b32", v(T + 1), 2, v(vN))
        a.I("v_lshl_add_u32", v(vYP), v(T + 1), 3, v(vDP))
        a.I("s_lshl_b32", s(sT0), s(sW), 8)
        a.I("s_add_u32", s(sT0), s(sT0), s(sG8))
        a.I("v_lshlrev_b32", v(T), 13, v(vG))
        a.I("v_lshl_add_u32", v(T), v(vN), 4, v(T))
        a.I("v_add_u32", v(vQG), s(sT0), v(T))
        a.I("v_and_b32", v(T), 7, v(vL))
        a.I("v_lshlrev_b32", v(T), 13, v(T))
        a.I("v_add_u32", v(vSG), s(sG8), v(T))
        a.I("v_lshl_add_u32", v(vOG), v(vG), 4, v(vSG))
        a.I("s_sub_u32", s(sT0), s(sW), 6)
        a.I("s_lshl_b32", s(sT0), s(sT0), 3)
        a.I("v_and_b32", v(T), 7, v(vL))
        a.I("v_add_u32", v(T), s(sT0), v(T))
        a.I("v_min_u32", v(T), 11, v(T))
        a.I("v_lshrrev_b32", v(T + 1), 3, v(vL))
        a.I("v_lshlrev_b32", v(T + 1), 13, v(T + 1))
        a.I("v_lshl_add_u32", v(T + 1), v(T), 4, v(T + 1))
        a.I("v_add_u32", v(vGG), s(sG8), v(T + 1))
        self.sigma_row(T + 2, T + 3)
        a.I("v_lshl_add_u32", v(T), v(T), 2, v(T + 2))
        a.I("v_lshlrev_b32", v(T), 1, v(T))
        a.I("v_add_u32", v(vHW), HBL, v(T))
        a.I("v_lshl_add_u32", v(T), v(vN), 2, v(T + 2))
        a.I("s_lshl_b32", s(sT0), s(sW), 7)
        a.I("s_add_u32", s(sT0), s(sT0), QBL)
        a.I("v_lshl_add_u32", v(vQW), v(T), 1, s(sT0))
        a.I("v_lshrrev_b32", v(T), 5, v(vL))
        a.I("v_lshlrev_b32", v(T), 6, v(T))
        a.I("v_bfe_u32", v(T + 1), v(vL), 2, 2)
        a.I("v_lshl_add_u32", v(T), v(T + 1), 4, v(T))
        a.I("v_bfe_u32", v(T + 1), v(vL), 4, 1)
        a.I("v_lshl_add_u32", v(T), v(T + 1), 3, v(T))
        a.I("s_lshl_b32", s(sT0), s(sW), 7)
        a.I("s_add_u32", s(sT0), s(sT0), s(sOwn))
        a.I("v_add_u32", v(vOPUB), s(sT0), v(T))
        lab = self.L("c0")
        self.if_wave(0, 1, lab)
        a.I("v_lshlrev_b32", v(T), 2, v(vL))
        a.I("v_add_u32", v(T), ONES, v(T))
        a.I("v_mov_b32", v(T + 1), "0x3f803f80")
        a.I("s_mov_b32", s(sT0), -1)
        a.I("s_mov_b32", s(sT1), "0xffff")
        a.I("s_mov_b64", "exec", s(sT0, 2))
        a.I("ds_write_b32", v(T), v(T + 1))
        self.exec_all()
        a.label(lab)

    def x_write(self, xin):
        a = self.a
        t = vT + 12
        a.I("v_cvt_pk_bf16_f32", v(t), v(xin), v(xin))
        a.I("ds_write_b16", v(vXW), v(t))
        a.I("v_lshlrev_b32", v(vXR), 16, v(t))

    def read_xfrags(self, B):
        for st in range(3):
            for p in range(2):
                if st == 2 and p == 1:
                    continue
                self.a.I("ds_read_b64", v(B + 4 * st + 2 * p, 2), v(vXB), mods=f"offset:{64 * st + 32 * p}")

    def stats_read(self, R):
        a = self.a
        a.I("v_mov_b32", v(R), 0)
        a.I("v_lshlrev_b32", v(R + 1), 2, v(vL))
        a.I("v_add_u32", v(R + 1), XB, v(R + 1))
        a.I("s_mov_b32", s(sT0), -1)
        a.I("s_mov_b32", s(sT1), "0xff")
        a.I("s_mov_b64", "exec", s(sT0, 2))
        a.I("ds_read_b32", v(R), v(R + 1))
        self.exec_all()

    def stats_publish(self, R, off_s, imm):
        a = self.a
        lo, hi = R + 2, R + 3
        a.I("v_lshlrev_b32", v(lo), 16, v(R))
        a.I("v_and_b32", v(hi), "0xffff0000", v(R))
        a.I("v_add_f32", v(R), v(lo), v(hi))
        a.I("v_mul_f32", v(R + 1), v(lo), v(lo))
        a.I("v_fmac_f32", v(R + 1), v(hi), v(hi))
        for ctrl, row in (("quad_perm:[1,0,3,2]", 0xf), ("quad_perm:[2,3,0,1]", 0xf), ("row_half_mirror", 0xf), ("row_mirror", 0xf),
                          ("row_bcast:15", 0xa), ("row_bcast:31", 0xc)):
            self.dpp("v_add_f32", R, R, R, ctrl, row=row)
            self.dpp("v_add_f32", R + 1, R + 1, R + 1, ctrl, row=row)
        a.I("v_mov_b32", v(lo), s(sOwn))
        self.ex(m63)
        self.store8("buffer_store_dwordx2", v(R, 2), v(lo), s(off_s), mods=f"offset:{imm}")
        self.exec_all()

    def q_mfma(self):
        a = self.a
        B, D = vT, vT + 16
        for k in range(3):
            for st in range(3):
                a.I("v_mfma_f32_16x16x32_bf16", v(D + 4 * k, 4), v(vWQ + 12 * k + 4 * st, 4), v(B + 4 * st, 4), 0 if st == 0 else v(D + 4 * k, 4))
        self.ex(sT4)
        for k in range(3):
            self.store8("buffer_store_dwordx4", v(D + 4 * k, 4), v(vQPUB), s(sPQ), mods=f"offset:{64 * k}" if k else "")
        self.exec_all()

    def q_phase1(self):
        a = self.a
        B, R = vT, vT + 40
        l7, le = self.L("q7"), self.L("qe")
        self.if_wave(0, 4, l7)
        self.read_xfrags(B)
        a.wait(lgkm=0)
        self.q_mfma()
        a.I("s_branch", le)
        a.label(l7)
        self.if_wave(7, 8, le)
        self.stats_read(R)
        a.wait(lgkm=0)
        self.stats_publish(R, sPQ, 1536)
        a.label(le)

    def pub_mask(self):
        a = self.a
        a.I("s_cmp_eq_u32", s(sP), 0)
        a.I("s_cselect_b64", s(sT4, 2), s(mN01, 2), s(mN0, 2))

    def v_dma(self, part):
        a = self.a
        a.I("s_mul_i32", s(sT2), s(sW), 12288)
        a.I("s_add_u32", s(sT2), s(sT2), LB + 6144 * part)
        for grp in range(2):
            a.I("s_mov_b32", s(sT3), 6144 * part + 3072 * grp)
            for k in range(3):
                a.I("s_add_u32", "m0", s(sT2), 3072 * grp + 1024 * k)
                a.I("buffer_load_dwordx4", v(vVOF + k), s(SRD_V, 4), s(sT3), mods="offen" + self.nt_kv + " lds")

    HS = [sT0, sT1, sT2, sT3, sT4, sT5, sT6, sT7]

    def handshake_issue(self):
        a = self.a
        lab = self.L("hsi")
        self.if_wave(0, 1, lab)
        for k in range(8):
            a.I("s_load_dword", s(HSR[k]), s(SRD_DBG, 2), 32 * k)
        a.label(lab)

    def handshake(self):
        a = self.a
        l_ok, l_loop, l_skip = self.L("hs_ok"), self.L("hs_loop"), self.L("hs_skip")
        T = vT + 24
        self.if_wave(0, 1, l_skip)
        for k in range(1, 8):
            a.I("s_add_u32", s(HSR[0]), s(HSR[0]), s(HSR[k]))
        a.I("s_cmp_ge_u32", s(HSR[0]), 256)
        a.I("s_cbranch_scc1", l_ok)
        a.I("v_and_b32", v(T), 7, v(vL))
        a.I("v_lshlrev_b32", v(T), 5, v(T))
        a.label(l_loop)
        a.I("s_sleep", 32)
        a.I("buffer_load_dword", v(T + 1), v(T), s(SRD_DBG, 4), 0, mods="offen sc1")
        a.wait(vm=0)
        self.bfly8("v_add_u32", [T + 1])
        a.I("v_readfirstlane_b32", s(sT2), v(T + 1))
        a.I("s_cmp_ge_u32", s(sT2), 256)
        a.I("s_cbranch_scc1", l_ok)
        self.retry(l_loop)
        a.label(l_ok)
        a.label(l_skip)
        a.I("s_barrier")

    def xcc_check(self):
        a = self.a
        lab = self.L("xcc")
        self.if_wave(0, 1, lab)
        tmp = [sT0, sT1, sT2, sT3, sT4, sT5, sT6, sT7]
        a.I("s_add_u32", s(3), s(sG8), XCCOFF)
        for k in range(8):
            a.I("s_add_u32", s(sM), s(3), 8192 * k)
            a.I("s_load_dword", s(tmp[k]), s(SRD_WS, 2), s(sM))
        a.wait(lgkm=0)
        a.I("s_mov_b32", s(3), 0)
        for k in range(1, 8):
            a.I("s_xor_b32", s(tmp[k]), s(tmp[k]), s(tmp[0]))
            a.I("s_or_b32", s(3), s(3), s(tmp[k]))
        a.I("s_cmp_eq_u32", s(3), 0)
        a.I("s_cselect_b32", s(3), 0 if self.force_slow else 1, 0)
        a.I("v_mov_b32", v(vT + 40), FSL)
        a.I("v_mov_b32", v(vT + 41), s(3))
        a.I("ds_write_b32", v(vT + 40), v(vT + 41))
        a.label(lab)

    def qg_issue(self, pair):
        a = self.a
        A, Bq, S, CA, CB = vT, vT + 4, vT + 8, vT + 12, vT + 16
        a.I("buffer_load_dwordx4", v(A, 4), v(vQG), s(SRD_WS, 4), s(sPQ), mods="offen sc1")
        a.I("s_add_u32", s(sT0), s(sPQ), 32768)
        a.I("buffer_load_dwordx4", v(Bq, 4), v(vQG), s(SRD_WS, 4), s(sT0), mods="offen sc1")
        a.I("buffer_load_dwordx2", v(S, 2), v(vSG), s(SRD_WS, 4), s(sPQ), mods="offen offset:1536 sc1")
        if pair == 0:
            a.I("buffer_load_dwordx4", v(CA, 4), v(vQG), s(SRD_WS, 4), s(sPQ), mods="offen offset:768 sc1")
            a.I("buffer_load_dwordx4", v(CB, 4), v(vQG), s(SRD_WS, 4), s(sT0), mods="offen offset:768 sc1")

    def stats_chain(self, S, mean, rstd, t):
        a = self.a
        self.bfly8("v_add_f32", [S, S + 1])
        a.I("v_mul_f32", v(mean), hex(f2u(1.0 / 640)), v(S))
        a.I("v_mul_f32", v(t), hex(f2u(1.0 / 640)), v(S + 1))
        a.I("v_fma_f32", v(t), f"-v{mean}", v(mean), v(t))
        a.I("v_max_f32", v(t), 0, v(t))
        a.I("v_add_f32", v(t), hex(f2u(1e-5)), v(t))
        a.I("v_rsq_f32", v(rstd), v(t))

    def qg_finish(self, pair, l_retry):
        a = self.a
        A, Bq, S, CA, CB = vT, vT + 4, vT + 8, vT + 12, vT + 16
        chk, q, mean, rstd, t = vT + 20, vT + 21, vT + 22, vT + 23, vT + 24
        regs = list(range(A, A + 10)) + (list(range(CA, CA + 8)) if pair == 0 else [])
        self.maxtree(regs, chk)
        for i in range(4):
            a.I("v_add_f32", v(A + i), v(A + i), v(Bq + i))
        self.branch_if_invalid(chk, l_retry)
        if pair == 0:
            for i in range(4):
                a.I("v_add_f32", v(CA + i), v(CA + i), v(CB + i))
            self.rr4_a(CA); self.rr4_b(CA); self.rr4_c(CA); self.rr4_d(CA, vCQ)
        self.rr4_a(A)
        self.dpp("v_add_f32", S, S, S, self.BF8[0]); self.dpp("v_add_f32", S + 1, S + 1, S + 1, self.BF8[0])
        self.rr4_b(A)
        self.dpp("v_add_f32", S, S, S, self.BF8[1]); self.dpp("v_add_f32", S + 1, S + 1, S + 1, self.BF8[1])
        self.rr4_c(A)
        self.dpp("v_add_f32", S, S, S, self.BF8[2]); self.dpp("v_add_f32", S + 1, S + 1, S + 1, self.BF8[2])
        self.rr4_d(A, q)
        a.I("v_mul_f32", v(mean), hex(f2u(1.0 / 640)), v(S))
        a.I("v_mul_f32", v(t), hex(f2u(1.0 / 640)), v(S + 1))
        a.I("v_fma_f32", v(t), f"-v{mean}", v(mean), v(t))
        a.I("v_fma_f32", v(q), f"-v{mean}", v(vCQ), v(q))
        a.I("v_max_f32", v(t), 0, v(t))
        a.I("v_add_f32", v(t), hex(f2u(1e-5)), v(t))
        a.I("v_rsq_f32", v(rstd), v(t))
        a.I("v_mul_f32", v(q), hex(f2u(QSCALE)), v(q))
        a.I("v_mul_f32", v(q), v(q), v(rstd))
        a.I("v_cvt_pk_bf16_f32", v(q), v(q), v(q))
        a.I("ds_write_b16", v(vQW), v(q))

    def q_gather0_finish(self, l_join):
        a = self.a
        l_w, l_chk, l_r = [self.L(x) for x in ("qg0w", "qg0c", "qg0r")]
        self.if_wave(0, 3, l_join)
        a.I("s_branch", l_w)
        a.label(l_r)
        self.qg_issue(0)
        self.retry(l_w)
        a.label(l_w)
        a.wait(vm=0)
        self.qg_finish(0, l_r)
        self.stamp("qg_ok0")
        a.I("s_branch", l_join)

    def q_gather1(self, l_join):
        a = self.a
        l_w, l_r = self.L("qg1w"), self.L("qg1r")
        self.if_wave(0, 3, l_join)
        self.delay("q")
        self.qg_issue(1)
        a.label(l_w)
        a.wait(vm=0)
        self.qg_finish(1, l_r)
        self.stamp("qg_ok1")
        self.tail_retry.append((l_r, lambda: self.qg_issue(1), l_w))

    def rowblock_dma(self, idx_s, ncol, rowbytes, mul, lds_base, clampP=None, T=vT + 40):
        a = self.a
        a.I("s_lshl_b32", s(sT4), s(idx_s), 6)
        a.I("v_add_u32", v(T), s(sT4), v(vL))
        if clampP is not None:
            a.I("v_min_u32", v(T), clampP, v(T))
        a.I("v_mul_u32_u24", v(T + 1), mul, v(T))
        a.I("v_lshrrev_b32", v(T + 1), 16, v(T + 1))
        a.I("v_mul_u32_u24", v(T + 2), ncol, v(T + 1))
        a.I("v_sub_u32", v(T + 2), v(T), v(T + 2))
        a.I("v_mul_u32_u24", v(T + 1), rowbytes, v(T + 1))
        a.I("v_lshl_add_u32", v(T + 3), v(T + 2), 4, v(T + 1))
        a.I("s_lshl_b32", s(sT4), s(idx_s), 10)
        a.I("s_add_u32", "m0", s(sT4), lds_base)
        a.I("buffer_load_dwordx4", v(T + 3), s(SRD_W, 4), 0, mods="offen" + self.nt_w + " lds")

    def wo_dma(self):
        a = self.a
        a.I("s_mul_i32", s(sT2), s(sH), 245760)
        a.I("s_add_u32", s(sT2), s(sT2), s(sJ160))
        self.srd(SRD_W, pWO, sT2, 7864320)
        T = vT + 32
        for k in range(5):
            a.I("v_add_u32", v(T + 5), 64 * k, v(vL))
            a.I("v_mul_u32_u24", v(T + 6), 6554, v(T + 5))
            a.I("v_lshrrev_b32", v(T + 6), 16, v(T + 6))
            a.I("v_mul_u32_u24", v(T + 7), 10, v(T + 6))
            a.I("v_sub_u32", v(T + 7), v(T + 5), v(T + 7))
            a.I("v_mul_u32_u24", v(T + 6), 1280, v(T + 6))
            a.I("v_lshl_add_u32", v(T + k), v(T + 7), 4, v(T + 6))
        lab = self.L("wo")
        a.I("s_mov_b32", s(sT2), LC)
        a.I("s_mov_b32", s(sT3), 0)
        a.label(lab)
        for k in range(5):
            a.I("s_add_u32", "m0", s(sT2), 1024 * k)
            a.I("buffer_load_dwordx4", v(T + k), s(SRD_W, 4), s(sT3), mods="offen" + self.nt_w + " lds")
        a.I("s_add_u32", s(sT2), s(sT2), 5120)
        a.I("s_add_u32", s(sT3), s(sT3), 32 * 1280)
        a.I("s_cmp_lt_u32", s(sT2), LC + 30720)
        a.I("s_cbranch_scc1", lab)

    def gud_dma(self):
        a = self.a
        l6, l7, le = self.L("g6"), self.L("g7"), self.L("ge")
        a.I("s_mul_i32", s(sT2), s(sJ), 245760)
        a.I("s_mul_i32", s(sT3), s(sH), 96)
        a.I("s_add_u32", s(sT2), s(sT2), s(sT3))
        a.I("s_cmp_eq_u32", s(sW), 6)
        a.I("s_cbranch_scc1", l6)
        a.I("s_cmp_eq_u32", s(sW), 7)
        a.I("s_cbranch_scc1", l7)
        self.srd(SRD_W, pWG, sT2, 1966080)
        for k in range(8):
            a.I("s_mov_b32", s(sT0), k)
            self.rowblock_dma(sT0, 6, 3072, 10923, LA, clampP=479)
        a.I("s_branch", le)
        a.label(l6)
        self.srd(SRD_W, pWU, sT2, 1966080)
        for k in range(8):
            a.I("s_mov_b32", s(sT0), k)
            self.rowblock_dma(sT0, 6, 3072, 10923, LA + 8192, clampP=479)
        a.I("s_branch", le)
        a.label(l7)
        a.I("s_mul_i32", s(sT2), s(sH), 61440)
        a.I("s_add_u32", s(sT2), s(sT2), s(sJ160))
        self.srd(SRD_W, pWD, sT2, 1966080)
        for k in range(8):
            a.I("s_mov_b32", s(sT0), k)
            self.rowblock_dma(sT0, 10, 1280, 6554, LA + 16384, clampP=479)
        a.label(le)

    def v_frags(self, p, T=vT + 12):
        a = self.a
        self.tr_base(T, 384, swz=True)
        a.I("s_mul_i32", s(sT0), s(sW), 12288)
        a.I("s_add_u32", s(sT0), s(sT0), LB + 6144 * p)
        a.I("v_add_u32", v(T), s(sT0), v(T))
        for t in range(1, 4):
            a.I("v_xor_b32", v(T + t), 32 * t, v(T))
        return T

    def v_frag_reads(self, T, p):
        for t in range(4):
            for hi in range(3):
                tile = 4 * hi + t
                self.a.I("ds_read_b64_tr_b16", v(vV + 4 * tile + 2 * p, 2), v(T + t), mods=f"offset:{128 * hi}")

    def attention(self):
        a = self.a
        QA, S4, S, M, PK, O, Ls, F, X = vT, vT + 12, vT + 28, vT + 29, vT + 30, vT + 32, vT + 44, vT + 45, vT
        for l in range(3):
            a.I("ds_read_b128", v(QA + 4 * l, 4), v(vQA), mods=f"offset:{128 * l}")
        a.I("v_mov_b32", v(S), "0xff800000")
        a.wait(lgkm=0)
        for t in range(4):
            for l in range(3):
                a.I("v_mfma_f32_16x16x32_bf16", v(S4 + 4 * t, 4), v(QA + 4 * l, 4), v(vK + 12 * t + 4 * l, 4), 0 if l == 0 else v(S4 + 4 * t, 4))
            if t >= 2:
                tt = t - 2
                a.I("v_add_f32_dpp", v(S), v(S4 + 4 * tt + 1), v(S4 + 4 * tt), mods=f"row_ror:8 row_mask:{hex(1 << tt)} bank_mask:0x3")
        for tt in (2, 3):
            a.I("v_add_f32_dpp", v(S), v(S4 + 4 * tt + 1), v(S4 + 4 * tt), mods=f"row_ror:8 row_mask:{hex(1 << tt)} bank_mask:0x3")
        self.stamp("qk_1", 1)
        first = True
        for ctrl, row in (("quad_perm:[1,0,3,2]", 0xf), ("quad_perm:[2,3,0,1]", 0xf), ("row_half_mirror", 0xf), ("row_ror:8", 0xf), ("row_bcast:15", 0xa), ("row_bcast:31", 0xc)):
            if first:
                self.dpp("v_max_f32", M, S, S, ctrl, row=row)
                first = False
            else:
                self.dpp("v_max_f32", M, M, M, ctrl, row=row)
        a.I("v_readlane_b32", s(sM), v(M), 63)
        a.I("v_subrev_f32", v(S), s(sM), v(S))
        a.I("v_mov_b32", v(F), s(sM))
        a.I("v_exp_f32", v(S), v(S))
        self.exi(1)
        a.I("ds_write_b32", v(vMXW), v(F))
        self.exec_all()
        self.dpp("v_mov_b32", PK, S, None, "row_shl:1")
        a.I("v_cvt_pk_bf16_f32", v(PK), v(S), v(PK))
        a.I("v_mov_b32", v(Ls), v(S))
        lab = self.L("v1")
        self.if_pair0(lab)
        self.xcc_check()
        T = self.v_frags(1)
        self.stamp("softmax0")
        self.loader(lambda: a.wait(vm=30))
        a.I("s_barrier")
        self.stamp("v_landed")
        self.v_frag_reads(T, 1)
        a.wait(lgkm=0)
        a.label(lab)
        for g2 in range(4):
            for i in range(4):
                a.I("v_mov_b32_dpp", v(vPA + 4 * g2 + i), v(PK), mods=f"row_newbcast:{2 * i} row_mask:0xf bank_mask:{hex(1 << g2)}")
            for i in range(3):
                a.I("v_mfma_f32_16x16x32_bf16", v(O + 4 * i, 4), v(vPA + 4 * g2, 4), v(vV + 4 * (4 * i + g2), 4), 0 if g2 == 0 else v(O + 4 * i, 4))
        self.stamp("pv_iss1", 1)
        a.wait(lgkm=0)
        a.I("s_barrier")
        self.stamp("B4_1", 1)
        a.I("v_mov_b32", v(vT + 46), MXL)
        a.I("ds_read_b128", v(X, 4), v(vT + 46))
        a.I("ds_read_b128", v(X + 4, 4), v(vT + 46), mods="offset:16")
        lab = self.L("ff")
        self.if_pair0(lab)
        a.I("ds_read_b32", v(vT + 47), v(vT + 46), mods=f"offset:{FSL - MXL}")
        a.wait(lgkm=0)
        a.I("v_readfirstlane_b32", s(sFast), v(vT + 47))
        a.label(lab)
        for ctrl, row in (("quad_perm:[1,0,3,2]", 0xf), ("quad_perm:[2,3,0,1]", 0xf), ("row_half_mirror", 0xf), ("row_ror:8", 0xf), ("row_bcast:15", 0xa), ("row_bcast:31", 0xc)):
            self.dpp("v_add_f32", Ls, Ls, Ls, ctrl, row=row)
        a.wait(lgkm=0)
        a.I("v_max3_f32", v(X), v(X), v(X + 1), v(X + 2))
        a.I("v_max3_f32", v(X + 3), v(X + 3), v(X + 4), v(X + 5))
        a.I("v_max3_f32", v(X), v(X), v(X + 6), v(X + 7))
        a.I("v_max_f32", v(X), v(X), v(X + 3))
        a.I("v_sub_f32", v(F), v(F), v(X))
        a.I("v_exp_f32", v(F), v(F))
        for i in range(3):
            a.I("v_mul_f32", v(O + 4 * i), v(O + 4 * i), v(F))
        a.I("v_mul_f32", v(Ls), v(Ls), v(F))
        self.stamp("pre_add1", 1)
        for i in range(3):
            a.I("ds_write_b32", v(vOAC), v(O + 4 * i), mods=f"offset:{256 * i}")
        self.ex(m63)
        a.I("ds_write_b32", v(vMXW), v(Ls), mods=f"offset:{LSL - MXL}")
        self.exec_all()
        a.wait(lgkm=0)
        a.I("s_barrier")
        self.stamp("B5_1", 1)
        R = vT
        l_skip, l_ml = self.L("fc"), self.L("ml")
        self.if_wave(0, 3, l_ml)
        for w2 in range(8):
            a.I("ds_read_b32", v(R + w2), v(vORD + (w2 >= 5)), mods=f"offset:{12288 * (w2 if w2 < 5 else w2 - 5)}")
        a.wait(lgkm=0 if self.stamps else 4)
        a.I("v_add_f32", v(R), v(R), v(R + 1))
        a.I("v_add_f32", v(R + 2), v(R + 2), v(R + 3))
        a.wait(lgkm=0)
        a.I("v_add_f32", v(R + 4), v(R + 4), v(R + 5))
        a.I("v_add_f32", v(R + 6), v(R + 6), v(R + 7))
        a.I("v_add_f32", v(R), v(R), v(R + 2))
        a.I("v_add_f32", v(R + 4), v(R + 4), v(R + 6))
        a.I("v_add_f32", v(R), v(R), v(R + 4))
        self.dpp("v_mov_b32", R + 1, R, None, "row_shl:1")
        a.I("v_cvt_pk_bf16_f32", v(R + 2), v(R), v(R + 1))
        self.dpp("v_mov_b32", R + 3, R + 2, None, "row_shl:2")
        a.I("v_min_u32", v(R + 2), "0xfffffffe", v(R + 2))
        a.I("v_min_u32", v(R + 3), "0xfffffffe", v(R + 3))
        self.ex(mQ0)
        self.store8("buffer_store_dwordx2", v(R + 2, 2), v(vOPUB), s(sPO))
        self.exec_all()
        a.I("s_branch", l_skip)
        a.label(l_ml)
        self.if_wave(3, 4, l_skip)
        a.I("v_mov_b32", v(R + 12), LSL)
        a.I("ds_read_b128", v(R + 4, 4), v(R + 12))
        a.I("ds_read_b128", v(R + 8, 4), v(R + 12), mods="offset:16")
        a.I("v_mov_b32", v(R), v(X))
        a.I("v_mov_b32", v(R + 13), s(sOwn))
        a.wait(lgkm=0)
        for i in range(0, 8, 2):
            a.I("v_add_f32", v(R + 4 + i), v(R + 4 + i), v(R + 5 + i))
        a.I("v_add_f32", v(R + 4), v(R + 4), v(R + 6))
        a.I("v_add_f32", v(R + 8), v(R + 8), v(R + 10))
        a.I("v_add_f32", v(R + 1), v(R + 4), v(R + 8))
        self.exi(1)
        self.store8("buffer_store_dwordx2", v(R, 2), v(R + 13), s(sPO), mods="offset:384")
        self.exec_all()
        a.label(l_skip)
        self.stamp("o_pub0", 0)
        self.stamp("o_pub1", 1)

    def wo_frags(self):
        a = self.a
        T = vT + 44
        self.tr_base(T, 160)
        a.I("s_lshl_b32", s(sT0), s(sW), 5)
        a.I("s_add_u32", s(sT0), s(sT0), LC)
        a.I("v_add_u32", v(T), s(sT0), v(T))
        for st in range(6):
            for p in range(2):
                a.I("ds_read_b64_tr_b16", v(vWT + 4 * st + 2 * p, 2), v(T), mods=f"offset:{160 * (32 * st + 16 * p)}")

    def og_issue(self):
        a = self.a
        B = vT
        self.ex(mN8)
        for st in range(6):
            a.I("buffer_load_dwordx4", v(B + 4 * st, 4), v(vOG), s(SRD_WS, 4), s(sPO), mods=f"offen offset:{64 * st} sc1")
        a.I("buffer_load_dwordx2", v(B + 24, 2), v(vSG), s(SRD_WS, 4), s(sPO), mods="offen offset:384 sc1")
        self.exec_all()

    def o_phase(self):
        a = self.a
        B, ML, D = vT, vT + 24, vT + 28
        chk, Mx, W, U = vT + 32, vT + 33, vT + 34, vT + 36
        l_p1, l_skip, l_skip2, l_w, l_r = [self.L(x) for x in ("o_p1", "o_s", "o_s2", "o_w", "o_r")]
        self.if_pair0(l_p1)
        a.wait(vm=0)
        a.I("s_barrier")
        a.label(l_p1)
        self.if_wave(0, 5, l_skip)
        self.wo_frags()
        self.delay("o")
        self.og_issue()
        a.label(l_skip)
        l_p1b = self.L("o_p1b")
        self.if_pair0(l_p1b)
        a.I("s_barrier")
        l_x = self.L("o_x")
        self.if_wave(5, 8, l_x)
        self.gud_dma()
        a.label(l_x)
        a.label(l_p1b)
        self.if_wave(0, 5, l_skip2)
        a.label(l_w)
        a.wait(vm=0, lgkm=0)
        for st in range(6):
            a.I("v_mfma_f32_16x16x32_bf16", v(D, 4), v(vWT + 4 * st, 4), v(B + 4 * st, 4), 0 if st == 0 else v(D, 4))
        self.ex(mN8)
        self.maxtree(list(range(B, B + 26)), chk)
        self.dpp("v_max_f32", Mx, ML, ML, self.BF8[0])
        a.I("v_cmp_eq_u32", "vcc", SENT, v(chk))
        self.dpp("v_max_f32", Mx, Mx, Mx, self.BF8[1])
        a.I("s_cmp_lg_u64", "vcc", 0)
        a.I("s_cbranch_scc1", l_r)
        self.dpp("v_max_f32", Mx, Mx, Mx, self.BF8[2])
        a.I("v_sub_f32", v(W), v(ML), v(Mx))
        a.I("v_exp_f32", v(W), v(W))
        a.I("v_mul_f32", v(Mx), v(W), v(ML + 1))
        self.bfly8("v_add_f32", [Mx])
        a.I("v_rcp_f32", v(Mx), v(Mx))
        a.I("v_mul_f32", v(W), v(W), v(Mx))
        for i in range(4):
            a.I("v_mul_f32", v(D + i), v(D + i), v(W))
        a.I("v_add_f32_dpp", v(U), v(D), v(D), mods="row_shl:4 row_mask:0xf bank_mask:0x1")
        a.I("v_add_f32_dpp", v(U + 1), v(D + 1), v(D + 1), mods="row_shl:4 row_mask:0xf bank_mask:0x1")
        a.I("v_add_f32_dpp", v(U), v(D + 2), v(D + 2), mods="row_shr:4 row_mask:0xf bank_mask:0x2")
        a.I("v_add_f32_dpp", v(U + 1), v(D + 3), v(D + 3), mods="row_shr:4 row_mask:0xf bank_mask:0x2")
        for ctrl in ("quad_perm:[1,0,3,2]", "quad_perm:[2,3,0,1]"):
            self.dpp("v_add_f32", U, U, U, ctrl)
            self.dpp("v_add_f32", U + 1, U + 1, U + 1, ctrl)
        self.ex(mY)
        a.I("buffer_store_dwordx2", v(U, 2), v(vYP), s(SRD_WS, 4), s(sPY), mods="offen sc1")
        self.exec_all()
        self.stamp("y_pub0", 0)
        self.stamp("y_pub1", 1)
        self.tail_retry.append((l_r, lambda: (self.exec_all(), self.og_issue()), l_w))
        a.label(l_skip2)
        self.log_retries(1)

    def xg_issue(self, soff):
        a = self.a
        A = vT
        a.I("buffer_load_dwordx4", v(A, 4), v(vYG), s(SRD_WS, 4), s(soff), mods="offen sc1")
        a.I("buffer_load_dwordx4", v(A + 4, 4), v(vYG), s(SRD_WS, 4), s(soff), mods="offen offset:1024 sc1")

    def x_gather(self, soff, key, tag):
        a = self.a
        A = vT
        l_w, l_r = self.L("x_w"), self.L("x_r")
        self.delay(key)
        self.xg_issue(soff)
        a.label(l_w)
        a.wait(vm=0)
        chk, r01, r23, r = vT + 11, vT + 8, vT + 9, vT + 10
        self.maxtree(list(range(A, A + 8)), chk)
        for i in range(4):
            a.I("v_add_f32", v(A + i), v(A + i), v(A + 4 + i))
        self.branch_if_invalid(chk, l_r)
        a.I("v_add_f32_dpp", v(r01), v(A), v(A), mods="row_ror:8 row_mask:0xf bank_mask:0x3")
        a.I("v_add_f32_dpp", v(r23), v(A + 2), v(A + 2), mods="row_ror:8 row_mask:0xf bank_mask:0x3")
        a.I("v_add_f32_dpp", v(r01), v(A + 1), v(A + 1), mods="row_ror:8 row_mask:0xf bank_mask:0xc")
        a.I("v_add_f32_dpp", v(r23), v(A + 3), v(A + 3), mods="row_ror:8 row_mask:0xf bank_mask:0xc")
        a.I("v_add_f32_dpp", v(r), v(r01), v(r01), mods="row_shl:4 row_mask:0xf bank_mask:0x5")
        a.I("v_add_f32_dpp", v(r), v(r23), v(r23), mods="row_shr:4 row_mask:0xf bank_mask:0xa")
        self.dpp("v_add_f32", r, r, r, "quad_perm:[1,0,3,2]")
        self.dpp("v_add_f32", r, r, r, "quad_perm:[2,3,0,1]")
        a.I("v_add_f32", v(r), v(r), v(vXR))
        self.stamp(tag + "0", 0)
        self.stamp(tag + "1", 1)
        self.tail_retry.append((l_r, lambda: self.xg_issue(soff), l_w))
        return r

    def gu_tr_addr(self):
        a = self.a
        T = vT + 44
        self.tr_base(T, 96)
        a.I("s_cmp_ge_u32", s(sW), 3)
        a.I("s_cselect_b32", s(sT0), 8192 - 96, 0)
        a.I("s_lshl_b32", s(sT1), s(sW), 5)
        a.I("s_add_u32", s(sT0), s(sT0), s(sT1))
        a.I("s_add_u32", s(sT0), s(sT0), LA)
        a.I("v_add_u32", v(T), s(sT0), v(T))
        a.I("v_mov_b32", v(vWT + 10), 0)
        a.I("v_mov_b32", v(vWT + 11), 0)
        return T

    def gu_phase(self):
        a = self.a
        B, D, T, R = vT, vT + 16, vT + 44, vT + 24
        l_skip, l7, l_st = self.L("gu_s"), self.L("gu_7"), self.L("gu_st")
        self.if_wave(0, 6, l7)
        for st in range(3):
            for p in range(2):
                if st == 2 and p == 1:
                    continue
                a.I("ds_read_b64_tr_b16", v(vWT + 4 * st + 2 * p, 2), v(T), mods=f"offset:{96 * (32 * st + 16 * p)}")
        self.read_xfrags(B)
        a.wait(lgkm=0)
        for st in range(3):
            a.I("v_mfma_f32_16x16x32_bf16", v(D, 4), v(vWT + 4 * st, 4), v(B + 4 * st, 4), 0 if st == 0 else v(D, 4))
        self.ex(sT4)
        a.nop(7)
        self.store8("buffer_store_dwordx4", v(D, 4), v(vGPUB), s(sPG))
        self.exec_all()
        a.I("s_branch", l_skip)
        a.label(l7)
        self.if_wave(7, 8, l_skip)
        self.stats_read(R)
        a.wait(lgkm=0)
        self.stats_publish(R, sPG, 768)
        a.label(l_skip)

    def gg_issue(self, pair):
        a = self.a
        A = vT
        offs = (0, 192) if pair else (0, 192, 384, 576)
        for k, off in enumerate(offs):
            a.I("buffer_load_dwordx4", v(A + 4 * k, 4), v(vGG), s(SRD_WS, 4), s(sPG), mods=f"offen offset:{off} sc1")
        a.I("buffer_load_dwordx2", v(A + 16, 2), v(vSG), s(SRD_WS, 4), s(sPG), mods="offen offset:768 sc1")

    def gg_finish(self, pair, l_r):
        a = self.a
        A, S = vT, vT + 16
        chk, G, U, mean, rstd, t = vT + 18, vT + 19, vT + 20, vT + 21, vT + 22, vT + 23
        n = 8 if pair else 16
        self.maxtree(list(range(A, A + n)) + [S, S + 1], chk)
        self.branch_if_invalid(chk, l_r)
        if pair == 0:
            for base, out in ((A + 8, vCG), (A + 12, vCU)):
                self.rr4_a(base); self.rr4_b(base); self.rr4_c(base); self.rr4_d(base, out)
                self.dpp("v_add_f32", out, out, out, "row_ror:8")
        self.rr4_a(A); self.rr4_a(A + 4)
        self.dpp("v_add_f32", S, S, S, self.BF8[0]); self.dpp("v_add_f32", S + 1, S + 1, S + 1, self.BF8[0])
        self.rr4_b(A); self.rr4_b(A + 4)
        self.dpp("v_add_f32", S, S, S, self.BF8[1]); self.dpp("v_add_f32", S + 1, S + 1, S + 1, self.BF8[1])
        self.rr4_c(A); self.rr4_c(A + 4)
        self.dpp("v_add_f32", S, S, S, self.BF8[2]); self.dpp("v_add_f32", S + 1, S + 1, S + 1, self.BF8[2])
        self.rr4_d(A, G); self.rr4_d(A + 4, U)
        a.I("v_mul_f32", v(mean), hex(f2u(1.0 / 640)), v(S))
        a.I("v_mul_f32", v(t), hex(f2u(1.0 / 640)), v(S + 1))
        self.dpp("v_add_f32", G, G, G, "row_ror:8")
        self.dpp("v_add_f32", U, U, U, "row_ror:8")
        a.I("v_fma_f32", v(t), f"-v{mean}", v(mean), v(t))
        a.I("v_max_f32", v(t), 0, v(t))
        a.I("v_add_f32", v(t), hex(f2u(1e-5)), v(t))
        a.I("v_fma_f32", v(G), f"-v{mean}", v(vCG), v(G))
        a.I("v_fma_f32", v(U), f"-v{mean}", v(vCU), v(U))
        a.I("v_rcp_f32", v(rstd), v(t))
        a.I("v_mul_f32", v(G), v(G), v(U))
        a.I("v_mul_f32", v(G), v(G), v(rstd))
        a.I("v_cvt_pk_bf16_f32", v(G), v(G), v(G))
        a.I("ds_write_b16", v(vHW), v(G))

    def wd_prefetch(self):
        a = self.a
        T = vT + 44
        self.tr_base(T, 160)
        a.I("s_lshl_b32", s(sT0), s(sW), 5)
        a.I("s_add_u32", s(sT0), s(sT0), LA + 16384)
        a.I("v_add_u32", v(T), s(sT0), v(T))
        for st, p in ((0, 0), (0, 1), (1, 0)):
            a.I("ds_read_b64_tr_b16", v(vWT + 4 * st + 2 * p, 2), v(T), mods=f"offset:{160 * (32 * st + 16 * p)}")
        a.I("v_mov_b32", v(vWT + 6), 0)
        a.I("v_mov_b32", v(vWT + 7), 0)
        a.I("v_mov_b32", v(vT + 6), 0)
        a.I("v_mov_b32", v(vT + 7), 0)

    def g_gather(self):
        a = self.a
        l_skip, l_pf, l_p1, l_j = self.L("gg_s"), self.L("gg_pf"), self.L("gg_p1"), self.L("gg_j")
        self.if_wave(6, 8, l_pf)
        self.delay("g")
        for pair in (0, 1):
            l_w, l_r = self.L("gg_w"), self.L("gg_r")
            if pair == 0:
                self.if_pair0(l_p1)
            else:
                a.label(l_p1)
            self.gg_issue(pair)
            a.label(l_w)
            a.wait(vm=0)
            self.gg_finish(pair, l_r)
            self.stamp(f"gg_ok{pair}")
            self.tail_retry.append((l_r, (lambda p=pair: self.gg_issue(p)), l_w))
            a.I("s_branch", l_j)
        a.label(l_pf)
        self.if_wave(0, 5, l_j)
        self.wd_prefetch()
        a.label(l_j)
        self.log_retries(3)
        a.wait(lgkm=0)
        a.I("s_barrier")

    def d_phase(self):
        a = self.a
        B, D = vT, vT + 16
        l_skip = self.L("d_s")
        self.if_wave(0, 5, l_skip)
        for st, p in ((0, 0), (0, 1), (1, 0)):
            a.I("ds_read_b64", v(B + 4 * st + 2 * p, 2), v(vHB), mods=f"offset:{64 * st + 32 * p}")
        a.wait(lgkm=0)
        for st in range(2):
            a.I("v_mfma_f32_16x16x32_bf16", v(D, 4), v(vWT + 4 * st, 4), v(B + 4 * st, 4), 0 if st == 0 else v(D, 4))
        self.ex(mN0)
        a.nop(7)
        a.I("buffer_store_dwordx4", v(D, 4), v(vDP), s(SRD_WS, 4), s(sPD), mods="offen sc1")
        self.exec_all()
        a.label(l_skip)

    def set_pair_offsets(self):
        a = self.a
        a.I("s_lshl_b32", s(sPQ), s(sP), 11)
        a.I("s_lshl_b32", s(sPO), s(sP), 9)
        a.I("s_add_u32", s(sPO), s(sPO), 4096)
        a.I("s_lshl_b32", s(sPG), s(sP), 10)
        a.I("s_add_u32", s(sPG), s(sPG), 5120)
        a.I("s_mul_i32", s(sPY), s(sP), 2 * YPK)
        a.I("s_add_u32", s(sPD), s(sPY), YPK)

    def build(self):
        a = self.a
        self.tail_retry = []
        if self.stamps and (self.stamp_sel is None or "start" in self.stamp_sel):
            pass
        self.prologue()
        self.set_pair_offsets()
        l_qj = self.L("qgJ")
        self.layer1_load()
        self.q_gather0_finish(l_qj)
        a.label("L_pair")
        l_skip = self.L("xs")
        self.if_wave(0, 5, l_skip)
        self.x_write(vT + 10)
        a.label(l_skip)
        a.I("v_mov_b32", v(vT + 10), 0)
        a.I("v_mov_b32", v(vT + 11), 0)
        self.pub_mask()
        a.wait(lgkm=0)
        a.I("s_barrier")
        self.stamp("B2_1")
        self.q_phase1()
        self.stamp("q_pub1")
        self.q_gather1(l_qj)
        a.label(l_qj)
        self.log_retries(0)
        a.wait(lgkm=0)
        a.I("s_barrier")
        self.stamp("B3_0", 0)
        self.stamp("B3_1", 1)
        self.attention()
        self.o_phase()
        l_skip, l_w = self.L("xs2"), self.L("xw")
        lg = self.L("gua")
        self.if_wave(0, 6, lg)
        self.gu_tr_addr()
        a.label(lg)
        self.if_wave(0, 5, l_w)
        r = self.x_gather(sPY, "y", "yg_ok")
        self.x_write(r)
        a.I("s_branch", l_skip)
        a.label(l_w)
        a.wait(vm=0)
        a.label(l_skip)
        self.log_retries(2)
        a.I("v_mov_b32", v(vT + 10), 0)
        a.I("v_mov_b32", v(vT + 11), 0)
        self.pub_mask()
        a.wait(lgkm=0)
        a.I("s_barrier")
        self.stamp("B6_1", 1)
        self.gu_phase()
        self.stamp("g_pub1", 1)
        self.g_gather()
        self.stamp("B7_1", 1)
        self.d_phase()
        self.stamp("d_pub0", 0)
        self.stamp("d_pub1", 1)
        l_fin = self.L("fin")
        a.I("s_cmp_eq_u32", s(sP), 1)
        a.I("s_cbranch_scc1", l_fin)
        l_skip = self.L("xs3")
        self.if_wave(0, 5, l_skip)
        r = self.x_gather(sPD, "d", "dg_ok")
        assert r == vT + 10
        a.label(l_skip)
        self.log_retries(4)
        a.I("s_mov_b32", s(sP), 1)
        self.set_pair_offsets()
        a.I("s_branch", "L_pair")
        a.label(l_fin)
        a.I("s_cmp_lg_u32", s(sH), 0)
        a.I("s_cbranch_scc1", "L_dump")
        self.if_wave(0, 5, "L_dump")
        self.srd(SRD_X, pOUT, sJ160, 1280)
        a.I("v_subrev_u32", v(vT + 13), XB, v(vXW))
        r = self.x_gather(sPD, "d", "fin_ok")
        a.I("v_cvt_pk_bf16_f32", v(r), v(r), v(r))
        self.ex(mQ0)
        a.I("buffer_store_short", v(r), v(vT + 13), s(SRD_X, 4), 0, mods="offen")
        self.exec_all()
        self.log_retries(4)
        a.label("L_dump")
        if self.stamps:
            self.stamp("end")
            a.wait(lgkm=0)
            T = vT
            a.I("v_mov_b32", v(T), 0)
            for k in range(len(self.stamp_names)):
                a.I("v_writelane_b32", v(T), s(STAMP_SLOTS[k]), k)
            a.I("v_writelane_b32", v(T), s(sTmo), 14)
            a.I("v_writelane_b32", v(T), s(sFast), 15)
            a.I("s_lshl_b32", s(sT0), s(2), 3)
            a.I("s_add_u32", s(sT0), s(sT0), s(sW))
            a.I("s_lshl_b32", s(sT0), s(sT0), 7)
            a.I("s_add_u32", s(sT0), s(sT0), hex(DBGBASE))
            a.I("v_lshlrev_b32", v(T + 1), 2, v(vL))
            a.I("v_add_u32", v(T + 1), s(sT0), v(T + 1))
            a.I("s_mov_b64", "exec", "0xffff")
            a.I("buffer_store_dword", v(T), v(T + 1), s(SRD_WS, 4), 0, mods="offen")
            a.I("buffer_store_dword", v(vDBG), v(T + 1), s(SRD_WS, 4), 0, mods="offen offset:64")
            self.exec_all()
        a.label("L_end")
        a.I("s_endpgm")
        for (lab, fn, back) in self.tail_retry:
            a.label(lab)
            fn()
            self.retry(back)
        for (lab, op, data, vaddr, soff, mods, back) in self.ool:
            a.label(lab)
            a.I(op, data, vaddr, s(SRD_WS, 4), soff, mods=mods)
            a.I("s_branch", back)
        return a.fix()

    def text(self):
        hdr = open(os.path.join(os.path.dirname(os.path.abspath(__file__)), "header.txt")).read()
        body = self.a.text()
        return f"""{hdr}; @launch grid=(256,1,1) block=(512,1,1) lds={LDS_BYTES}
.amdgcn_target "amdgcn-amd-amdhsa--gfx950"
.text
.globl {KNAME}
.p2align 8
.type {KNAME},@function
{KNAME}:
{body}.section .rodata,"a"
.p2align 6
.amdhsa_kernel {KNAME}
  .amdhsa_next_free_vgpr 256
  .amdhsa_next_free_sgpr 102
  .amdhsa_accum_offset 256
  .amdhsa_group_segment_fixed_size 0
  .amdhsa_kernarg_size 96
  .amdhsa_user_sgpr_count 2
  .amdhsa_user_sgpr_kernarg_segment_ptr 1
  .amdhsa_system_sgpr_workgroup_id_x 1
.end_amdhsa_kernel
"""


def make(**kw):
    g = Gen(**kw)
    g.build()
    return g, g.text()


if __name__ == "__main__":
    out = sys.argv[1] if len(sys.argv) > 1 else "interleave_layers__sliding_block_cached__glu_gated_bilinear__decode.s"
    kw = {}
    for x in sys.argv[2:]:
        k, val = x.split("=")
        kw[k] = int(val)
    g, t = make(**kw)
    open(out, "w").write(t)
    print("instructions:", g.a.count(), "stamps:", g.stamp_names)
```

```python
import sys, os, struct
sys.path.insert(0, os.path.dirname(os.path.abspath(__file__)))
from asmlib import Asm, v, s

KNAME = "interleave_layers__sliding_block_cached__glu_gated_bilinear__decode_kernel"

LA = 0
LB = 30720
LC = 129024
LM = 159744
XB = LM
ONES = LM + 192
QBL = LM + 384
HBL = LM + 768
MXL = LM + 896
FSL = LM + 928
LSL = LM + 960
OST = LB + 1024
MLS = OST + 3200
LDS_BYTES = 163840

SLOT = 8192
QB = [0, 3328]
OB = [4224, 4736]
GB = [5248, 6272]
CLR0, CLRN = 3328, 4
EPOCH = 0x3F0000
YBASE = 0x200000
YPK = 81920
WS_BYTES = 0x400000
DBGBASE = 0x300000

sH, sJ, sW, sP = 4, 5, 6, 7
SRD_WS, SRD_DBG, SRD_K, SRD_V, SRD_W, SRD_X = 8, 12, 16, 20, 24, 28
mN0, mN01, mQ0, mY, mN8, m63 = 32, 34, 36, 38, 40, 42
sOwn, sG8, sFast, sTmo, sM, sPQ, sPO, sPG, sPY, sPD = 44, 45, 46, 47, 48, 49, 50, 51, 52, 53
sT0, sT1, sT2, sT3, sT4, sT5, sT6, sT7 = 54, 55, 56, 57, 58, 59, 60, 61
sJ160 = 62
sTag = 63
HSR = [16, 17, 18, 19, 28, 29, 30, 31]
sKA = 64
pX, pK, pV, pWQ, pWO, pWG, pWU, pWD, pOUT, pDBG, pWS = 64, 66, 68, 70, 72, 76, 78, 80, 82, 84, 86
STAMP_SLOTS = [88, 90, 92, 94, 96, 98, 100, 64, 66, 68, 70, 74, 84, 86]

vL, vG, vN = 1, 2, 3
vXB, vXW, vYG, vYP, vDP, vQG, vSG, vOG, vGG = 4, 5, 6, 7, 8, 9, 10, 11, 12
vXR, vCQ, vCG, vCU = 13, 14, 15, 16
vQPUB, vGPUB, vQA = 17, 18, 19
vT = 20
vQW, vHW, vHB, vOAC, vOPUB, vMXW, vVOF, vORD, vDBG = 68, 69, 70, 71, 72, 73, 74, 77, 79
vPA = 80
vWT = 96
vWQ = 120
vOML, vOSW, vOSR, vMLR = 156, 157, 158, 159
vXF = 96
vV = 160
vK = 208

SENT = -1
LOG2E = 1.4426950408889634
QSCALE = (192.0 ** -0.5) * LOG2E


def f2u(x):
    return struct.unpack("<I", struct.pack("<f", x))[0]


LOADER = 4


class Gen:
    def __init__(self, nt_kv=True, nt_w=False, stamps=False, d_q=0, d_o=0, d_y=0, d_g=0, d_d=0, force_slow=False,
                 tmo=0x40000, stamp_sel=None, rt=True, rsleep=0, clr_late=1, d_q0=0, warm=1):
        self.a = Asm()
        self.ool = []
        self.nt_kv = " nt" if nt_kv else ""
        self.nt_w = " nt" if nt_w else ""
        self.stamps = stamps
        self.stamp_names = []
        self.stamp_sel = stamp_sel
        self.rt = rt
        self.d = dict(q=d_q, o=d_o, y=d_y, g=d_g, d=d_d, q0=d_q0)
        self.force_slow = force_slow
        self.tmo = tmo
        self.rsleep = rsleep
        self.clr_late = clr_late
        self.warm = warm
        self.uid = 0
        self.nretry = 0

    def L(self, base):
        self.uid += 1
        return f"L_{base}_{self.uid}"

    def stamp(self, name, pair=None):
        if not self.stamps or (self.stamp_sel is not None and name not in self.stamp_sel):
            return
        a = self.a
        k = len(self.stamp_names)
        if k >= len(STAMP_SLOTS):
            return
        self.stamp_names.append(name)
        op = "s_memrealtime" if self.rt else "s_memtime"
        if pair is None:
            a.I(op, s(STAMP_SLOTS[k], 2))
        else:
            lab = self.L("st")
            a.I("s_cmp_lg_u32", s(sP), pair)
            a.I("s_cbranch_scc1", lab)
            a.I(op, s(STAMP_SLOTS[k], 2))
            a.label(lab)

    def log_retries(self, hop):
        if not self.stamps:
            return
        a = self.a
        a.I("s_lshl_b32", s(sT7), s(sP), 3)
        a.I("s_add_u32", s(sT7), s(sT7), hop)
        a.I("s_mov_b32", "m0", s(sT7))
        a.I("v_writelane_b32", v(vDBG), s(sTmo), "m0")

    def srd(self, d, lo, off_s, size):
        a = self.a
        if off_s is None:
            a.I("s_mov_b32", s(d), s(lo))
            a.I("s_mov_b32", s(d + 1), s(lo + 1))
            a.I("s_mov_b32", s(d + 2), size)
        else:
            a.I("s_add_u32", s(d), s(lo), s(off_s))
            a.I("s_addc_u32", s(d + 1), s(lo + 1), 0)
            a.I("s_sub_u32", s(d + 2), size, s(off_s))
        a.I("s_mov_b32", s(d + 3), "0x20000")

    def ex(self, mask):
        self.a.I("s_mov_b64", "exec", s(mask, 2) if isinstance(mask, int) and mask >= 32 else mask)

    def exi(self, imm):
        self.a.I("s_mov_b64", "exec", imm)

    def exec_all(self):
        self.a.I("s_mov_b64", "exec", -1)

    def if_wave(self, lo, hi, else_label):
        a = self.a
        if hi - lo == 1:
            a.I("s_cmp_lg_u32", s(sW), lo)
            a.I("s_cbranch_scc1", else_label)
            return
        if lo > 0:
            a.I("s_cmp_lt_u32", s(sW), lo)
            a.I("s_cbranch_scc1", else_label)
        if hi < 8:
            a.I("s_cmp_ge_u32", s(sW), hi)
            a.I("s_cbranch_scc1", else_label)

    def if_pair0(self, else_label):
        self.a.I("s_cmp_lg_u32", s(sP), 0)
        self.a.I("s_cbranch_scc1", else_label)

    def if_pair1(self, else_label):
        self.a.I("s_cmp_eq_u32", s(sP), 0)
        self.a.I("s_cbranch_scc1", else_label)

    def store8(self, op, data, vaddr, soff, mods=""):
        a = self.a
        l_slow, l_done = self.L("slow"), self.L("sd")
        a.I("s_cmp_eq_u32", s(sFast), 0)
        a.I("s_cbranch_scc1", l_slow)
        a.I(op, data, vaddr, s(SRD_WS, 4), soff, mods=("offen " + mods).strip())
        a.label(l_done)
        self.ool.append((l_slow, op, data, vaddr, soff, ("offen " + mods + " sc1").strip(), l_done))

    def retry(self, loop_label):
        a = self.a
        if self.rsleep:
            a.I("s_sleep", self.rsleep)
        a.I("s_add_u32", s(sTmo), s(sTmo), 1)
        a.I("s_cmp_lt_u32", s(sTmo), hex(self.tmo))
        a.I("s_cbranch_scc1", loop_label)
        a.I("s_branch", "L_end")

    def maxtree(self, regs, tmp):
        a = self.a
        regs = list(regs)
        first = True
        while regs:
            if first:
                if len(regs) >= 3:
                    a.I("v_max3_u32", v(tmp), v(regs[0]), v(regs[1]), v(regs[2]))
                    regs = regs[3:]
                else:
                    a.I("v_max_u32", v(tmp), v(regs[0]), v(regs[-1]))
                    regs = []
                first = False
            elif len(regs) >= 2:
                a.I("v_max3_u32", v(tmp), v(tmp), v(regs[0]), v(regs[1]))
                regs = regs[2:]
            else:
                a.I("v_max_u32", v(tmp), v(tmp), v(regs[0]))
                regs = []

    def branch_if_invalid(self, tmp, retry_label):
        a = self.a
        a.I("v_cmp_eq_u32", "vcc", SENT, v(tmp))
        a.I("s_cmp_lg_u64", "vcc", 0)
        a.I("s_cbranch_scc1", retry_label)

    def wait_by_wave(self, counts):
        a = self.a
        done = self.L("wbw")
        vals = sorted(set(counts.values()))
        for val in vals[:-1]:
            nxt, hit = self.L("wbn"), self.L("wbh")
            for w in [w for w, c in counts.items() if c == val]:
                a.I("s_cmp_eq_u32", s(sW), w)
                a.I("s_cbranch_scc1", hit)
            a.I("s_branch", nxt)
            a.label(hit)
            a.wait(vm=val)
            a.I("s_branch", done)
            a.label(nxt)
        a.wait(vm=vals[-1])
        a.label(done)

    def k_addr(self):
        a = self.a
        T = vT + 40
        a.I("v_and_b32", v(T + 2), 3, v(vN))
        a.I("v_bfe_u32", v(T + 3), v(vN), 2, 1)
        a.I("v_mul_u32_u24", v(T), 384, v(T + 2))
        a.I("v_mul_u32_u24", v(T + 3), 3072, v(T + 3))
        a.I("v_add_u32", v(T), v(T), v(T + 3))
        a.I("v_lshrrev_b32", v(T + 3), 3, v(vN))
        a.I("v_lshl_add_u32", v(T + 3), v(T + 3), 2, v(vG))
        a.I("v_and_b32", v(T + 2), 2, v(T + 2))
        a.I("v_xor_b32", v(T + 3), v(T + 3), v(T + 2))
        a.I("v_lshl_add_u32", v(T), v(T + 3), 4, v(T))
        a.I("s_mul_i32", s(sT2), s(sW), 12288)
        a.I("s_add_u32", s(sT2), s(sT2), LB)
        a.I("v_add_u32", v(T), s(sT2), v(T))
        a.I("v_xor_b32", v(T + 1), 64, v(T))
        a.I("v_add_u32", v(T + 1), 1536, v(T + 1))

    def k_frags(self, part):
        T = vT + 40
        for tt in range(2):
            t = 2 * part + tt
            for l in range(3):
                self.a.I("ds_read_b128", v(vK + 12 * t + 4 * l, 4), v(T + tt), mods=f"offset:{6144 * part + 128 * l}")

    def delay(self, key):
        n = self.d[key]
        if n:
            self.a.I("s_sleep", n)

    def dpp(self, op, dst, src0, src1, ctrl, row=0xf, bank=0xf):
        mods = f"{ctrl} row_mask:{hex(row)} bank_mask:{hex(bank)}"
        if src1 is None:
            self.a.I(op + "_dpp", v(dst), v(src0), mods=mods)
        else:
            self.a.I(op + "_dpp", v(dst), v(src0), v(src1), mods=mods)

    BF8 = ("quad_perm:[1,0,3,2]", "quad_perm:[2,3,0,1]", "row_half_mirror")

    def bfly8(self, op, regs):
        for ctrl in self.BF8:
            for r in regs:
                self.dpp(op, r, r, r, ctrl)

    def rr4_a(self, a0):
        a = self.a
        a.I("v_permlane32_swap_b32", v(a0), v(a0 + 1))
        a.I("v_permlane32_swap_b32", v(a0 + 2), v(a0 + 3))

    def rr4_b(self, a0):
        a = self.a
        a.I("v_add_f32", v(a0), v(a0), v(a0 + 1))
        a.I("v_add_f32", v(a0 + 2), v(a0 + 2), v(a0 + 3))

    def rr4_c(self, a0):
        self.a.I("v_permlane16_swap_b32", v(a0), v(a0 + 2))

    def rr4_d(self, a0, out):
        self.a.I("v_add_f32", v(out), v(a0), v(a0 + 2))

    def sigma_row(self, dst, tmp):
        a = self.a
        a.I("v_lshlrev_b32", v(dst), 1, v(vG))
        a.I("v_lshrrev_b32", v(tmp), 1, v(vG))
        a.I("v_and_b32", v(dst), 2, v(dst))
        a.I("v_or_b32", v(dst), v(dst), v(tmp))

    def tr_base(self, dst, pitch, swz=False):
        a = self.a
        a.I("v_lshrrev_b32", v(dst + 1), 2, v(vN))
        a.I("v_lshl_add_u32", v(dst + 1), v(vG), 2, v(dst + 1))
        a.I("v_mul_u32_u24", v(dst), pitch, v(dst + 1))
        if swz:
            a.I("v_and_b32", v(dst + 1), 6, v(dst + 1))
            a.I("v_bfe_u32", v(dst + 2), v(vN), 1, 1)
            a.I("v_xor_b32", v(dst + 1), v(dst + 1), v(dst + 2))
            a.I("v_lshl_add_u32", v(dst), v(dst + 1), 4, v(dst))
            a.I("v_and_b32", v(dst + 2), 1, v(vN))
            a.I("v_lshl_add_u32", v(dst), v(dst + 2), 3, v(dst))
        else:
            a.I("v_and_b32", v(dst + 2), 3, v(vN))
            a.I("v_lshl_add_u32", v(dst), v(dst + 2), 3, v(dst))

    def prologue(self):
        a = self.a
        T = vT
        a.I("s_cmp_ge_u32", s(2), 256)
        a.I("s_cbranch_scc1", "L_end")
        self.stamp("start")
        a.I("s_load_dwordx16", s(sKA, 16), s(0, 2), 0)
        a.I("s_load_dwordx8", s(sKA + 16, 8), s(0, 2), 64)
        a.I("v_readfirstlane_b32", s(sW), v(0))
        a.I("s_and_b32", s(sH), s(2), 7)
        a.I("s_lshl_b32", s(sH), s(sH), 2)
        a.I("s_bfe_u32", s(3), s(2), "0x20003")
        a.I("s_or_b32", s(sH), s(sH), s(3))
        a.I("s_lshr_b32", s(sJ), s(2), 5)
        a.I("s_lshr_b32", s(sW), s(sW), 6)
        a.I("v_and_b32", v(vL), 63, v(0))
        a.I("v_lshrrev_b32", v(vG), 4, v(vL))
        a.I("v_and_b32", v(vN), 15, v(vL))
        a.I("s_lshl_b32", s(sG8), s(sH), 16)
        a.I("s_lshl_b32", s(3), s(sJ), 13)
        a.I("s_add_u32", s(sOwn), s(sG8), s(3))
        a.I("s_mul_i32", s(sJ160), s(sJ), 160)
        for k in range(3):
            P, r, pos, ch = T + 10, T + 11, T + 12, T + 13
            a.I("v_add_u32", v(P), 64 * k, v(vL))
            a.I("v_mul_u32_u24", v(r), 2731, v(P))
            a.I("v_lshrrev_b32", v(r), 16, v(r))
            a.I("v_mul_u32_u24", v(pos), 24, v(r))
            a.I("v_sub_u32", v(pos), v(P), v(pos))
            a.I("v_and_b32", v(ch), 6, v(r))
            a.I("v_xor_b32", v(ch), v(ch), v(pos))
            a.I("v_lshlrev_b32", v(ch), 4, v(ch))
            a.I("v_mul_u32_u24", v(T + 14), 384, v(r))
            a.I("v_add_u32", v(vVOF + k), v(T + 14), v(ch))
            a.I("v_mul_u32_u24", v(T + 14), 12288, v(r))
            a.I("v_add_u32", v(T + 4 + k), v(T + 14), v(ch))
        a.I("s_mul_i32", s(sT6), s(sH), 3145728)
        a.I("s_mul_i32", s(sT3), s(sJ), 98304)
        a.I("s_add_u32", s(sT6), s(sT6), s(sT3))
        a.I("s_add_u32", s(sT6), s(sT6), 2359296)
        a.I("s_mul_i32", s(sT7), s(sJ), 983040)
        a.I("s_mul_i32", s(sT3), s(sH), 384)
        a.I("s_add_u32", s(sT7), s(sT7), s(sT3))
        a.wait(lgkm=0)
        self.stamp("karg")
        self.srd(SRD_WS, pWS, None, hex(WS_BYTES))
        a.I("s_mov_b32", s(sT0), hex(EPOCH))
        a.I("s_load_dword", s(sTag), s(SRD_WS, 2), s(sT0))
        self.srd(SRD_X, pX, sJ160, 1280)
        if not self.clr_late:
            l7 = self.L("p7")
            self.if_wave(7, 8, l7)
            a.I("s_setprio", 3)
            self.clears()
            a.label(l7)
        self.srd(SRD_W, pWQ, sT7, 7864320)
        self.srd(SRD_K, pK, sT6, 100663296)
        lq = self.L("wqe")
        self.if_wave(0, 4, lq)
        for rep in range(3):
            if rep == 2:
                a.I("s_cmp_ge_u32", s(sW), 2)
                a.I("s_cbranch_scc1", lq)
            a.I("s_add_u32", s(sT2), s(sW), 4 * rep)
            a.I("s_mul_i32", s(sT3), s(sT2), 98304)
            a.I("s_mul_i32", s(sT2), s(sT2), 3072)
            for k in range(3):
                a.I("s_add_u32", "m0", s(sT2), LA + 1024 * k)
                a.I("buffer_load_dwordx4", v(T + 4 + k), s(SRD_W, 4), s(sT3), mods="offen" + self.nt_kv + " lds")
        a.label(lq)
        la = self.L("xf")
        self.if_wave(0, 4, la)
        a.I("v_lshlrev_b32", v(T + 12), 3, v(vG))
        for st in range(3):
            for p in range(2):
                if st == 2 and p == 1:
                    continue
                a.I("buffer_load_dwordx2", v(vXF + 4 * st + 2 * p, 2), v(T + 12), s(SRD_X, 4), 0, mods=f"offen offset:{64 * st + 32 * p}")
        a.label(la)
        a.I("s_mul_i32", s(sT3), s(sW), 12288)
        a.I("s_add_u32", s(sT2), s(sT3), LB)
        a.I("s_add_u32", s(sT4), s(sT3), 6144)
        for pos in range(2):
            for k in range(3):
                a.I("s_add_u32", "m0", s(sT2), 3072 * pos + 1024 * k)
                a.I("buffer_load_dwordx4", v(vVOF + k), s(SRD_K, 4), s(sT3 + pos), mods="offen" + self.nt_kv + " lds")
        self.stamp("ka_issued")
        if self.clr_late:
            l7 = self.L("p7")
            self.if_wave(7, 8, l7)
            self.clears()
            a.label(l7)
        self.srd(SRD_V, pV, sT6, 100663296)
        self.srd(SRD_DBG, pDBG, None, 256)
        a.I("s_mov_b32", s(sTmo), 0)
        a.I("s_mov_b32", s(sFast), 0)
        a.I("s_mov_b32", s(sP), 0)

    def x_cols(self):
        a = self.a
        T = vT
        a.I("s_min_u32", s(sT1), s(sW), 4)
        a.I("v_bfe_u32", v(T + 10), v(vL), 2, 2)
        a.I("v_lshlrev_b32", v(T + 11), 1, v(T + 10))
        a.I("v_lshrrev_b32", v(T + 12), 1, v(T + 10))
        a.I("v_and_b32", v(T + 11), 2, v(T + 11))
        a.I("v_or_b32", v(T + 11), v(T + 11), v(T + 12))
        a.I("v_lshl_add_u32", v(T + 11), v(vG), 2, v(T + 11))
        a.I("s_lshl_b32", s(sT2), s(sT1), 4)
        a.I("v_add_u32", v(T + 11), s(sT2), v(T + 11))
        a.I("v_lshlrev_b32", v(T + 30), 1, v(T + 11))
        a.I("v_add_u32", v(vXW), XB, v(T + 30))

    def kv_dma(self, srd, groups, slot):
        a = self.a
        lab = self.L("kv")
        a.I("s_mov_b32", s(sT2), LB + 6144 * slot)
        a.I("s_mov_b32", s(sT3), 3072 * groups[0])
        a.I("s_mov_b32", s(sT4), 3072 * groups[1])
        a.I("s_mov_b32", s(sT5), 0)
        a.label(lab)
        for pos in range(2):
            for k in range(3):
                a.I("s_add_u32", "m0", s(sT2), 3072 * pos + 1024 * k)
                a.I("buffer_load_dwordx4", v(vVOF + k), s(srd, 4), s(sT3 + pos), mods="offen" + self.nt_kv + " lds")
        a.I("s_add_u32", s(sT2), s(sT2), 12288)
        a.I("s_add_u32", s(sT3), s(sT3), 12288)
        a.I("s_add_u32", s(sT4), s(sT4), 12288)
        a.I("s_add_u32", s(sT5), s(sT5), 1)
        a.I("s_cmp_lt_u32", s(sT5), 8)
        a.I("s_cbranch_scc1", lab)

    def wq_dma(self):
        a = self.a
        T = vT
        a.I("s_mul_i32", s(sT2), s(sJ), 983040)
        a.I("s_mul_i32", s(sT3), s(sH), 384)
        a.I("s_add_u32", s(sT2), s(sT2), s(sT3))
        self.srd(SRD_W, pWQ, sT2, 7864320)
        lab = self.L("wq")
        a.I("s_mov_b32", s(sT2), LA)
        a.I("s_mov_b32", s(sT3), 0)
        a.label(lab)
        for k in range(3):
            a.I("s_add_u32", "m0", s(sT2), 1024 * k)
            a.I("buffer_load_dwordx4", v(T + 4 + k), s(SRD_W, 4), s(sT3), mods="offen" + self.nt_kv + " lds")
        a.I("s_add_u32", s(sT2), s(sT2), 3072)
        a.I("s_add_u32", s(sT3), s(sT3), 98304)
        a.I("s_cmp_lt_u32", s(sT2), LA + 30720)
        a.I("s_cbranch_scc1", lab)

    def clears(self):
        a = self.a
        T = vT
        for i in range(4):
            a.I("v_mov_b32", v(T + 16 + i), SENT)
        a.I("v_lshlrev_b32", v(T + 8), 4, v(vL))
        a.I("v_add_u32", v(T + 8), s(sOwn), v(T + 8))
        for k in range(CLRN):
            a.I("s_mov_b32", s(sT2), CLR0 + 1024 * k)
            a.I("buffer_store_dwordx4", v(T + 16, 4), v(T + 8), s(SRD_WS, 4), s(sT2), mods="offen sc1")
        a.I("s_mul_i32", s(sT2), s(sJ), 10240)
        a.I("s_lshl_b32", s(sT3), s(sH), 6)
        a.I("s_add_u32", s(sT2), s(sT2), s(sT3))
        a.I("s_add_u32", s(sT2), s(sT2), hex(YBASE))
        for half in range(2):
            a.I("v_lshrrev_b32", v(T + 10), 2, v(vL))
            if half:
                a.I("v_add_u32", v(T + 10), 16, v(T + 10))
                a.I("v_min_u32", v(T + 10), 19, v(T + 10))
            a.I("v_mul_u32_u24", v(T + 11), 52, v(T + 10))
            a.I("v_lshrrev_b32", v(T + 11), 8, v(T + 11))
            a.I("v_mul_u32_u24", v(T + 12), 5, v(T + 11))
            a.I("v_sub_u32", v(T + 12), v(T + 10), v(T + 12))
            a.I("v_mul_u32_u24", v(T + 11), YPK, v(T + 11))
            a.I("v_lshl_add_u32", v(T + 11), v(T + 12), 11, v(T + 11))
            a.I("v_and_b32", v(T + 12), 3, v(vL))
            a.I("v_lshl_add_u32", v(T + 11), v(T + 12), 4, v(T + 11))
            a.I("v_add_u32", v(T + 11), s(sT2), v(T + 11))
            a.I("buffer_store_dwordx4", v(T + 16, 4), v(T + 11), s(SRD_WS, 4), 0, mods="offen sc1")
        a.I("v_mov_b32", v(T + 40), 0)
        a.I("v_lshlrev_b32", v(T + 41), 2, v(vL))
        a.I("s_mov_b32", s(sT0), -1)
        a.I("s_mov_b32", s(sT1), "0xff")
        a.I("s_mov_b64", "exec", s(sT0, 2))
        a.I("buffer_load_dword", v(T + 40), v(T + 41), s(SRD_X, 4), 0, mods="offen")
        self.exec_all()

    def arrive(self):
        a = self.a
        T = vT
        a.I("s_and_b32", s(sT2), s(2), 7)
        a.I("s_lshl_b32", s(sT2), s(sT2), 5)
        a.I("v_mov_b32", v(T + 10), s(sT2))
        a.I("v_mov_b32", v(T + 11), 1)
        self.stamp("clr_ack")
        self.exi(1)
        a.I("buffer_atomic_add", v(T + 11), v(T + 10), s(SRD_DBG, 4), 0, mods="offen")
        self.exec_all()

    def stats0_publish(self, R):
        a = self.a
        lo, hi = R + 2, R + 3
        a.I("v_lshlrev_b32", v(lo), 16, v(R))
        a.I("v_and_b32", v(hi), "0xffff0000", v(R))
        a.I("v_add_f32", v(R), v(lo), v(hi))
        a.I("v_mul_f32", v(R + 1), v(lo), v(lo))
        a.I("v_fmac_f32", v(R + 1), v(hi), v(hi))
        for ctrl, row in (("quad_perm:[1,0,3,2]", 0xf), ("quad_perm:[2,3,0,1]", 0xf), ("row_half_mirror", 0xf), ("row_mirror", 0xf),
                          ("row_bcast:15", 0xa), ("row_bcast:31", 0xc)):
            self.dpp("v_add_f32", R, R, R, ctrl, row=row)
            self.dpp("v_add_f32", R + 1, R + 1, R + 1, ctrl, row=row)
        P = vT + 4
        a.I("s_getreg_b32", s(sT3), "hwreg(HW_REG_XCC_ID, 0, 4)")
        a.I("v_mov_b32", v(P), v(R))
        a.I("v_mov_b32", v(P + 1), s(sTag))
        a.I("v_mov_b32", v(P + 2), v(R + 1))
        a.I("v_mov_b32", v(P + 3), s(sTag))
        a.I("v_mov_b32", v(P + 4), s(sT3))
        a.I("v_mov_b32", v(P + 5), s(sTag))
        a.I("v_mov_b32", v(P + 6), s(sOwn))
        self.ex(m63)
        a.I("buffer_store_dwordx4", v(P, 4), v(P + 6), s(SRD_WS, 4), 0, mods="offen offset:3072 sc1")
        a.I("buffer_store_dwordx2", v(P + 4, 2), v(P + 6), s(SRD_WS, 4), 0, mods="offen offset:3088 sc1")
        self.exec_all()

    def q0_publish(self):
        a = self.a
        D, P = vT + 16, vT + 28
        a.I("s_mul_i32", s(sT0), s(sW), 384)
        a.I("s_add_u32", s(sT0), s(sT0), s(sOwn))
        a.I("v_lshlrev_b32", v(P + 8), 5, v(vG))
        a.I("v_mul_u32_u24", v(P + 9), 1536, v(vN))
        a.I("v_add3_u32", v(P + 8), v(P + 8), v(P + 9), s(sT0))
        for i in range(4):
            a.I("v_mov_b32", v(P + 2 * i + 1), s(sTag))
        for k in range(3):
            for i in range(4):
                a.I("v_mov_b32", v(P + 2 * i), v(D + 4 * k + i))
            self.ex(mN01)
            a.I("buffer_store_dwordx4", v(P, 4), v(P + 8), s(SRD_WS, 4), 0, mods=f"offen offset:{128 * k} sc1")
            a.I("buffer_store_dwordx4", v(P + 4, 4), v(P + 8), s(SRD_WS, 4), 0, mods=f"offen offset:{128 * k + 16} sc1")
            self.exec_all()

    def loader(self, fn):
        lab = self.L("ld")
        self.if_wave(LOADER, LOADER + 1, lab)
        fn()
        self.a.label(lab)

    def layer1_load(self):
        a = self.a
        B = vT
        self.x_cols()
        a.I("buffer_load_ushort", v(vXR), v(vT + 30), s(SRD_X, 4), 0, mods="offen")
        self.setup2()
        T = vT + 44
        self.tr_base(T, 384, swz=True)
        la = self.L("l1w")
        self.if_wave(0, 4, la)
        a.wait(vm=7)
        self.stamp("wq_ok")
        a.label(la)
        a.wait(lgkm=0)
        a.I("s_add_u32", s(sTag), s(sTag), 1)
        a.I("s_barrier")
        self.stamp("Ba")
        self.loader(lambda: (a.I("s_setprio", 3), self.kv_dma(SRD_K, (1, 3), 1)))
        self.stamp("kb_issued")
        l7 = self.L("l17s")
        self.if_wave(7, 8, l7)
        a.wait(vm=1)
        self.arrive()
        self.stats0_publish(vT + 40)
        a.label(l7)
        la = self.L("l1q")
        self.if_wave(0, 4, la)
        for k in range(3):
            a.I("s_mul_i32", s(sT0), s(sW), 3)
            a.I("s_add_u32", s(sT0), s(sT0), k)
            a.I("s_and_b32", s(sT1), s(sT0), 3)
            a.I("s_lshl_b32", s(sT1), s(sT1), 5)
            a.I("s_lshr_b32", s(sT2), s(sT0), 2)
            a.I("s_lshl_b32", s(sT2), s(sT2), 7)
            a.I("v_xor_b32", v(T + 3), s(sT1), v(T))
            a.I("v_add_u32", v(T + 3), s(sT2), v(T + 3))
            for st in range(3):
                for p in range(2):
                    if st == 2 and p == 1:
                        continue
                    a.I("ds_read_b64_tr_b16", v(vWQ + 12 * k + 4 * st + 2 * p, 2), v(T + 3), mods=f"offset:{LA + 384 * (32 * st + 16 * p)}")
            a.I("v_mov_b32", v(vWQ + 12 * k + 10), 0)
            a.I("v_mov_b32", v(vWQ + 12 * k + 11), 0)
        for i in range(10):
            a.I("v_mov_b32", v(B + i), v(vXF + i))
        self.mask(sT0, 0x0002000200020002)
        a.I("s_mov_b64", "exec", s(sT0, 2))
        for i in range(10):
            a.I("v_mov_b32", v(B + i), "0x3f803f80")
        self.exec_all()
        a.I("v_mov_b32", v(B + 10), 0)
        a.I("v_mov_b32", v(B + 11), 0)
        a.wait(lgkm=0)
        self.q_mfma(publish=False)
        self.q0_publish()
        self.stamp("q_pub0")
        a.label(la)
        self.k_addr()
        self.wait_by_wave({0: 7, 1: 7, 2: 7, 3: 7, 4: 49, 5: 1, 6: 1, 7: 63})
        self.stamp("ka_landed")
        self.k_frags(0)
        a.wait(lgkm=0)
        a.I("s_barrier")
        self.loader(lambda: (self.kv_dma(SRD_V, (0, 1), 0), a.wait(vm=48)))
        l_s = self.L("qg0s")
        self.if_wave(0, 3, l_s)
        self.delay("q0")
        self.qg0_issue()
        self.stamp("qg_iss0")
        a.label(l_s)
        a.I("s_barrier")
        self.stamp("Bc1")
        a.I("v_lshlrev_b32", v(vXR), 16, v(vXR))
        self.k_frags(1)
        a.wait(lgkm=0)
        self.handshake_issue()
        a.I("s_barrier")
        self.loader(lambda: (self.kv_dma(SRD_V, (2, 3), 1), a.wait(vm=48)))
        a.I("s_barrier")
        self.stamp("Be")
        self.loader(lambda: (self.wo_dma(), a.I("s_setprio", 0)))
        if self.warm:
            lw = self.L("warm")
            self.if_wave(6, 7, lw)
            a.I("v_lshlrev_b32", v(vT + 8), 4, v(vL))
            a.I("v_add_u32", v(vT + 8), s(sOwn), v(vT + 8))
            for k in range(CLRN):
                a.I("s_mov_b32", s(sT2), CLR0 + 1024 * k)
                a.I("buffer_load_dwordx4", v(vWT + 4 * k, 4), v(vT + 8), s(SRD_WS, 4), s(sT2), mods="offen sc1")
            a.label(lw)
        T = self.v_frags(0, vT + 44)
        self.v_frag_reads(T, 0)

    def mask(self, m, val):
        self.a.I("s_mov_b32", s(m), hex(val & 0xffffffff))
        self.a.I("s_mov_b32", s(m + 1), hex(val >> 32))

    def setup2(self):
        a = self.a
        T = vT + 24
        self.mask(mN0, 0x0001000100010001)
        self.mask(mN01, 0x0003000300030003)
        self.mask(mQ0, 0x1111111111111111)
        self.mask(mY, 0x0011001100110011)
        self.mask(mN8, 0x00ff00ff00ff00ff)
        self.mask(m63, 1 << 63)
        for i in range(16):
            a.I("v_mov_b32", v(vPA + i), 0)
        if self.stamps:
            a.I("v_mov_b32", v(vDBG), 0)
        a.I("v_lshlrev_b32", v(T), 3, v(vG))
        a.I("v_add_u32", v(vXB), XB, v(T))
        a.I("v_add_u32", v(vHB), HBL, v(T))
        a.I("v_add_u32", v(T + 1), ONES, v(T))
        a.I("v_cmp_eq_u32", "vcc", 1, v(vN))
        a.I("v_cndmask_b32", v(vXB), v(vXB), v(T + 1), "vcc")
        a.I("s_mul_i32", s(sT0), s(sW), 192)
        a.I("s_add_u32", s(sT0), s(sT0), s(sOwn))
        a.I("v_lshlrev_b32", v(T), 4, v(vG))
        a.I("v_mul_u32_u24", v(T + 1), 768, v(vN))
        a.I("v_add3_u32", v(vQPUB), v(T), v(T + 1), s(sT0))
        a.I("s_lshl_b32", s(sT0), s(sW), 6)
        a.I("s_add_u32", s(sT0), s(sT0), s(sOwn))
        a.I("v_mul_u32_u24", v(T + 1), 384, v(vN))
        a.I("v_add3_u32", v(vGPUB), v(T), v(T + 1), s(sT0))
        a.I("v_and_b32", v(T + 1), 1, v(vN))
        a.I("v_lshl_add_u32", v(T + 1), v(T + 1), 6, v(T))
        a.I("v_add_u32", v(vQA), QBL, v(T + 1))
        a.I("s_mul_i32", s(sT0), s(sW), 12288)
        a.I("s_add_u32", s(sT0), s(sT0), LB)
        a.I("v_lshlrev_b32", v(T), 2, v(vL))
        a.I("v_add_u32", v(vOAC), s(sT0), v(T))
        a.I("s_lshl_b32", s(sT0), s(sW), 8)
        a.I("s_add_u32", s(sT0), s(sT0), LB)
        a.I("v_add_u32", v(vORD), s(sT0), v(T))
        a.I("v_add_u32", v(vORD + 1), 12288 * 5, v(vORD))
        a.I("s_lshl_b32", s(sT0), s(sW), 2)
        a.I("s_add_u32", s(sT0), s(sT0), MXL)
        a.I("v_mov_b32", v(vMXW), s(sT0))
        a.I("s_min_u32", s(sT1), s(sW), 4)
        a.I("s_mul_i32", s(sT0), s(sJ), 10240)
        a.I("s_lshl_b32", s(sT2), s(sT1), 11)
        a.I("s_add_u32", s(sT0), s(sT0), s(sT2))
        a.I("s_add_u32", s(sT0), s(sT0), hex(YBASE))
        a.I("v_lshlrev_b32", v(T), 6, v(vN))
        a.I("v_lshl_add_u32", v(T), v(vG), 4, v(T))
        a.I("v_add_u32", v(vYG), s(sT0), v(T))
        a.I("s_lshl_b32", s(sT2), s(sH), 6)
        a.I("s_add_u32", s(sT0), s(sT0), s(sT2))
        a.I("v_lshlrev_b32", v(T), 4, v(vG))
        a.I("v_add_u32", v(vDP), s(sT0), v(T))
        a.I("v_lshrrev_b32", v(T + 1), 2, v(vN))
        a.I("v_lshl_add_u32", v(vYP), v(T + 1), 3, v(vDP))
        a.I("s_lshl_b32", s(sT0), s(sW), 8)
        a.I("s_add_u32", s(sT0), s(sT0), s(sG8))
        a.I("v_lshlrev_b32", v(T), 13, v(vG))
        a.I("v_lshl_add_u32", v(T), v(vN), 4, v(T))
        a.I("v_add_u32", v(vQG), s(sT0), v(T))
        a.I("v_and_b32", v(T), 7, v(vL))
        a.I("v_lshlrev_b32", v(T), 13, v(T))
        a.I("v_add_u32", v(vSG), s(sG8), v(T))
        a.I("v_lshrrev_b32", v(T), 3, v(vL))
        a.I("v_lshlrev_b32", v(T + 1), 13, v(T))
        a.I("v_add_u32", v(vOML), s(sG8), v(T + 1))
        a.I("s_sub_u32", s(sT0), s(sW), 5)
        a.I("s_lshl_b32", s(sT0), s(sT0), 3)
        a.I("v_and_b32", v(T + 2), 7, v(vL))
        a.I("v_add_u32", v(T + 2), s(sT0), v(T + 2))
        a.I("v_lshl_add_u32", v(vOG), v(T + 2), 4, v(vOML))
        a.I("v_mul_u32_u24", v(T + 1), 400, v(T))
        a.I("v_lshl_add_u32", v(T + 1), v(T + 2), 4, v(T + 1))
        a.I("v_add_u32", v(vOSW), OST, v(T + 1))
        a.I("v_and_b32", v(T), 7, v(vN))
        a.I("v_mul_u32_u24", v(T + 1), 400, v(T))
        a.I("v_lshl_add_u32", v(T + 1), v(vG), 4, v(T + 1))
        a.I("v_add_u32", v(vOSR), OST, v(T + 1))
        a.I("v_lshlrev_b32", v(T), 3, v(T))
        a.I("v_add_u32", v(vMLR), MLS, v(T))
        a.I("s_sub_u32", s(sT0), s(sW), 6)
        a.I("s_lshl_b32", s(sT0), s(sT0), 3)
        a.I("v_and_b32", v(T), 7, v(vL))
        a.I("v_add_u32", v(T), s(sT0), v(T))
        a.I("v_min_u32", v(T), 11, v(T))
        a.I("v_lshrrev_b32", v(T + 1), 3, v(vL))
        a.I("v_lshlrev_b32", v(T + 1), 13, v(T + 1))
        a.I("v_lshl_add_u32", v(T + 1), v(T), 4, v(T + 1))
        a.I("v_add_u32", v(vGG), s(sG8), v(T + 1))
        self.sigma_row(T + 2, T + 3)
        a.I("v_lshl_add_u32", v(T), v(T), 2, v(T + 2))
        a.I("v_lshlrev_b32", v(T), 1, v(T))
        a.I("v_add_u32", v(vHW), HBL, v(T))
        a.I("v_lshl_add_u32", v(T), v(vN), 2, v(T + 2))
        a.I("s_lshl_b32", s(sT0), s(sW), 7)
        a.I("s_add_u32", s(sT0), s(sT0), QBL)
        a.I("v_lshl_add_u32", v(vQW), v(T), 1, s(sT0))
        a.I("v_lshrrev_b32", v(T), 5, v(vL))
        a.I("v_lshlrev_b32", v(T), 6, v(T))
        a.I("v_bfe_u32", v(T + 1), v(vL), 2, 2)
        a.I("v_lshl_add_u32", v(T), v(T + 1), 4, v(T))
        a.I("v_bfe_u32", v(T + 1), v(vL), 4, 1)
        a.I("v_lshl_add_u32", v(T), v(T + 1), 3, v(T))
        a.I("s_lshl_b32", s(sT0), s(sW), 7)
        a.I("s_add_u32", s(sT0), s(sT0), s(sOwn))
        a.I("v_add_u32", v(vOPUB), s(sT0), v(T))
        lab = self.L("c0")
        self.if_wave(0, 1, lab)
        a.I("v_lshlrev_b32", v(T), 2, v(vL))
        a.I("v_add_u32", v(T), ONES, v(T))
        a.I("v_mov_b32", v(T + 1), "0x3f803f80")
        a.I("s_mov_b32", s(sT0), -1)
        a.I("s_mov_b32", s(sT1), "0xffff")
        a.I("s_mov_b64", "exec", s(sT0, 2))
        a.I("ds_write_b32", v(T), v(T + 1))
        self.exec_all()
        a.label(lab)

    def x_write(self, xin):
        a = self.a
        t = vT + 12
        a.I("v_cvt_pk_bf16_f32", v(t), v(xin), v(xin))
        a.I("ds_write_b16", v(vXW), v(t))
        a.I("v_lshlrev_b32", v(vXR), 16, v(t))

    def read_xfrags(self, B):
        for st in range(3):
            for p in range(2):
                if st == 2 and p == 1:
                    continue
                self.a.I("ds_read_b64", v(B + 4 * st + 2 * p, 2), v(vXB), mods=f"offset:{64 * st + 32 * p}")

    def stats_read(self, R):
        a = self.a
        a.I("v_mov_b32", v(R), 0)
        a.I("v_lshlrev_b32", v(R + 1), 2, v(vL))
        a.I("v_add_u32", v(R + 1), XB, v(R + 1))
        a.I("s_mov_b32", s(sT0), -1)
        a.I("s_mov_b32", s(sT1), "0xff")
        a.I("s_mov_b64", "exec", s(sT0, 2))
        a.I("ds_read_b32", v(R), v(R + 1))
        self.exec_all()

    def stats_publish(self, R, off_s, imm):
        a = self.a
        lo, hi = R + 2, R + 3
        a.I("v_lshlrev_b32", v(lo), 16, v(R))
        a.I("v_and_b32", v(hi), "0xffff0000", v(R))
        a.I("v_add_f32", v(R), v(lo), v(hi))
        a.I("v_mul_f32", v(R + 1), v(lo), v(lo))
        a.I("v_fmac_f32", v(R + 1), v(hi), v(hi))
        for ctrl, row in (("quad_perm:[1,0,3,2]", 0xf), ("quad_perm:[2,3,0,1]", 0xf), ("row_half_mirror", 0xf), ("row_mirror", 0xf),
                          ("row_bcast:15", 0xa), ("row_bcast:31", 0xc)):
            self.dpp("v_add_f32", R, R, R, ctrl, row=row)
            self.dpp("v_add_f32", R + 1, R + 1, R + 1, ctrl, row=row)
        a.I("v_mov_b32", v(lo), s(sOwn))
        self.ex(m63)
        self.store8("buffer_store_dwordx2", v(R, 2), v(lo), s(off_s), mods=f"offset:{imm}")
        self.exec_all()

    def q_mfma(self, publish=True):
        a = self.a
        B, D = vT, vT + 16
        for k in range(3):
            for st in range(3):
                a.I("v_mfma_f32_16x16x32_bf16", v(D + 4 * k, 4), v(vWQ + 12 * k + 4 * st, 4), v(B + 4 * st, 4), 0 if st == 0 else v(D + 4 * k, 4))
        if not publish:
            a.nop(8)
            return
        self.ex(mN0)
        for k in range(3):
            self.store8("buffer_store_dwordx4", v(D + 4 * k, 4), v(vQPUB), s(sPQ), mods=f"offset:{64 * k}" if k else "")
        self.exec_all()

    def q_phase1(self):
        a = self.a
        B, R = vT, vT + 40
        l7, le = self.L("q7"), self.L("qe")
        self.if_wave(0, 4, l7)
        self.read_xfrags(B)
        a.wait(lgkm=0)
        self.q_mfma()
        a.I("s_branch", le)
        a.label(l7)
        self.if_wave(7, 8, le)
        self.stats_read(R)
        a.wait(lgkm=0)
        self.stats_publish(R, sPQ, 768)
        a.label(le)

    def pub_mask(self):
        a = self.a
        a.I("s_cmp_eq_u32", s(sP), 0)
        a.I("s_cselect_b64", s(sT4, 2), s(mN01, 2), s(mN0, 2))

    def v_dma(self, part):
        a = self.a
        a.I("s_mul_i32", s(sT2), s(sW), 12288)
        a.I("s_add_u32", s(sT2), s(sT2), LB + 6144 * part)
        for grp in range(2):
            a.I("s_mov_b32", s(sT3), 6144 * part + 3072 * grp)
            for k in range(3):
                a.I("s_add_u32", "m0", s(sT2), 3072 * grp + 1024 * k)
                a.I("buffer_load_dwordx4", v(vVOF + k), s(SRD_V, 4), s(sT3), mods="offen" + self.nt_kv + " lds")

    HS = [sT0, sT1, sT2, sT3, sT4, sT5, sT6, sT7]

    def handshake_issue(self):
        a = self.a
        lab = self.L("hsi")
        self.if_wave(0, 1, lab)
        for k in range(8):
            a.I("s_load_dword", s(HSR[k]), s(SRD_DBG, 2), 32 * k)
        a.label(lab)

    def handshake(self):
        a = self.a
        l_ok, l_loop, l_skip = self.L("hs_ok"), self.L("hs_loop"), self.L("hs_skip")
        T = vT + 40
        self.if_wave(0, 1, l_skip)
        a.wait(lgkm=0)
        for k in range(1, 8):
            a.I("s_add_u32", s(HSR[0]), s(HSR[0]), s(HSR[k]))
        a.I("s_cmp_ge_u32", s(HSR[0]), 256)
        a.I("s_cbranch_scc1", l_ok)
        a.I("v_and_b32", v(T), 7, v(vL))
        a.I("v_lshlrev_b32", v(T), 5, v(T))
        a.label(l_loop)
        a.I("s_sleep", 32)
        a.I("buffer_load_dword", v(T + 1), v(T), s(SRD_DBG, 4), 0, mods="offen sc1")
        a.wait(vm=0)
        self.bfly8("v_add_u32", [T + 1])
        a.I("v_readfirstlane_b32", s(sT2), v(T + 1))
        a.I("s_cmp_ge_u32", s(sT2), 256)
        a.I("s_cbranch_scc1", l_ok)
        self.retry(l_loop)
        a.label(l_ok)
        self.stamp("hs_done")
        a.label(l_skip)

    def qg0_issue(self):
        a = self.a
        T = vT + 36
        a.I("s_lshl_b32", s(sT0), s(sW), 9)
        a.I("s_add_u32", s(sT0), s(sT0), s(sG8))
        a.I("v_lshlrev_b32", v(T), 13, v(vG))
        a.I("v_lshl_add_u32", v(T), v(vN), 5, v(T))
        a.I("v_add_u32", v(T), s(sT0), v(T))
        a.I("s_mov_b32", s(sT1), 32768)
        for pp in range(2):
            so = s(sT1) if pp else 0
            for hh in range(2):
                a.I("buffer_load_dwordx4", v(vT + 8 * pp + 4 * hh, 4), v(T), s(SRD_WS, 4), so, mods=f"offen offset:{16 * hh} sc1")
                a.I("buffer_load_dwordx4", v(vT + 16 + 8 * pp + 4 * hh, 4), v(T), s(SRD_WS, 4), so, mods=f"offen offset:{1536 + 16 * hh} sc1")
        a.I("buffer_load_dwordx4", v(vT + 32, 4), v(vSG), s(SRD_WS, 4), 0, mods="offen offset:3072 sc1")
        a.I("buffer_load_dwordx2", v(vT + 38, 2), v(vSG), s(SRD_WS, 4), 0, mods="offen offset:3088 sc1")

    def qg0_finish(self, l_retry):
        a = self.a
        chk = vT + 37
        tags = [vT + 2 * i + 1 for i in range(16)] + [vT + 33, vT + 35, vT + 39]
        a.I("v_xor_b32", v(chk), s(sTag), v(tags[0]))
        for t in tags[1:]:
            a.I("v_xor_b32", v(t), s(sTag), v(t))
            a.I("v_or_b32", v(chk), v(chk), v(t))
        a.I("v_cmp_ne_u32", "vcc", 0, v(chk))
        a.I("s_cmp_lg_u64", "vcc", 0)
        a.I("s_cbranch_scc1", l_retry)
        a.I("v_readfirstlane_b32", s(sT0), v(vT + 38))
        a.I("v_cmp_ne_u32", "vcc", s(sT0), v(vT + 38))
        a.I("s_cmp_eq_u64", "vcc", 0)
        a.I("s_cselect_b32", s(sT0), 0 if self.force_slow else 1, 0)
        a.I("v_mov_b32", v(vT + 36), FSL)
        a.I("v_mov_b32", v(vT + 37), s(sT0))
        a.I("ds_write_b32", v(vT + 36), v(vT + 37))
        A, CA, S = vT + 40, vT + 44, vT + 8
        for i in range(4):
            a.I("v_add_f32", v(A + i), v(vT + 2 * i), v(vT + 8 + 2 * i))
            a.I("v_add_f32", v(CA + i), v(vT + 16 + 2 * i), v(vT + 24 + 2 * i))
        a.I("v_mov_b32", v(S), v(vT + 32))
        a.I("v_mov_b32", v(S + 1), v(vT + 34))
        q, mean, rstd, t = vT + 21, vT + 22, vT + 23, vT + 24
        self.rr4_a(CA); self.rr4_b(CA); self.rr4_c(CA); self.rr4_d(CA, vCQ)
        self.rr4_a(A); self.rr4_b(A); self.rr4_c(A); self.rr4_d(A, q)
        self.stats_chain(S, mean, rstd, t)
        a.I("v_fma_f32", v(q), f"-v{mean}", v(vCQ), v(q))
        a.I("v_mul_f32", v(q), hex(f2u(QSCALE)), v(q))
        a.I("v_mul_f32", v(q), v(q), v(rstd))
        a.I("v_cvt_pk_bf16_f32", v(q), v(q), v(q))
        a.I("ds_write_b16", v(vQW), v(q))

    def qg_issue(self, pair):
        a = self.a
        A, Bq, S, CA, CB = vT, vT + 4, vT + 8, vT + 12, vT + 16
        a.I("buffer_load_dwordx4", v(A, 4), v(vQG), s(SRD_WS, 4), s(sPQ), mods="offen sc1")
        a.I("s_add_u32", s(sT0), s(sPQ), 32768)
        a.I("buffer_load_dwordx4", v(Bq, 4), v(vQG), s(SRD_WS, 4), s(sT0), mods="offen sc1")
        a.I("buffer_load_dwordx2", v(S, 2), v(vSG), s(SRD_WS, 4), s(sPQ), mods="offen offset:768 sc1")
        if pair == 0:
            a.I("buffer_load_dwordx4", v(CA, 4), v(vQG), s(SRD_WS, 4), s(sPQ), mods="offen offset:768 sc1")
            a.I("buffer_load_dwordx4", v(CB, 4), v(vQG), s(SRD_WS, 4), s(sT0), mods="offen offset:768 sc1")

    def stats_chain(self, S, mean, rstd, t):
        a = self.a
        self.bfly8("v_add_f32", [S, S + 1])
        a.I("v_mul_f32", v(mean), hex(f2u(1.0 / 640)), v(S))
        a.I("v_mul_f32", v(t), hex(f2u(1.0 / 640)), v(S + 1))
        a.I("v_fma_f32", v(t), f"-v{mean}", v(mean), v(t))
        a.I("v_max_f32", v(t), 0, v(t))
        a.I("v_add_f32", v(t), hex(f2u(1e-5)), v(t))
        a.I("v_rsq_f32", v(rstd), v(t))

    def qg_finish(self, pair, l_retry):
        a = self.a
        A, Bq, S, CA, CB = vT, vT + 4, vT + 8, vT + 12, vT + 16
        chk, q, mean, rstd, t = vT + 20, vT + 21, vT + 22, vT + 23, vT + 24
        regs = list(range(A, A + 10)) + (list(range(CA, CA + 8)) if pair == 0 else [])
        self.maxtree(regs, chk)
        for i in range(4):
            a.I("v_add_f32", v(A + i), v(A + i), v(Bq + i))
        self.branch_if_invalid(chk, l_retry)
        if pair == 0:
            for i in range(4):
                a.I("v_add_f32", v(CA + i), v(CA + i), v(CB + i))
            self.rr4_a(CA); self.rr4_b(CA); self.rr4_c(CA); self.rr4_d(CA, vCQ)
        self.rr4_a(A)
        self.dpp("v_add_f32", S, S, S, self.BF8[0]); self.dpp("v_add_f32", S + 1, S + 1, S + 1, self.BF8[0])
        self.rr4_b(A)
        self.dpp("v_add_f32", S, S, S, self.BF8[1]); self.dpp("v_add_f32", S + 1, S + 1, S + 1, self.BF8[1])
        self.rr4_c(A)
        self.dpp("v_add_f32", S, S, S, self.BF8[2]); self.dpp("v_add_f32", S + 1, S + 1, S + 1, self.BF8[2])
        self.rr4_d(A, q)
        a.I("v_mul_f32", v(mean), hex(f2u(1.0 / 640)), v(S))
        a.I("v_mul_f32", v(t), hex(f2u(1.0 / 640)), v(S + 1))
        a.I("v_fma_f32", v(t), f"-v{mean}", v(mean), v(t))
        a.I("v_fma_f32", v(q), f"-v{mean}", v(vCQ), v(q))
        a.I("v_max_f32", v(t), 0, v(t))
        a.I("v_add_f32", v(t), hex(f2u(1e-5)), v(t))
        a.I("v_rsq_f32", v(rstd), v(t))
        a.I("v_mul_f32", v(q), hex(f2u(QSCALE)), v(q))
        a.I("v_mul_f32", v(q), v(q), v(rstd))
        a.I("v_cvt_pk_bf16_f32", v(q), v(q), v(q))
        a.I("ds_write_b16", v(vQW), v(q))

    def q_gather0_finish(self, l_join):
        a = self.a
        l_w, l_chk, l_r = [self.L(x) for x in ("qg0w", "qg0c", "qg0r")]
        self.if_wave(0, 3, l_join)
        a.I("s_branch", l_w)
        a.label(l_r)
        self.qg0_issue()
        self.retry(l_w)
        a.label(l_w)
        a.wait(vm=0)
        self.qg0_finish(l_r)
        self.stamp("qg_ok0")
        a.I("s_branch", l_join)

    def q_gather1(self, l_join):
        a = self.a
        l_w, l_r = self.L("qg1w"), self.L("qg1r")
        self.if_wave(0, 3, l_join)
        self.delay("q")
        self.qg_issue(1)
        a.label(l_w)
        a.wait(vm=0)
        self.qg_finish(1, l_r)
        self.stamp("qg_ok1")
        self.tail_retry.append((l_r, lambda: self.qg_issue(1), l_w))

    def rowblock_dma(self, idx_s, ncol, rowbytes, mul, lds_base, clampP=None, T=vT + 40):
        a = self.a
        a.I("s_lshl_b32", s(sT4), s(idx_s), 6)
        a.I("v_add_u32", v(T), s(sT4), v(vL))
        if clampP is not None:
            a.I("v_min_u32", v(T), clampP, v(T))
        a.I("v_mul_u32_u24", v(T + 1), mul, v(T))
        a.I("v_lshrrev_b32", v(T + 1), 16, v(T + 1))
        a.I("v_mul_u32_u24", v(T + 2), ncol, v(T + 1))
        a.I("v_sub_u32", v(T + 2), v(T), v(T + 2))
        a.I("v_mul_u32_u24", v(T + 1), rowbytes, v(T + 1))
        a.I("v_lshl_add_u32", v(T + 3), v(T + 2), 4, v(T + 1))
        a.I("s_lshl_b32", s(sT4), s(idx_s), 10)
        a.I("s_add_u32", "m0", s(sT4), lds_base)
        a.I("buffer_load_dwordx4", v(T + 3), s(SRD_W, 4), 0, mods="offen" + self.nt_w + " lds")

    def wo_dma(self):
        a = self.a
        a.I("s_mul_i32", s(sT2), s(sH), 245760)
        a.I("s_add_u32", s(sT2), s(sT2), s(sJ160))
        self.srd(SRD_W, pWO, sT2, 7864320)
        T = vT + 32
        for k in range(5):
            a.I("v_add_u32", v(T + 5), 64 * k, v(vL))
            a.I("v_mul_u32_u24", v(T + 6), 6554, v(T + 5))
            a.I("v_lshrrev_b32", v(T + 6), 16, v(T + 6))
            a.I("v_mul_u32_u24", v(T + 7), 10, v(T + 6))
            a.I("v_sub_u32", v(T + 7), v(T + 5), v(T + 7))
            a.I("v_mul_u32_u24", v(T + 6), 1280, v(T + 6))
            a.I("v_lshl_add_u32", v(T + k), v(T + 7), 4, v(T + 6))
        lab = self.L("wo")
        a.I("s_mov_b32", s(sT2), LC)
        a.I("s_mov_b32", s(sT3), 0)
        a.label(lab)
        for k in range(5):
            a.I("s_add_u32", "m0", s(sT2), 1024 * k)
            a.I("buffer_load_dwordx4", v(T + k), s(SRD_W, 4), s(sT3), mods="offen" + self.nt_w + " lds")
        a.I("s_add_u32", s(sT2), s(sT2), 5120)
        a.I("s_add_u32", s(sT3), s(sT3), 32 * 1280)
        a.I("s_cmp_lt_u32", s(sT2), LC + 30720)
        a.I("s_cbranch_scc1", lab)

    def gud_dma(self):
        a = self.a
        l6, l7, le = self.L("g6"), self.L("g7"), self.L("ge")
        a.I("s_mul_i32", s(sT2), s(sJ), 245760)
        a.I("s_mul_i32", s(sT3), s(sH), 96)
        a.I("s_add_u32", s(sT2), s(sT2), s(sT3))
        a.I("s_cmp_eq_u32", s(sW), 6)
        a.I("s_cbranch_scc1", l6)
        a.I("s_cmp_eq_u32", s(sW), 7)
        a.I("s_cbranch_scc1", l7)
        self.srd(SRD_W, pWG, sT2, 1966080)
        for k in range(8):
            a.I("s_mov_b32", s(sT0), k)
            self.rowblock_dma(sT0, 6, 3072, 10923, LA, clampP=479)
        a.I("s_branch", le)
        a.label(l6)
        self.srd(SRD_W, pWU, sT2, 1966080)
        for k in range(8):
            a.I("s_mov_b32", s(sT0), k)
            self.rowblock_dma(sT0, 6, 3072, 10923, LA + 8192, clampP=479)
        a.I("s_branch", le)
        a.label(l7)
        a.I("s_mul_i32", s(sT2), s(sH), 61440)
        a.I("s_add_u32", s(sT2), s(sT2), s(sJ160))
        self.srd(SRD_W, pWD, sT2, 1966080)
        for k in range(8):
            a.I("s_mov_b32", s(sT0), k)
            self.rowblock_dma(sT0, 10, 1280, 6554, LA + 16384, clampP=479)
        a.label(le)

    def v_frags(self, p, T=vT + 12):
        a = self.a
        self.tr_base(T, 384, swz=True)
        a.I("s_mul_i32", s(sT0), s(sW), 12288)
        a.I("s_add_u32", s(sT0), s(sT0), LB + 6144 * p)
        a.I("v_add_u32", v(T), s(sT0), v(T))
        for t in range(1, 4):
            a.I("v_xor_b32", v(T + t), 32 * t, v(T))
        return T

    def v_frag_reads(self, T, p):
        for t in range(4):
            for hi in range(3):
                tile = 4 * hi + t
                self.a.I("ds_read_b64_tr_b16", v(vV + 4 * tile + 2 * p, 2), v(T + t), mods=f"offset:{128 * hi}")

    def attention(self):
        a = self.a
        QA, S4, S, M, PK, O, Ls, F, X = vT, vT + 12, vT + 28, vT + 29, vT + 30, vT + 32, vT + 44, vT + 45, vT
        for l in range(3):
            a.I("ds_read_b128", v(QA + 4 * l, 4), v(vQA), mods=f"offset:{128 * l}")
        a.I("v_mov_b32", v(S), "0xff800000")
        a.wait(lgkm=0)
        for t in range(4):
            for l in range(3):
                a.I("v_mfma_f32_16x16x32_bf16", v(S4 + 4 * t, 4), v(QA + 4 * l, 4), v(vK + 12 * t + 4 * l, 4), 0 if l == 0 else v(S4 + 4 * t, 4))
            if t >= 2:
                tt = t - 2
                a.I("v_add_f32_dpp", v(S), v(S4 + 4 * tt + 1), v(S4 + 4 * tt), mods=f"row_ror:8 row_mask:{hex(1 << tt)} bank_mask:0x3")
        for tt in (2, 3):
            a.I("v_add_f32_dpp", v(S), v(S4 + 4 * tt + 1), v(S4 + 4 * tt), mods=f"row_ror:8 row_mask:{hex(1 << tt)} bank_mask:0x3")
        self.stamp("qk_1", 1)
        first = True
        for ctrl, row in (("quad_perm:[1,0,3,2]", 0xf), ("quad_perm:[2,3,0,1]", 0xf), ("row_half_mirror", 0xf), ("row_ror:8", 0xf), ("row_bcast:15", 0xa), ("row_bcast:31", 0xc)):
            if first:
                self.dpp("v_max_f32", M, S, S, ctrl, row=row)
                first = False
            else:
                self.dpp("v_max_f32", M, M, M, ctrl, row=row)
        a.I("v_readlane_b32", s(sM), v(M), 63)
        a.I("v_subrev_f32", v(S), s(sM), v(S))
        a.I("v_mov_b32", v(F), s(sM))
        a.I("v_exp_f32", v(S), v(S))
        self.exi(1)
        a.I("ds_write_b32", v(vMXW), v(F))
        self.exec_all()
        self.dpp("v_mov_b32", PK, S, None, "row_shl:1")
        a.I("v_cvt_pk_bf16_f32", v(PK), v(S), v(PK))
        a.I("v_mov_b32", v(Ls), v(S))
        lab = self.L("v1")
        self.if_pair0(lab)
        self.handshake()
        T = self.v_frags(1)
        self.stamp("softmax0")
        self.loader(lambda: a.wait(vm=30))
        a.I("s_barrier")
        self.stamp("v_landed")
        self.v_frag_reads(T, 1)
        a.wait(lgkm=0)
        a.label(lab)
        for g2 in range(4):
            for i in range(4):
                a.I("v_mov_b32_dpp", v(vPA + 4 * g2 + i), v(PK), mods=f"row_newbcast:{2 * i} row_mask:0xf bank_mask:{hex(1 << g2)}")
            for i in range(3):
                a.I("v_mfma_f32_16x16x32_bf16", v(O + 4 * i, 4), v(vPA + 4 * g2, 4), v(vV + 4 * (4 * i + g2), 4), 0 if g2 == 0 else v(O + 4 * i, 4))
        self.stamp("pv_iss1", 1)
        a.wait(lgkm=0)
        a.I("s_barrier")
        self.stamp("B4_1", 1)
        a.I("v_mov_b32", v(vT + 46), MXL)
        a.I("ds_read_b128", v(X, 4), v(vT + 46))
        a.I("ds_read_b128", v(X + 4, 4), v(vT + 46), mods="offset:16")
        lab = self.L("ff")
        self.if_pair0(lab)
        a.I("ds_read_b32", v(vT + 47), v(vT + 46), mods=f"offset:{FSL - MXL}")
        a.wait(lgkm=0)
        a.I("v_readfirstlane_b32", s(sFast), v(vT + 47))
        a.label(lab)
        for ctrl, row in (("quad_perm:[1,0,3,2]", 0xf), ("quad_perm:[2,3,0,1]", 0xf), ("row_half_mirror", 0xf), ("row_ror:8", 0xf), ("row_bcast:15", 0xa), ("row_bcast:31", 0xc)):
            self.dpp("v_add_f32", Ls, Ls, Ls, ctrl, row=row)
        a.wait(lgkm=0)
        a.I("v_max3_f32", v(X), v(X), v(X + 1), v(X + 2))
        a.I("v_max3_f32", v(X + 3), v(X + 3), v(X + 4), v(X + 5))
        a.I("v_max3_f32", v(X), v(X), v(X + 6), v(X + 7))
        a.I("v_max_f32", v(X), v(X), v(X + 3))
        a.I("v_sub_f32", v(F), v(F), v(X))
        a.I("v_exp_f32", v(F), v(F))
        for i in range(3):
            a.I("v_mul_f32", v(O + 4 * i), v(O + 4 * i), v(F))
        a.I("v_mul_f32", v(Ls), v(Ls), v(F))
        self.stamp("pre_add1", 1)
        for i in range(3):
            a.I("ds_write_b32", v(vOAC), v(O + 4 * i), mods=f"offset:{256 * i}")
        self.ex(m63)
        a.I("ds_write_b32", v(vMXW), v(Ls), mods=f"offset:{LSL - MXL}")
        self.exec_all()
        a.wait(lgkm=0)
        a.I("s_barrier")
        self.stamp("B5_1", 1)
        R = vT
        l_skip, l_ml = self.L("fc"), self.L("ml")
        self.if_wave(0, 3, l_ml)
        for w2 in range(8):
            a.I("ds_read_b32", v(R + w2), v(vORD + (w2 >= 5)), mods=f"offset:{12288 * (w2 if w2 < 5 else w2 - 5)}")
        a.wait(lgkm=0 if self.stamps else 4)
        a.I("v_add_f32", v(R), v(R), v(R + 1))
        a.I("v_add_f32", v(R + 2), v(R + 2), v(R + 3))
        a.wait(lgkm=0)
        a.I("v_add_f32", v(R + 4), v(R + 4), v(R + 5))
        a.I("v_add_f32", v(R + 6), v(R + 6), v(R + 7))
        a.I("v_add_f32", v(R), v(R), v(R + 2))
        a.I("v_add_f32", v(R + 4), v(R + 4), v(R + 6))
        a.I("v_add_f32", v(R), v(R), v(R + 4))
        self.dpp("v_mov_b32", R + 1, R, None, "row_shl:1")
        a.I("v_cvt_pk_bf16_f32", v(R + 2), v(R), v(R + 1))
        self.dpp("v_mov_b32", R + 3, R + 2, None, "row_shl:2")
        a.I("v_min_u32", v(R + 2), "0xfffffffe", v(R + 2))
        a.I("v_min_u32", v(R + 3), "0xfffffffe", v(R + 3))
        self.ex(mQ0)
        self.store8("buffer_store_dwordx2", v(R + 2, 2), v(vOPUB), s(sPO))
        self.exec_all()
        a.I("s_branch", l_skip)
        a.label(l_ml)
        self.if_wave(3, 4, l_skip)
        a.I("v_mov_b32", v(R + 12), LSL)
        a.I("ds_read_b128", v(R + 4, 4), v(R + 12))
        a.I("ds_read_b128", v(R + 8, 4), v(R + 12), mods="offset:16")
        a.I("v_mov_b32", v(R), v(X))
        a.I("v_mov_b32", v(R + 13), s(sOwn))
        a.wait(lgkm=0)
        for i in range(0, 8, 2):
            a.I("v_add_f32", v(R + 4 + i), v(R + 4 + i), v(R + 5 + i))
        a.I("v_add_f32", v(R + 4), v(R + 4), v(R + 6))
        a.I("v_add_f32", v(R + 8), v(R + 8), v(R + 10))
        a.I("v_add_f32", v(R + 1), v(R + 4), v(R + 8))
        self.exi(1)
        self.store8("buffer_store_dwordx2", v(R, 2), v(R + 13), s(sPO), mods="offset:384")
        self.exec_all()
        a.label(l_skip)
        self.stamp("o_pub0", 0)
        self.stamp("o_pub1", 1)

    def wo_frags(self, T=vT + 44):
        a = self.a
        self.tr_base(T, 160)
        a.I("s_lshl_b32", s(sT0), s(sW), 5)
        a.I("s_add_u32", s(sT0), s(sT0), LC)
        a.I("v_add_u32", v(T), s(sT0), v(T))
        for st in range(6):
            for p in range(2):
                a.I("ds_read_b64_tr_b16", v(vWT + 4 * st + 2 * p, 2), v(T), mods=f"offset:{160 * (32 * st + 16 * p)}")

    def og_issue(self):
        a = self.a
        a.I("buffer_load_dwordx4", v(vT, 4), v(vOG), s(SRD_WS, 4), s(sPO), mods="offen sc1")
        a.I("buffer_load_dwordx2", v(vT + 4, 2), v(vOML), s(SRD_WS, 4), s(sPO), mods="offen offset:384 sc1")

    def o_phase(self):
        a = self.a
        B, ML, D = vT, vT + 24, vT + 28
        Mx, W, U = vT + 33, vT + 34, vT + 36
        l_ng, l_w, l_r, l_skip2 = [self.L(x) for x in ("o_ng", "o_w", "o_r", "o_s2")]
        self.if_wave(5, 8, l_ng)
        a.I("v_lshrrev_b32", v(vT + 8), 3, v(vL))
        a.I("v_lshlrev_b32", v(vT + 8), 3, v(vT + 8))
        a.I("v_add_u32", v(vT + 8), MLS, v(vT + 8))
        self.delay("o")
        self.og_issue()
        self.stamp("o_iss1", 1)
        a.label(l_w)
        a.wait(vm=0)
        self.stamp("o_ret1", 1)
        self.maxtree(list(range(vT, vT + 6)), vT + 7)
        self.branch_if_invalid(vT + 7, l_r)
        a.I("ds_write_b128", v(vOSW), v(vT, 4))
        a.I("ds_write_b64", v(vT + 8), v(vT + 4, 2))
        self.stamp("o_ok0", 0)
        self.stamp("o_ok1", 1)
        self.tail_retry.append((l_r, lambda: self.og_issue(), l_w))
        l_pf = self.L("o_pf")
        a.I("s_branch", l_pf)
        a.label(l_ng)
        self.if_pair1(l_pf)
        self.wo_frags()
        a.label(l_pf)
        lab = self.L("o_wl")
        self.if_pair0(lab)
        self.loader(lambda: a.wait(vm=0))
        a.label(lab)
        self.log_retries(1)
        a.wait(lgkm=0)
        a.I("s_barrier")
        self.stamp("Bo0", 0)
        self.stamp("Bo1", 1)
        lab, l_x = self.L("o_p0"), self.L("o_x")
        self.if_pair0(lab)
        self.if_wave(5, 8, l_x)
        self.gud_dma()
        a.I("s_branch", l_skip2)
        a.label(l_x)
        self.wo_frags()
        a.label(lab)
        self.if_wave(0, 5, l_skip2)
        for st in range(6):
            a.I("ds_read_b128", v(B + 4 * st, 4), v(vOSR), mods=f"offset:{64 * st}")
        a.I("ds_read_b64", v(ML, 2), v(vMLR))
        a.wait(lgkm=0)
        for st in range(6):
            a.I("v_mfma_f32_16x16x32_bf16", v(D, 4), v(vWT + 4 * st, 4), v(B + 4 * st, 4), 0 if st == 0 else v(D, 4))
            if st == 0:
                self.dpp("v_max_f32", Mx, ML, ML, self.BF8[0])
            if st == 1:
                self.dpp("v_max_f32", Mx, Mx, Mx, self.BF8[1])
            if st == 2:
                self.dpp("v_max_f32", Mx, Mx, Mx, self.BF8[2])
            if st == 3:
                a.I("v_sub_f32", v(W), v(ML), v(Mx))
            if st == 4:
                a.I("v_exp_f32", v(W), v(W))
        a.I("v_mul_f32", v(Mx), v(W), v(ML + 1))
        self.bfly8("v_add_f32", [Mx])
        a.I("v_rcp_f32", v(Mx), v(Mx))
        a.I("v_mul_f32", v(W), v(W), v(Mx))
        for i in range(4):
            a.I("v_mul_f32", v(D + i), v(D + i), v(W))
        a.I("v_add_f32_dpp", v(U), v(D), v(D), mods="row_shl:4 row_mask:0xf bank_mask:0x5")
        a.I("v_add_f32_dpp", v(U + 1), v(D + 1), v(D + 1), mods="row_shl:4 row_mask:0xf bank_mask:0x5")
        a.I("v_add_f32_dpp", v(U), v(D + 2), v(D + 2), mods="row_shr:4 row_mask:0xf bank_mask:0xa")
        a.I("v_add_f32_dpp", v(U + 1), v(D + 3), v(D + 3), mods="row_shr:4 row_mask:0xf bank_mask:0xa")
        for ctrl in ("quad_perm:[1,0,3,2]", "quad_perm:[2,3,0,1]"):
            self.dpp("v_add_f32", U, U, U, ctrl)
            self.dpp("v_add_f32", U + 1, U + 1, U + 1, ctrl)
        self.ex(mY)
        a.I("buffer_store_dwordx2", v(U, 2), v(vYP), s(SRD_WS, 4), s(sPY), mods="offen sc1")
        self.exec_all()
        self.stamp("y_pub0", 0)
        self.stamp("y_pub1", 1)
        a.label(l_skip2)

    def xg_issue(self, soff):
        a = self.a
        A = vT
        a.I("buffer_load_dwordx4", v(A, 4), v(vYG), s(SRD_WS, 4), s(soff), mods="offen sc1")
        a.I("buffer_load_dwordx4", v(A + 4, 4), v(vYG), s(SRD_WS, 4), s(soff), mods="offen offset:1024 sc1")

    def x_gather(self, soff, key, tag):
        a = self.a
        A = vT
        l_w, l_r = self.L("x_w"), self.L("x_r")
        self.delay(key)
        self.xg_issue(soff)
        self.stamp(tag + "_iss1", 1)
        a.label(l_w)
        a.wait(vm=0)
        self.stamp(tag + "_ret1", 1)
        chk, r01, r23, r = vT + 11, vT + 8, vT + 9, vT + 10
        self.maxtree(list(range(A, A + 8)), chk)
        for i in range(4):
            a.I("v_add_f32", v(A + i), v(A + i), v(A + 4 + i))
        self.branch_if_invalid(chk, l_r)
        a.I("v_add_f32_dpp", v(r01), v(A), v(A), mods="row_ror:8 row_mask:0xf bank_mask:0x3")
        a.I("v_add_f32_dpp", v(r23), v(A + 2), v(A + 2), mods="row_ror:8 row_mask:0xf bank_mask:0x3")
        a.I("v_add_f32_dpp", v(r01), v(A + 1), v(A + 1), mods="row_ror:8 row_mask:0xf bank_mask:0xc")
        a.I("v_add_f32_dpp", v(r23), v(A + 3), v(A + 3), mods="row_ror:8 row_mask:0xf bank_mask:0xc")
        a.I("v_add_f32_dpp", v(r), v(r01), v(r01), mods="row_shl:4 row_mask:0xf bank_mask:0x5")
        a.I("v_add_f32_dpp", v(r), v(r23), v(r23), mods="row_shr:4 row_mask:0xf bank_mask:0xa")
        self.dpp("v_add_f32", r, r, r, "quad_perm:[1,0,3,2]")
        self.dpp("v_add_f32", r, r, r, "quad_perm:[2,3,0,1]")
        a.I("v_add_f32", v(r), v(r), v(vXR))
        self.stamp(tag + "0", 0)
        self.stamp(tag + "1", 1)
        self.tail_retry.append((l_r, lambda: self.xg_issue(soff), l_w))
        return r

    def gu_tr_addr(self):
        a = self.a
        T = vT + 44
        self.tr_base(T, 96)
        a.I("s_cmp_ge_u32", s(sW), 3)
        a.I("s_cselect_b32", s(sT0), 8192 - 96, 0)
        a.I("s_lshl_b32", s(sT1), s(sW), 5)
        a.I("s_add_u32", s(sT0), s(sT0), s(sT1))
        a.I("s_add_u32", s(sT0), s(sT0), LA)
        a.I("v_add_u32", v(T), s(sT0), v(T))
        a.I("v_mov_b32", v(vWT + 10), 0)
        a.I("v_mov_b32", v(vWT + 11), 0)
        return T

    def gu_phase(self):
        a = self.a
        B, D, T, R = vT, vT + 16, vT + 44, vT + 24
        l_skip, l7, l_st = self.L("gu_s"), self.L("gu_7"), self.L("gu_st")
        self.if_wave(0, 6, l7)
        for st in range(3):
            for p in range(2):
                if st == 2 and p == 1:
                    continue
                a.I("ds_read_b64_tr_b16", v(vWT + 4 * st + 2 * p, 2), v(T), mods=f"offset:{96 * (32 * st + 16 * p)}")
        self.read_xfrags(B)
        a.wait(lgkm=0)
        for st in range(3):
            a.I("v_mfma_f32_16x16x32_bf16", v(D, 4), v(vWT + 4 * st, 4), v(B + 4 * st, 4), 0 if st == 0 else v(D, 4))
        self.ex(sT4)
        a.nop(7)
        self.store8("buffer_store_dwordx4", v(D, 4), v(vGPUB), s(sPG))
        self.exec_all()
        a.I("s_branch", l_skip)
        a.label(l7)
        self.if_wave(7, 8, l_skip)
        self.stats_read(R)
        a.wait(lgkm=0)
        self.stats_publish(R, sPG, 768)
        a.label(l_skip)

    def gg_issue(self, pair):
        a = self.a
        A = vT
        offs = (0, 192) if pair else (0, 192, 384, 576)
        for k, off in enumerate(offs):
            a.I("buffer_load_dwordx4", v(A + 4 * k, 4), v(vGG), s(SRD_WS, 4), s(sPG), mods=f"offen offset:{off} sc1")
        a.I("buffer_load_dwordx2", v(A + 16, 2), v(vSG), s(SRD_WS, 4), s(sPG), mods="offen offset:768 sc1")

    def gg_finish(self, pair, l_r):
        a = self.a
        A, S = vT, vT + 16
        chk, G, U, mean, rstd, t = vT + 18, vT + 19, vT + 20, vT + 21, vT + 22, vT + 23
        n = 8 if pair else 16
        self.maxtree(list(range(A, A + n)) + [S, S + 1], chk)
        self.branch_if_invalid(chk, l_r)
        if pair == 0:
            for base, out in ((A + 8, vCG), (A + 12, vCU)):
                self.rr4_a(base); self.rr4_b(base); self.rr4_c(base); self.rr4_d(base, out)
                self.dpp("v_add_f32", out, out, out, "row_ror:8")
        self.rr4_a(A); self.rr4_a(A + 4)
        self.dpp("v_add_f32", S, S, S, self.BF8[0]); self.dpp("v_add_f32", S + 1, S + 1, S + 1, self.BF8[0])
        self.rr4_b(A); self.rr4_b(A + 4)
        self.dpp("v_add_f32", S, S, S, self.BF8[1]); self.dpp("v_add_f32", S + 1, S + 1, S + 1, self.BF8[1])
        self.rr4_c(A); self.rr4_c(A + 4)
        self.dpp("v_add_f32", S, S, S, self.BF8[2]); self.dpp("v_add_f32", S + 1, S + 1, S + 1, self.BF8[2])
        self.rr4_d(A, G); self.rr4_d(A + 4, U)
        a.I("v_mul_f32", v(mean), hex(f2u(1.0 / 640)), v(S))
        a.I("v_mul_f32", v(t), hex(f2u(1.0 / 640)), v(S + 1))
        self.dpp("v_add_f32", G, G, G, "row_ror:8")
        self.dpp("v_add_f32", U, U, U, "row_ror:8")
        a.I("v_fma_f32", v(t), f"-v{mean}", v(mean), v(t))
        a.I("v_max_f32", v(t), 0, v(t))
        a.I("v_add_f32", v(t), hex(f2u(1e-5)), v(t))
        a.I("v_fma_f32", v(G), f"-v{mean}", v(vCG), v(G))
        a.I("v_fma_f32", v(U), f"-v{mean}", v(vCU), v(U))
        a.I("v_rcp_f32", v(rstd), v(t))
        a.I("v_mul_f32", v(G), v(G), v(U))
        a.I("v_mul_f32", v(G), v(G), v(rstd))
        a.I("v_cvt_pk_bf16_f32", v(G), v(G), v(G))
        a.I("ds_write_b16", v(vHW), v(G))

    def wd_prefetch(self):
        a = self.a
        T = vT + 44
        self.tr_base(T, 160)
        a.I("s_lshl_b32", s(sT0), s(sW), 5)
        a.I("s_add_u32", s(sT0), s(sT0), LA + 16384)
        a.I("v_add_u32", v(T), s(sT0), v(T))
        for st, p in ((0, 0), (0, 1), (1, 0)):
            a.I("ds_read_b64_tr_b16", v(vWT + 4 * st + 2 * p, 2), v(T), mods=f"offset:{160 * (32 * st + 16 * p)}")
        a.I("v_mov_b32", v(vWT + 6), 0)
        a.I("v_mov_b32", v(vWT + 7), 0)
        a.I("v_mov_b32", v(vT + 6), 0)
        a.I("v_mov_b32", v(vT + 7), 0)

    def g_gather(self):
        a = self.a
        l_skip, l_pf, l_p1, l_j = self.L("gg_s"), self.L("gg_pf"), self.L("gg_p1"), self.L("gg_j")
        self.if_wave(6, 8, l_pf)
        self.delay("g")
        for pair in (0, 1):
            l_w, l_r = self.L("gg_w"), self.L("gg_r")
            if pair == 0:
                self.if_pair0(l_p1)
            else:
                a.label(l_p1)
            self.gg_issue(pair)
            a.label(l_w)
            a.wait(vm=0)
            self.gg_finish(pair, l_r)
            self.stamp(f"gg_ok{pair}")
            self.tail_retry.append((l_r, (lambda p=pair: self.gg_issue(p)), l_w))
            a.I("s_branch", l_j)
        a.label(l_pf)
        self.if_wave(0, 5, l_j)
        self.wd_prefetch()
        a.label(l_j)
        self.log_retries(3)
        a.wait(lgkm=0)
        a.I("s_barrier")

    def d_phase(self):
        a = self.a
        B, D = vT, vT + 16
        l_skip = self.L("d_s")
        self.if_wave(0, 5, l_skip)
        for st, p in ((0, 0), (0, 1), (1, 0)):
            a.I("ds_read_b64", v(B + 4 * st + 2 * p, 2), v(vHB), mods=f"offset:{64 * st + 32 * p}")
        a.wait(lgkm=0)
        for st in range(2):
            a.I("v_mfma_f32_16x16x32_bf16", v(D, 4), v(vWT + 4 * st, 4), v(B + 4 * st, 4), 0 if st == 0 else v(D, 4))
        self.ex(mN0)
        a.nop(7)
        a.I("buffer_store_dwordx4", v(D, 4), v(vDP), s(SRD_WS, 4), s(sPD), mods="offen sc1")
        self.exec_all()
        a.label(l_skip)

    def set_pair_offsets(self):
        a = self.a
        a.I("s_mul_i32", s(sPQ), s(sP), QB[1])
        a.I("s_lshl_b32", s(sPO), s(sP), 9)
        a.I("s_add_u32", s(sPO), s(sPO), OB[0])
        a.I("s_lshl_b32", s(sPG), s(sP), 10)
        a.I("s_add_u32", s(sPG), s(sPG), GB[0])
        a.I("s_mul_i32", s(sPY), s(sP), 2 * YPK)
        a.I("s_add_u32", s(sPD), s(sPY), YPK)

    def build(self):
        a = self.a
        self.tail_retry = []
        if self.stamps and (self.stamp_sel is None or "start" in self.stamp_sel):
            pass
        self.prologue()
        self.set_pair_offsets()
        l_qj = self.L("qgJ")
        self.layer1_load()
        self.q_gather0_finish(l_qj)
        a.label("L_pair")
        l_skip = self.L("xs")
        self.if_wave(0, 5, l_skip)
        self.x_write(vT + 10)
        a.label(l_skip)
        a.I("v_mov_b32", v(vT + 10), 0)
        a.I("v_mov_b32", v(vT + 11), 0)
        self.pub_mask()
        a.wait(lgkm=0)
        a.I("s_barrier")
        self.stamp("B2_1")
        self.q_phase1()
        self.stamp("q_pub1")
        self.q_gather1(l_qj)
        a.label(l_qj)
        self.log_retries(0)
        a.wait(lgkm=0)
        a.I("s_barrier")
        self.stamp("B3_0", 0)
        self.stamp("B3_1", 1)
        self.attention()
        self.o_phase()
        l_skip, l_w = self.L("xs2"), self.L("xw")
        lg = self.L("gua")
        self.if_wave(0, 6, lg)
        self.gu_tr_addr()
        a.label(lg)
        self.if_wave(0, 5, l_w)
        r = self.x_gather(sPY, "y", "yg_ok")
        self.x_write(r)
        a.I("s_branch", l_skip)
        a.label(l_w)
        a.wait(vm=0)
        a.label(l_skip)
        self.log_retries(2)
        a.I("v_mov_b32", v(vT + 10), 0)
        a.I("v_mov_b32", v(vT + 11), 0)
        self.pub_mask()
        a.wait(lgkm=0)
        a.I("s_barrier")
        self.stamp("B6_1", 1)
        self.gu_phase()
        self.stamp("g_pub1", 1)
        self.g_gather()
        self.stamp("B7_1", 1)
        self.d_phase()
        self.stamp("d_pub0", 0)
        self.stamp("d_pub1", 1)
        l_fin = self.L("fin")
        a.I("s_cmp_eq_u32", s(sP), 1)
        a.I("s_cbranch_scc1", l_fin)
        l_skip = self.L("xs3")
        self.if_wave(0, 5, l_skip)
        r = self.x_gather(sPD, "d", "dg_ok")
        assert r == vT + 10
        a.label(l_skip)
        self.log_retries(4)
        a.I("s_mov_b32", s(sP), 1)
        self.set_pair_offsets()
        a.I("s_branch", "L_pair")
        a.label(l_fin)
        a.I("s_cmp_lg_u32", s(sH), 0)
        a.I("s_cbranch_scc1", "L_dump")
        self.if_wave(0, 5, "L_dump")
        self.srd(SRD_X, pOUT, sJ160, 1280)
        a.I("v_subrev_u32", v(vT + 13), XB, v(vXW))
        r = self.x_gather(sPD, "d", "fin_ok")
        a.I("v_cvt_pk_bf16_f32", v(r), v(r), v(r))
        self.ex(mQ0)
        a.I("buffer_store_short", v(r), v(vT + 13), s(SRD_X, 4), 0, mods="offen")
        self.exec_all()
        self.log_retries(4)
        lab = self.L("ep")
        a.I("s_or_b32", s(sT0), s(sJ), s(sW))
        a.I("s_cmp_lg_u32", s(sT0), 0)
        a.I("s_cbranch_scc1", lab)
        a.I("v_mov_b32", v(vT), s(sTag))
        a.I("v_mov_b32", v(vT + 1), hex(EPOCH))
        self.exi(1)
        a.I("buffer_store_dword", v(vT), v(vT + 1), s(SRD_WS, 4), 0, mods="offen sc1")
        self.exec_all()
        a.label(lab)
        a.label("L_dump")
        if self.stamps:
            self.stamp("end")
            a.wait(lgkm=0)
            T = vT
            a.I("v_mov_b32", v(T), 0)
            for k in range(len(self.stamp_names)):
                a.I("v_writelane_b32", v(T), s(STAMP_SLOTS[k]), k)
            a.I("v_writelane_b32", v(T), s(sTmo), 14)
            a.I("v_writelane_b32", v(T), s(sFast), 15)
            a.I("s_lshl_b32", s(sT0), s(2), 3)
            a.I("s_add_u32", s(sT0), s(sT0), s(sW))
            a.I("s_lshl_b32", s(sT0), s(sT0), 7)
            a.I("s_add_u32", s(sT0), s(sT0), hex(DBGBASE))
            a.I("v_lshlrev_b32", v(T + 1), 2, v(vL))
            a.I("v_add_u32", v(T + 1), s(sT0), v(T + 1))
            a.I("s_mov_b64", "exec", "0xffff")
            a.I("buffer_store_dword", v(T), v(T + 1), s(SRD_WS, 4), 0, mods="offen")
            a.I("buffer_store_dword", v(vDBG), v(T + 1), s(SRD_WS, 4), 0, mods="offen offset:64")
            self.exec_all()
        a.label("L_end")
        a.I("s_endpgm")
        for (lab, fn, back) in self.tail_retry:
            a.label(lab)
            fn()
            self.retry(back)
        for (lab, op, data, vaddr, soff, mods, back) in self.ool:
            a.label(lab)
            a.I(op, data, vaddr, s(SRD_WS, 4), soff, mods=mods)
            a.I("s_branch", back)
        return a.fix()

    def text(self):
        hdr = open(os.path.join(os.path.dirname(os.path.abspath(__file__)), "header.txt")).read()
        body = self.a.text()
        return f"""{hdr}; @launch grid=(256,1,1) block=(512,1,1) lds={LDS_BYTES}
.amdgcn_target "amdgcn-amd-amdhsa--gfx950"
.text
.globl {KNAME}
.p2align 8
.type {KNAME},@function
{KNAME}:
{body}.section .rodata,"a"
.p2align 6
.amdhsa_kernel {KNAME}
  .amdhsa_next_free_vgpr 256
  .amdhsa_next_free_sgpr 102
  .amdhsa_accum_offset 256
  .amdhsa_group_segment_fixed_size 0
  .amdhsa_kernarg_size 96
  .amdhsa_user_sgpr_count 2
  .amdhsa_user_sgpr_kernarg_segment_ptr 1
  .amdhsa_system_sgpr_workgroup_id_x 1
.end_amdhsa_kernel
"""


def make(**kw):
    g = Gen(**kw)
    g.build()
    return g, g.text()


if __name__ == "__main__":
    out = sys.argv[1] if len(sys.argv) > 1 else "interleave_layers__sliding_block_cached__glu_gated_bilinear__decode.s"
    kw = {}
    for x in sys.argv[2:]:
        k, val = x.split("=")
        kw[k] = int(val)
    g, t = make(**kw)
    open(out, "w").write(t)
    print("instructions:", g.a.count(), "stamps:", g.stamp_names)
```

```python
import sys, os, struct
sys.path.insert(0, os.path.dirname(os.path.abspath(__file__)))
from asmlib import Asm, v, s

KNAME = "interleave_layers__sliding_block_cached__glu_gated_bilinear__decode_kernel"

LA = 0
LB = 30720
LC = 129024
LM = 159744
XB = LM
ONES = LM + 192
QBL = LM + 384
HBL = LM + 768
MXL = LM + 896
FSL = LM + 928
LSL = LM + 960
OST = LB + 1024
MLS = OST + 3200
LDS_BYTES = 163840

SLOT = 8192
QB = [0, 3328]
OB = [4224, 4736]
GB = [5248, 6272]
CLR0, CLRN = 3328, 4
EPOCH = 0x3F0000
YBASE = 0x200000
YPK = 81920
WS_BYTES = 0x400000
DBGBASE = 0x300000

sH, sJ, sW, sP = 4, 5, 6, 7
SRD_WS, SRD_DBG, SRD_K, SRD_V, SRD_W, SRD_X = 8, 12, 16, 20, 24, 28
mN0, mN01, mQ0, mY, mN8, m63 = 32, 34, 36, 38, 40, 42
sOwn, sG8, sFast, sTmo, sM, sPQ, sPO, sPG, sPY, sPD = 44, 45, 46, 47, 48, 49, 50, 51, 52, 53
sT0, sT1, sT2, sT3, sT4, sT5, sT6, sT7 = 54, 55, 56, 57, 58, 59, 60, 61
sJ160 = 62
sTag = 63
HSR = [16, 17, 18, 19, 28, 29, 30, 31]
sKA = 64
pX, pK, pV, pWQ, pWO, pWG, pWU, pWD, pOUT, pDBG, pWS = 64, 66, 68, 70, 72, 76, 78, 80, 82, 84, 86
STAMP_SLOTS = [88, 90, 92, 94, 96, 98, 100, 64, 66, 68, 70, 74, 84, 86]

vL, vG, vN = 1, 2, 3
vXB, vXW, vYG, vYP, vDP, vQG, vSG, vOG, vGG = 4, 5, 6, 7, 8, 9, 10, 11, 12
vXR, vCQ, vCG, vCU = 13, 14, 15, 16
vQPUB, vGPUB, vQA = 17, 18, 19
vT = 20
vQW, vHW, vHB, vOAC, vOPUB, vMXW, vVOF, vORD, vDBG = 68, 69, 70, 71, 72, 73, 74, 77, 79
vPA = 80
vWT = 96
vWQ = 120
vOML, vOSW, vOSR, vMLR = 156, 157, 158, 159
vXF = 96
vV = 160
vK = 208

SENT = -1
LOG2E = 1.4426950408889634
QSCALE = (192.0 ** -0.5) * LOG2E


def f2u(x):
    return struct.unpack("<I", struct.pack("<f", x))[0]


LOADER = 4


class Gen:
    def __init__(self, nt_kv=True, nt_w=False, stamps=False, d_q=0, d_o=0, d_y=0, d_g=0, d_d=0, force_slow=False,
                 tmo=0x40000, stamp_sel=None, rt=True, rsleep=0, clr_late=1, d_q0=0, warm=1, dbgout=0):
        self.a = Asm()
        self.ool = []
        self.nt_kv = " nt" if nt_kv else ""
        self.nt_w = " nt" if nt_w else ""
        self.stamps = stamps
        self.stamp_names = []
        self.stamp_sel = stamp_sel
        self.rt = rt
        self.d = dict(q=d_q, o=d_o, y=d_y, g=d_g, d=d_d, q0=d_q0)
        self.force_slow = force_slow
        self.tmo = tmo
        self.rsleep = rsleep
        self.clr_late = clr_late
        self.warm = warm
        self.dbgout = dbgout
        self.uid = 0
        self.nretry = 0

    def L(self, base):
        self.uid += 1
        return f"L_{base}_{self.uid}"

    def stamp(self, name, pair=None):
        if not self.stamps or (self.stamp_sel is not None and name not in self.stamp_sel):
            return
        a = self.a
        k = len(self.stamp_names)
        if k >= len(STAMP_SLOTS):
            return
        self.stamp_names.append(name)
        op = "s_memrealtime" if self.rt else "s_memtime"
        if pair is None:
            a.I(op, s(STAMP_SLOTS[k], 2))
        else:
            lab = self.L("st")
            a.I("s_cmp_lg_u32", s(sP), pair)
            a.I("s_cbranch_scc1", lab)
            a.I(op, s(STAMP_SLOTS[k], 2))
            a.label(lab)

    def log_retries(self, hop):
        if not self.stamps:
            return
        a = self.a
        a.I("s_lshl_b32", s(sT7), s(sP), 3)
        a.I("s_add_u32", s(sT7), s(sT7), hop)
        a.I("s_mov_b32", "m0", s(sT7))
        a.I("v_writelane_b32", v(vDBG), s(sTmo), "m0")

    def srd(self, d, lo, off_s, size):
        a = self.a
        if off_s is None:
            a.I("s_mov_b32", s(d), s(lo))
            a.I("s_mov_b32", s(d + 1), s(lo + 1))
            a.I("s_mov_b32", s(d + 2), size)
        else:
            a.I("s_add_u32", s(d), s(lo), s(off_s))
            a.I("s_addc_u32", s(d + 1), s(lo + 1), 0)
            a.I("s_sub_u32", s(d + 2), size, s(off_s))
        a.I("s_mov_b32", s(d + 3), "0x20000")

    def ex(self, mask):
        self.a.I("s_mov_b64", "exec", s(mask, 2) if isinstance(mask, int) and mask >= 32 else mask)

    def exi(self, imm):
        self.a.I("s_mov_b64", "exec", imm)

    def exec_all(self):
        self.a.I("s_mov_b64", "exec", -1)

    def if_wave(self, lo, hi, else_label):
        a = self.a
        if hi - lo == 1:
            a.I("s_cmp_lg_u32", s(sW), lo)
            a.I("s_cbranch_scc1", else_label)
            return
        if lo > 0:
            a.I("s_cmp_lt_u32", s(sW), lo)
            a.I("s_cbranch_scc1", else_label)
        if hi < 8:
            a.I("s_cmp_ge_u32", s(sW), hi)
            a.I("s_cbranch_scc1", else_label)

    def if_pair0(self, else_label):
        self.a.I("s_cmp_lg_u32", s(sP), 0)
        self.a.I("s_cbranch_scc1", else_label)

    def if_pair1(self, else_label):
        self.a.I("s_cmp_eq_u32", s(sP), 0)
        self.a.I("s_cbranch_scc1", else_label)

    def store8(self, op, data, vaddr, soff, mods=""):
        a = self.a
        l_slow, l_done = self.L("slow"), self.L("sd")
        a.I("s_cmp_eq_u32", s(sFast), 0)
        a.I("s_cbranch_scc1", l_slow)
        a.I(op, data, vaddr, s(SRD_WS, 4), soff, mods=("offen " + mods).strip())
        a.label(l_done)
        self.ool.append((l_slow, op, data, vaddr, soff, ("offen " + mods + " sc1").strip(), l_done))

    def retry(self, loop_label):
        a = self.a
        if self.rsleep:
            a.I("s_sleep", self.rsleep)
        a.I("s_add_u32", s(sTmo), s(sTmo), 1)
        a.I("s_cmp_lt_u32", s(sTmo), hex(self.tmo))
        a.I("s_cbranch_scc1", loop_label)
        a.I("s_branch", "L_end")

    def maxtree(self, regs, tmp):
        a = self.a
        regs = list(regs)
        first = True
        while regs:
            if first:
                if len(regs) >= 3:
                    a.I("v_max3_u32", v(tmp), v(regs[0]), v(regs[1]), v(regs[2]))
                    regs = regs[3:]
                else:
                    a.I("v_max_u32", v(tmp), v(regs[0]), v(regs[-1]))
                    regs = []
                first = False
            elif len(regs) >= 2:
                a.I("v_max3_u32", v(tmp), v(tmp), v(regs[0]), v(regs[1]))
                regs = regs[2:]
            else:
                a.I("v_max_u32", v(tmp), v(tmp), v(regs[0]))
                regs = []

    def branch_if_invalid(self, tmp, retry_label):
        a = self.a
        a.I("v_cmp_eq_u32", "vcc", SENT, v(tmp))
        a.I("s_cmp_lg_u64", "vcc", 0)
        a.I("s_cbranch_scc1", retry_label)

    def wait_by_wave(self, counts):
        a = self.a
        done = self.L("wbw")
        vals = sorted(set(counts.values()))
        for val in vals[:-1]:
            nxt, hit = self.L("wbn"), self.L("wbh")
            for w in [w for w, c in counts.items() if c == val]:
                a.I("s_cmp_eq_u32", s(sW), w)
                a.I("s_cbranch_scc1", hit)
            a.I("s_branch", nxt)
            a.label(hit)
            a.wait(vm=val)
            a.I("s_branch", done)
            a.label(nxt)
        a.wait(vm=vals[-1])
        a.label(done)

    def k_addr(self):
        a = self.a
        T = vT + 40
        a.I("v_and_b32", v(T + 2), 3, v(vN))
        a.I("v_bfe_u32", v(T + 3), v(vN), 2, 1)
        a.I("v_mul_u32_u24", v(T), 384, v(T + 2))
        a.I("v_mul_u32_u24", v(T + 3), 3072, v(T + 3))
        a.I("v_add_u32", v(T), v(T), v(T + 3))
        a.I("v_lshrrev_b32", v(T + 3), 3, v(vN))
        a.I("v_lshl_add_u32", v(T + 3), v(T + 3), 2, v(vG))
        a.I("v_and_b32", v(T + 2), 2, v(T + 2))
        a.I("v_xor_b32", v(T + 3), v(T + 3), v(T + 2))
        a.I("v_lshl_add_u32", v(T), v(T + 3), 4, v(T))
        a.I("s_mul_i32", s(sT2), s(sW), 12288)
        a.I("s_add_u32", s(sT2), s(sT2), LB)
        a.I("v_add_u32", v(T), s(sT2), v(T))
        a.I("v_xor_b32", v(T + 1), 64, v(T))
        a.I("v_add_u32", v(T + 1), 1536, v(T + 1))

    def k_frags(self, part):
        T = vT + 40
        for tt in range(2):
            t = 2 * part + tt
            for l in range(3):
                self.a.I("ds_read_b128", v(vK + 12 * t + 4 * l, 4), v(T + tt), mods=f"offset:{6144 * part + 128 * l}")

    def delay(self, key):
        n = self.d[key]
        if n:
            self.a.I("s_sleep", n)

    def dpp(self, op, dst, src0, src1, ctrl, row=0xf, bank=0xf):
        mods = f"{ctrl} row_mask:{hex(row)} bank_mask:{hex(bank)}"
        if src1 is None:
            self.a.I(op + "_dpp", v(dst), v(src0), mods=mods)
        else:
            self.a.I(op + "_dpp", v(dst), v(src0), v(src1), mods=mods)

    BF8 = ("quad_perm:[1,0,3,2]", "quad_perm:[2,3,0,1]", "row_half_mirror")

    def bfly8(self, op, regs):
        for ctrl in self.BF8:
            for r in regs:
                self.dpp(op, r, r, r, ctrl)

    def rr4_a(self, a0):
        a = self.a
        a.I("v_permlane32_swap_b32", v(a0), v(a0 + 1))
        a.I("v_permlane32_swap_b32", v(a0 + 2), v(a0 + 3))

    def rr4_b(self, a0):
        a = self.a
        a.I("v_add_f32", v(a0), v(a0), v(a0 + 1))
        a.I("v_add_f32", v(a0 + 2), v(a0 + 2), v(a0 + 3))

    def rr4_c(self, a0):
        self.a.I("v_permlane16_swap_b32", v(a0), v(a0 + 2))

    def rr4_d(self, a0, out):
        self.a.I("v_add_f32", v(out), v(a0), v(a0 + 2))

    def sigma_row(self, dst, tmp):
        a = self.a
        a.I("v_lshlrev_b32", v(dst), 1, v(vG))
        a.I("v_lshrrev_b32", v(tmp), 1, v(vG))
        a.I("v_and_b32", v(dst), 2, v(dst))
        a.I("v_or_b32", v(dst), v(dst), v(tmp))

    def tr_base(self, dst, pitch, swz=False):
        a = self.a
        a.I("v_lshrrev_b32", v(dst + 1), 2, v(vN))
        a.I("v_lshl_add_u32", v(dst + 1), v(vG), 2, v(dst + 1))
        a.I("v_mul_u32_u24", v(dst), pitch, v(dst + 1))
        if swz:
            a.I("v_and_b32", v(dst + 1), 6, v(dst + 1))
            a.I("v_bfe_u32", v(dst + 2), v(vN), 1, 1)
            a.I("v_xor_b32", v(dst + 1), v(dst + 1), v(dst + 2))
            a.I("v_lshl_add_u32", v(dst), v(dst + 1), 4, v(dst))
            a.I("v_and_b32", v(dst + 2), 1, v(vN))
            a.I("v_lshl_add_u32", v(dst), v(dst + 2), 3, v(dst))
        else:
            a.I("v_and_b32", v(dst + 2), 3, v(vN))
            a.I("v_lshl_add_u32", v(dst), v(dst + 2), 3, v(dst))

    def prologue(self):
        a = self.a
        T = vT
        a.I("s_cmp_ge_u32", s(2), 256)
        a.I("s_cbranch_scc1", "L_end")
        self.stamp("start")
        a.I("s_load_dwordx16", s(sKA, 16), s(0, 2), 0)
        a.I("s_load_dwordx8", s(sKA + 16, 8), s(0, 2), 64)
        a.I("v_readfirstlane_b32", s(sW), v(0))
        a.I("s_and_b32", s(sH), s(2), 7)
        a.I("s_lshl_b32", s(sH), s(sH), 2)
        a.I("s_bfe_u32", s(3), s(2), "0x20003")
        a.I("s_or_b32", s(sH), s(sH), s(3))
        a.I("s_lshr_b32", s(sJ), s(2), 5)
        a.I("s_lshr_b32", s(sW), s(sW), 6)
        a.I("v_and_b32", v(vL), 63, v(0))
        a.I("v_lshrrev_b32", v(vG), 4, v(vL))
        a.I("v_and_b32", v(vN), 15, v(vL))
        a.I("s_lshl_b32", s(sG8), s(sH), 16)
        a.I("s_lshl_b32", s(3), s(sJ), 13)
        a.I("s_add_u32", s(sOwn), s(sG8), s(3))
        a.I("s_mul_i32", s(sJ160), s(sJ), 160)
        for k in range(3):
            P, r, pos, ch = T + 10, T + 11, T + 12, T + 13
            a.I("v_add_u32", v(P), 64 * k, v(vL))
            a.I("v_mul_u32_u24", v(r), 2731, v(P))
            a.I("v_lshrrev_b32", v(r), 16, v(r))
            a.I("v_mul_u32_u24", v(pos), 24, v(r))
            a.I("v_sub_u32", v(pos), v(P), v(pos))
            a.I("v_and_b32", v(ch), 6, v(r))
            a.I("v_xor_b32", v(ch), v(ch), v(pos))
            a.I("v_lshlrev_b32", v(ch), 4, v(ch))
            a.I("v_mul_u32_u24", v(T + 14), 384, v(r))
            a.I("v_add_u32", v(vVOF + k), v(T + 14), v(ch))
            a.I("v_mul_u32_u24", v(T + 14), 12288, v(r))
            a.I("v_add_u32", v(T + 4 + k), v(T + 14), v(ch))
        a.I("s_mul_i32", s(sT6), s(sH), 3145728)
        a.I("s_mul_i32", s(sT3), s(sJ), 98304)
        a.I("s_add_u32", s(sT6), s(sT6), s(sT3))
        a.I("s_add_u32", s(sT6), s(sT6), 2359296)
        a.I("s_mul_i32", s(sT7), s(sJ), 983040)
        a.I("s_mul_i32", s(sT3), s(sH), 384)
        a.I("s_add_u32", s(sT7), s(sT7), s(sT3))
        a.wait(lgkm=0)
        self.stamp("karg")
        self.srd(SRD_WS, pWS, None, hex(WS_BYTES))
        a.I("s_mov_b32", s(sT0), hex(EPOCH))
        a.I("s_load_dword", s(sTag), s(SRD_WS, 2), s(sT0))
        self.srd(SRD_X, pX, sJ160, 1280)
        if not self.clr_late:
            l7 = self.L("p7")
            self.if_wave(7, 8, l7)
            a.I("s_setprio", 3)
            self.clears()
            a.label(l7)
        self.srd(SRD_W, pWQ, sT7, 7864320)
        self.srd(SRD_K, pK, sT6, 100663296)
        lq = self.L("wqe")
        self.if_wave(0, 4, lq)
        for rep in range(3):
            if rep == 2:
                a.I("s_cmp_ge_u32", s(sW), 2)
                a.I("s_cbranch_scc1", lq)
            a.I("s_add_u32", s(sT2), s(sW), 4 * rep)
            a.I("s_mul_i32", s(sT3), s(sT2), 98304)
            a.I("s_mul_i32", s(sT2), s(sT2), 3072)
            for k in range(3):
                a.I("s_add_u32", "m0", s(sT2), LA + 1024 * k)
                a.I("buffer_load_dwordx4", v(T + 4 + k), s(SRD_W, 4), s(sT3), mods="offen" + self.nt_kv + " lds")
        a.label(lq)
        la = self.L("xf")
        self.if_wave(0, 4, la)
        a.I("v_lshlrev_b32", v(T + 12), 3, v(vG))
        for st in range(3):
            for p in range(2):
                if st == 2 and p == 1:
                    continue
                a.I("buffer_load_dwordx2", v(vXF + 4 * st + 2 * p, 2), v(T + 12), s(SRD_X, 4), 0, mods=f"offen offset:{64 * st + 32 * p}")
        a.label(la)
        a.I("s_mul_i32", s(sT3), s(sW), 12288)
        a.I("s_add_u32", s(sT2), s(sT3), LB)
        a.I("s_add_u32", s(sT4), s(sT3), 6144)
        for pos in range(2):
            for k in range(3):
                a.I("s_add_u32", "m0", s(sT2), 3072 * pos + 1024 * k)
                a.I("buffer_load_dwordx4", v(vVOF + k), s(SRD_K, 4), s(sT3 + pos), mods="offen" + self.nt_kv + " lds")
        self.stamp("ka_issued")
        if self.clr_late:
            l7 = self.L("p7")
            self.if_wave(7, 8, l7)
            self.clears()
            a.label(l7)
        self.srd(SRD_V, pV, sT6, 100663296)
        self.srd(SRD_DBG, pDBG, None, 256)
        a.I("s_mov_b32", s(sTmo), 0)
        a.I("s_mov_b32", s(sFast), 0)
        a.I("s_mov_b32", s(sP), 0)

    def x_cols(self):
        a = self.a
        T = vT
        a.I("s_min_u32", s(sT1), s(sW), 4)
        a.I("v_bfe_u32", v(T + 10), v(vL), 2, 2)
        a.I("v_lshlrev_b32", v(T + 11), 1, v(T + 10))
        a.I("v_lshrrev_b32", v(T + 12), 1, v(T + 10))
        a.I("v_and_b32", v(T + 11), 2, v(T + 11))
        a.I("v_or_b32", v(T + 11), v(T + 11), v(T + 12))
        a.I("v_lshl_add_u32", v(T + 11), v(vG), 2, v(T + 11))
        a.I("s_lshl_b32", s(sT2), s(sT1), 4)
        a.I("v_add_u32", v(T + 11), s(sT2), v(T + 11))
        a.I("v_lshlrev_b32", v(T + 30), 1, v(T + 11))
        a.I("v_add_u32", v(vXW), XB, v(T + 30))

    def kv_dma(self, srd, groups, slot):
        a = self.a
        lab = self.L("kv")
        a.I("s_mov_b32", s(sT2), LB + 6144 * slot)
        a.I("s_mov_b32", s(sT3), 3072 * groups[0])
        a.I("s_mov_b32", s(sT4), 3072 * groups[1])
        a.I("s_mov_b32", s(sT5), 0)
        a.label(lab)
        for pos in range(2):
            for k in range(3):
                a.I("s_add_u32", "m0", s(sT2), 3072 * pos + 1024 * k)
                a.I("buffer_load_dwordx4", v(vVOF + k), s(srd, 4), s(sT3 + pos), mods="offen" + self.nt_kv + " lds")
        a.I("s_add_u32", s(sT2), s(sT2), 12288)
        a.I("s_add_u32", s(sT3), s(sT3), 12288)
        a.I("s_add_u32", s(sT4), s(sT4), 12288)
        a.I("s_add_u32", s(sT5), s(sT5), 1)
        a.I("s_cmp_lt_u32", s(sT5), 8)
        a.I("s_cbranch_scc1", lab)

    def wq_dma(self):
        a = self.a
        T = vT
        a.I("s_mul_i32", s(sT2), s(sJ), 983040)
        a.I("s_mul_i32", s(sT3), s(sH), 384)
        a.I("s_add_u32", s(sT2), s(sT2), s(sT3))
        self.srd(SRD_W, pWQ, sT2, 7864320)
        lab = self.L("wq")
        a.I("s_mov_b32", s(sT2), LA)
        a.I("s_mov_b32", s(sT3), 0)
        a.label(lab)
        for k in range(3):
            a.I("s_add_u32", "m0", s(sT2), 1024 * k)
            a.I("buffer_load_dwordx4", v(T + 4 + k), s(SRD_W, 4), s(sT3), mods="offen" + self.nt_kv + " lds")
        a.I("s_add_u32", s(sT2), s(sT2), 3072)
        a.I("s_add_u32", s(sT3), s(sT3), 98304)
        a.I("s_cmp_lt_u32", s(sT2), LA + 30720)
        a.I("s_cbranch_scc1", lab)

    def clears(self):
        a = self.a
        T = vT
        for i in range(4):
            a.I("v_mov_b32", v(T + 16 + i), SENT)
        a.I("v_lshlrev_b32", v(T + 8), 4, v(vL))
        a.I("v_add_u32", v(T + 8), s(sOwn), v(T + 8))
        for k in range(CLRN):
            a.I("s_mov_b32", s(sT2), CLR0 + 1024 * k)
            a.I("buffer_store_dwordx4", v(T + 16, 4), v(T + 8), s(SRD_WS, 4), s(sT2), mods="offen sc1")
        a.I("s_mul_i32", s(sT2), s(sJ), 10240)
        a.I("s_lshl_b32", s(sT3), s(sH), 6)
        a.I("s_add_u32", s(sT2), s(sT2), s(sT3))
        a.I("s_add_u32", s(sT2), s(sT2), hex(YBASE))
        for half in range(2):
            a.I("v_lshrrev_b32", v(T + 10), 2, v(vL))
            if half:
                a.I("v_add_u32", v(T + 10), 16, v(T + 10))
                a.I("v_min_u32", v(T + 10), 19, v(T + 10))
            a.I("v_mul_u32_u24", v(T + 11), 52, v(T + 10))
            a.I("v_lshrrev_b32", v(T + 11), 8, v(T + 11))
            a.I("v_mul_u32_u24", v(T + 12), 5, v(T + 11))
            a.I("v_sub_u32", v(T + 12), v(T + 10), v(T + 12))
            a.I("v_mul_u32_u24", v(T + 11), YPK, v(T + 11))
            a.I("v_lshl_add_u32", v(T + 11), v(T + 12), 11, v(T + 11))
            a.I("v_and_b32", v(T + 12), 3, v(vL))
            a.I("v_lshl_add_u32", v(T + 11), v(T + 12), 4, v(T + 11))
            a.I("v_add_u32", v(T + 11), s(sT2), v(T + 11))
            a.I("buffer_store_dwordx4", v(T + 16, 4), v(T + 11), s(SRD_WS, 4), 0, mods="offen sc1")
        a.I("v_mov_b32", v(T + 40), 0)
        a.I("v_lshlrev_b32", v(T + 41), 2, v(vL))
        a.I("s_mov_b32", s(sT0), -1)
        a.I("s_mov_b32", s(sT1), "0xff")
        a.I("s_mov_b64", "exec", s(sT0, 2))
        a.I("buffer_load_dword", v(T + 40), v(T + 41), s(SRD_X, 4), 0, mods="offen")
        self.exec_all()

    def arrive(self):
        a = self.a
        T = vT
        a.I("s_and_b32", s(sT2), s(2), 7)
        a.I("s_lshl_b32", s(sT2), s(sT2), 5)
        a.I("v_mov_b32", v(T + 10), s(sT2))
        a.I("v_mov_b32", v(T + 11), 1)
        self.stamp("clr_ack")
        self.exi(1)
        a.I("buffer_atomic_add", v(T + 11), v(T + 10), s(SRD_DBG, 4), 0, mods="offen")
        self.exec_all()

    def stats0_publish(self, R):
        a = self.a
        lo, hi = R + 2, R + 3
        a.I("v_lshlrev_b32", v(lo), 16, v(R))
        a.I("v_and_b32", v(hi), "0xffff0000", v(R))
        a.I("v_add_f32", v(R), v(lo), v(hi))
        a.I("v_mul_f32", v(R + 1), v(lo), v(lo))
        a.I("v_fmac_f32", v(R + 1), v(hi), v(hi))
        for ctrl, row in (("quad_perm:[1,0,3,2]", 0xf), ("quad_perm:[2,3,0,1]", 0xf), ("row_half_mirror", 0xf), ("row_mirror", 0xf),
                          ("row_bcast:15", 0xa), ("row_bcast:31", 0xc)):
            self.dpp("v_add_f32", R, R, R, ctrl, row=row)
            self.dpp("v_add_f32", R + 1, R + 1, R + 1, ctrl, row=row)
        P = vT + 4
        a.I("s_getreg_b32", s(sT3), "hwreg(HW_REG_XCC_ID, 0, 4)")
        a.I("v_mov_b32", v(P), v(R))
        a.I("v_mov_b32", v(P + 1), s(sTag))
        a.I("v_mov_b32", v(P + 2), v(R + 1))
        a.I("v_mov_b32", v(P + 3), s(sTag))
        a.I("v_mov_b32", v(P + 4), s(sT3))
        a.I("v_mov_b32", v(P + 5), s(sTag))
        a.I("v_mov_b32", v(P + 6), s(sOwn))
        self.ex(m63)
        a.I("buffer_store_dwordx4", v(P, 4), v(P + 6), s(SRD_WS, 4), 0, mods="offen offset:3072 sc1")
        a.I("buffer_store_dwordx2", v(P + 4, 2), v(P + 6), s(SRD_WS, 4), 0, mods="offen offset:3088 sc1")
        self.exec_all()

    def q0_publish(self):
        a = self.a
        D, P = vT + 16, vT + 28
        a.I("s_mul_i32", s(sT0), s(sW), 384)
        a.I("s_add_u32", s(sT0), s(sT0), s(sOwn))
        a.I("v_lshlrev_b32", v(P + 8), 5, v(vG))
        a.I("v_mul_u32_u24", v(P + 9), 1536, v(vN))
        a.I("v_add3_u32", v(P + 8), v(P + 8), v(P + 9), s(sT0))
        for i in range(4):
            a.I("v_mov_b32", v(P + 2 * i + 1), s(sTag))
        for k in range(3):
            for i in range(4):
                a.I("v_mov_b32", v(P + 2 * i), v(D + 4 * k + i))
            self.ex(mN01)
            a.I("buffer_store_dwordx4", v(P, 4), v(P + 8), s(SRD_WS, 4), 0, mods=f"offen offset:{128 * k} sc1")
            a.I("buffer_store_dwordx4", v(P + 4, 4), v(P + 8), s(SRD_WS, 4), 0, mods=f"offen offset:{128 * k + 16} sc1")
            self.exec_all()

    def loader(self, fn):
        lab = self.L("ld")
        self.if_wave(LOADER, LOADER + 1, lab)
        fn()
        self.a.label(lab)

    def layer1_load(self):
        a = self.a
        B = vT
        self.x_cols()
        a.I("buffer_load_ushort", v(vXR), v(vT + 30), s(SRD_X, 4), 0, mods="offen")
        self.setup2()
        T = vT + 44
        self.tr_base(T, 384, swz=True)
        la = self.L("l1w")
        self.if_wave(0, 4, la)
        a.wait(vm=7)
        self.stamp("wq_ok")
        a.label(la)
        a.wait(lgkm=0)
        a.I("s_add_u32", s(sTag), s(sTag), 1)
        a.I("s_barrier")
        self.stamp("Ba")
        self.loader(lambda: (a.I("s_setprio", 3), self.kv_dma(SRD_K, (1, 3), 1)))
        self.stamp("kb_issued")
        l7 = self.L("l17s")
        self.if_wave(7, 8, l7)
        a.wait(vm=1)
        self.arrive()
        self.stats0_publish(vT + 40)
        a.label(l7)
        la = self.L("l1q")
        self.if_wave(0, 4, la)
        for k in range(3):
            a.I("s_mul_i32", s(sT0), s(sW), 3)
            a.I("s_add_u32", s(sT0), s(sT0), k)
            a.I("s_and_b32", s(sT1), s(sT0), 3)
            a.I("s_lshl_b32", s(sT1), s(sT1), 5)
            a.I("s_lshr_b32", s(sT2), s(sT0), 2)
            a.I("s_lshl_b32", s(sT2), s(sT2), 7)
            a.I("v_xor_b32", v(T + 3), s(sT1), v(T))
            a.I("v_add_u32", v(T + 3), s(sT2), v(T + 3))
            for st in range(3):
                for p in range(2):
                    if st == 2 and p == 1:
                        continue
                    a.I("ds_read_b64_tr_b16", v(vWQ + 12 * k + 4 * st + 2 * p, 2), v(T + 3), mods=f"offset:{LA + 384 * (32 * st + 16 * p)}")
            a.I("v_mov_b32", v(vWQ + 12 * k + 10), 0)
            a.I("v_mov_b32", v(vWQ + 12 * k + 11), 0)
        for i in range(10):
            a.I("v_mov_b32", v(B + i), v(vXF + i))
        self.mask(sT0, 0x0002000200020002)
        a.I("s_mov_b64", "exec", s(sT0, 2))
        for i in range(10):
            a.I("v_mov_b32", v(B + i), "0x3f803f80")
        self.exec_all()
        a.I("v_mov_b32", v(B + 10), 0)
        a.I("v_mov_b32", v(B + 11), 0)
        a.wait(lgkm=0)
        self.q_mfma(publish=False)
        self.q0_publish()
        self.stamp("q_pub0")
        a.label(la)
        self.k_addr()
        self.wait_by_wave({0: 7, 1: 7, 2: 7, 3: 7, 4: 49, 5: 1, 6: 1, 7: 63})
        self.stamp("ka_landed")
        self.k_frags(0)
        a.wait(lgkm=0)
        a.I("s_barrier")
        self.loader(lambda: (self.kv_dma(SRD_V, (0, 1), 0), a.wait(vm=48)))
        l_s = self.L("qg0s")
        self.if_wave(0, 3, l_s)
        self.delay("q0")
        self.qg0_issue()
        self.stamp("qg_iss0")
        a.label(l_s)
        a.I("s_barrier")
        self.stamp("Bc1")
        a.I("v_lshlrev_b32", v(vXR), 16, v(vXR))
        self.k_frags(1)
        a.wait(lgkm=0)
        self.handshake_issue()
        a.I("s_barrier")
        self.loader(lambda: (self.kv_dma(SRD_V, (2, 3), 1), a.wait(vm=48)))
        a.I("s_barrier")
        self.stamp("Be")
        self.loader(lambda: (self.wo_dma(), a.I("s_setprio", 0)))
        if self.warm:
            lw = self.L("warm")
            self.if_wave(6, 7, lw)
            a.I("v_lshlrev_b32", v(vT + 8), 4, v(vL))
            a.I("v_add_u32", v(vT + 8), s(sOwn), v(vT + 8))
            for k in range(CLRN):
                a.I("s_mov_b32", s(sT2), CLR0 + 1024 * k)
                a.I("buffer_load_dwordx4", v(vWT + 4 * k, 4), v(vT + 8), s(SRD_WS, 4), s(sT2), mods="offen sc1")
            a.label(lw)
        T = self.v_frags(0, vT + 44)
        self.v_frag_reads(T, 0)

    def mask(self, m, val):
        self.a.I("s_mov_b32", s(m), hex(val & 0xffffffff))
        self.a.I("s_mov_b32", s(m + 1), hex(val >> 32))

    def setup2(self):
        a = self.a
        T = vT + 24
        self.mask(mN0, 0x0001000100010001)
        self.mask(mN01, 0x0003000300030003)
        self.mask(mQ0, 0x1111111111111111)
        self.mask(mY, 0x0011001100110011)
        self.mask(mN8, 0x00ff00ff00ff00ff)
        self.mask(m63, 1 << 63)
        for i in range(16):
            a.I("v_mov_b32", v(vPA + i), 0)
        if self.stamps:
            a.I("v_mov_b32", v(vDBG), 0)
        a.I("v_lshlrev_b32", v(T), 3, v(vG))
        a.I("v_add_u32", v(vXB), XB, v(T))
        a.I("v_add_u32", v(vHB), HBL, v(T))
        a.I("v_add_u32", v(T + 1), ONES, v(T))
        a.I("v_cmp_eq_u32", "vcc", 1, v(vN))
        a.I("v_cndmask_b32", v(vXB), v(vXB), v(T + 1), "vcc")
        a.I("s_mul_i32", s(sT0), s(sW), 192)
        a.I("s_add_u32", s(sT0), s(sT0), s(sOwn))
        a.I("v_lshlrev_b32", v(T), 4, v(vG))
        a.I("v_mul_u32_u24", v(T + 1), 768, v(vN))
        a.I("v_add3_u32", v(vQPUB), v(T), v(T + 1), s(sT0))
        a.I("s_lshl_b32", s(sT0), s(sW), 6)
        a.I("s_add_u32", s(sT0), s(sT0), s(sOwn))
        a.I("v_mul_u32_u24", v(T + 1), 384, v(vN))
        a.I("v_add3_u32", v(vGPUB), v(T), v(T + 1), s(sT0))
        a.I("v_and_b32", v(T + 1), 1, v(vN))
        a.I("v_lshl_add_u32", v(T + 1), v(T + 1), 6, v(T))
        a.I("v_add_u32", v(vQA), QBL, v(T + 1))
        a.I("s_mul_i32", s(sT0), s(sW), 12288)
        a.I("s_add_u32", s(sT0), s(sT0), LB)
        a.I("v_lshlrev_b32", v(T), 2, v(vL))
        a.I("v_add_u32", v(vOAC), s(sT0), v(T))
        a.I("s_lshl_b32", s(sT0), s(sW), 8)
        a.I("s_add_u32", s(sT0), s(sT0), LB)
        a.I("v_add_u32", v(vORD), s(sT0), v(T))
        a.I("v_add_u32", v(vORD + 1), 12288 * 5, v(vORD))
        a.I("s_lshl_b32", s(sT0), s(sW), 2)
        a.I("s_add_u32", s(sT0), s(sT0), MXL)
        a.I("v_mov_b32", v(vMXW), s(sT0))
        a.I("s_min_u32", s(sT1), s(sW), 4)
        a.I("s_mul_i32", s(sT0), s(sJ), 10240)
        a.I("s_lshl_b32", s(sT2), s(sT1), 11)
        a.I("s_add_u32", s(sT0), s(sT0), s(sT2))
        a.I("s_add_u32", s(sT0), s(sT0), hex(YBASE))
        a.I("v_lshlrev_b32", v(T), 6, v(vN))
        a.I("v_lshl_add_u32", v(T), v(vG), 4, v(T))
        a.I("v_add_u32", v(vYG), s(sT0), v(T))
        a.I("s_lshl_b32", s(sT2), s(sH), 6)
        a.I("s_add_u32", s(sT0), s(sT0), s(sT2))
        a.I("v_lshlrev_b32", v(T), 4, v(vG))
        a.I("v_add_u32", v(vDP), s(sT0), v(T))
        a.I("v_lshrrev_b32", v(T + 1), 2, v(vN))
        a.I("v_lshl_add_u32", v(vYP), v(T + 1), 3, v(vDP))
        a.I("s_lshl_b32", s(sT0), s(sW), 8)
        a.I("s_add_u32", s(sT0), s(sT0), s(sG8))
        a.I("v_lshlrev_b32", v(T), 13, v(vG))
        a.I("v_lshl_add_u32", v(T), v(vN), 4, v(T))
        a.I("v_add_u32", v(vQG), s(sT0), v(T))
        a.I("v_and_b32", v(T), 7, v(vL))
        a.I("v_lshlrev_b32", v(T), 13, v(T))
        a.I("v_add_u32", v(vSG), s(sG8), v(T))
        a.I("v_lshrrev_b32", v(T), 3, v(vL))
        a.I("v_lshlrev_b32", v(T + 1), 13, v(T))
        a.I("v_add_u32", v(vOML), s(sG8), v(T + 1))
        a.I("s_sub_u32", s(sT0), s(sW), 5)
        a.I("s_lshl_b32", s(sT0), s(sT0), 3)
        a.I("v_and_b32", v(T + 2), 7, v(vL))
        a.I("v_add_u32", v(T + 2), s(sT0), v(T + 2))
        a.I("v_lshl_add_u32", v(vOG), v(T + 2), 4, v(vOML))
        a.I("v_mul_u32_u24", v(T + 1), 400, v(T))
        a.I("v_lshl_add_u32", v(T + 1), v(T + 2), 4, v(T + 1))
        a.I("v_add_u32", v(vOSW), OST, v(T + 1))
        a.I("v_and_b32", v(T), 7, v(vN))
        a.I("v_mul_u32_u24", v(T + 1), 400, v(T))
        a.I("v_lshl_add_u32", v(T + 1), v(vG), 4, v(T + 1))
        a.I("v_add_u32", v(vOSR), OST, v(T + 1))
        a.I("v_lshlrev_b32", v(T), 3, v(T))
        a.I("v_add_u32", v(vMLR), MLS, v(T))
        a.I("s_sub_u32", s(sT0), s(sW), 6)
        a.I("s_lshl_b32", s(sT0), s(sT0), 3)
        a.I("v_and_b32", v(T), 7, v(vL))
        a.I("v_add_u32", v(T), s(sT0), v(T))
        a.I("v_min_u32", v(T), 11, v(T))
        a.I("v_lshrrev_b32", v(T + 1), 3, v(vL))
        a.I("v_lshlrev_b32", v(T + 1), 13, v(T + 1))
        a.I("v_lshl_add_u32", v(T + 1), v(T), 4, v(T + 1))
        a.I("v_add_u32", v(vGG), s(sG8), v(T + 1))
        self.sigma_row(T + 2, T + 3)
        a.I("v_lshl_add_u32", v(T), v(T), 2, v(T + 2))
        a.I("v_lshlrev_b32", v(T), 1, v(T))
        a.I("v_add_u32", v(vHW), HBL, v(T))
        a.I("v_lshl_add_u32", v(T), v(vN), 2, v(T + 2))
        a.I("s_lshl_b32", s(sT0), s(sW), 7)
        a.I("s_add_u32", s(sT0), s(sT0), QBL)
        a.I("v_lshl_add_u32", v(vQW), v(T), 1, s(sT0))
        a.I("v_lshrrev_b32", v(T), 5, v(vL))
        a.I("v_lshlrev_b32", v(T), 6, v(T))
        a.I("v_bfe_u32", v(T + 1), v(vL), 2, 2)
        a.I("v_lshl_add_u32", v(T), v(T + 1), 4, v(T))
        a.I("v_bfe_u32", v(T + 1), v(vL), 4, 1)
        a.I("v_lshl_add_u32", v(T), v(T + 1), 3, v(T))
        a.I("s_lshl_b32", s(sT0), s(sW), 7)
        a.I("s_add_u32", s(sT0), s(sT0), s(sOwn))
        a.I("v_add_u32", v(vOPUB), s(sT0), v(T))
        lab = self.L("c0")
        self.if_wave(0, 1, lab)
        a.I("v_lshlrev_b32", v(T), 2, v(vL))
        a.I("v_add_u32", v(T), ONES, v(T))
        a.I("v_mov_b32", v(T + 1), "0x3f803f80")
        a.I("s_mov_b32", s(sT0), -1)
        a.I("s_mov_b32", s(sT1), "0xffff")
        a.I("s_mov_b64", "exec", s(sT0, 2))
        a.I("ds_write_b32", v(T), v(T + 1))
        self.exec_all()
        a.label(lab)

    def x_write(self, xin):
        a = self.a
        t = vT + 12
        a.I("v_cvt_pk_bf16_f32", v(t), v(xin), v(xin))
        a.I("ds_write_b16", v(vXW), v(t))
        a.I("v_lshlrev_b32", v(vXR), 16, v(t))

    def read_xfrags(self, B):
        for st in range(3):
            for p in range(2):
                if st == 2 and p == 1:
                    continue
                self.a.I("ds_read_b64", v(B + 4 * st + 2 * p, 2), v(vXB), mods=f"offset:{64 * st + 32 * p}")

    def stats_read(self, R):
        a = self.a
        a.I("v_mov_b32", v(R), 0)
        a.I("v_lshlrev_b32", v(R + 1), 2, v(vL))
        a.I("v_add_u32", v(R + 1), XB, v(R + 1))
        a.I("s_mov_b32", s(sT0), -1)
        a.I("s_mov_b32", s(sT1), "0xff")
        a.I("s_mov_b64", "exec", s(sT0, 2))
        a.I("ds_read_b32", v(R), v(R + 1))
        self.exec_all()

    def stats_publish(self, R, off_s, imm):
        a = self.a
        lo, hi = R + 2, R + 3
        a.I("v_lshlrev_b32", v(lo), 16, v(R))
        a.I("v_and_b32", v(hi), "0xffff0000", v(R))
        a.I("v_add_f32", v(R), v(lo), v(hi))
        a.I("v_mul_f32", v(R + 1), v(lo), v(lo))
        a.I("v_fmac_f32", v(R + 1), v(hi), v(hi))
        for ctrl, row in (("quad_perm:[1,0,3,2]", 0xf), ("quad_perm:[2,3,0,1]", 0xf), ("row_half_mirror", 0xf), ("row_mirror", 0xf),
                          ("row_bcast:15", 0xa), ("row_bcast:31", 0xc)):
            self.dpp("v_add_f32", R, R, R, ctrl, row=row)
            self.dpp("v_add_f32", R + 1, R + 1, R + 1, ctrl, row=row)
        a.I("v_mov_b32", v(lo), s(sOwn))
        self.ex(m63)
        self.store8("buffer_store_dwordx2", v(R, 2), v(lo), s(off_s), mods=f"offset:{imm}")
        self.exec_all()

    def q_mfma(self, publish=True):
        a = self.a
        B, D = vT, vT + 16
        for k in range(3):
            for st in range(3):
                a.I("v_mfma_f32_16x16x32_bf16", v(D + 4 * k, 4), v(vWQ + 12 * k + 4 * st, 4), v(B + 4 * st, 4), 0 if st == 0 else v(D + 4 * k, 4))
        if not publish:
            a.nop(8)
            return
        self.ex(mN0)
        for k in range(3):
            self.store8("buffer_store_dwordx4", v(D + 4 * k, 4), v(vQPUB), s(sPQ), mods=f"offset:{64 * k}" if k else "")
        self.exec_all()

    def q_phase1(self):
        a = self.a
        B, R = vT, vT + 40
        l7, le = self.L("q7"), self.L("qe")
        self.if_wave(0, 4, l7)
        self.read_xfrags(B)
        a.wait(lgkm=0)
        self.q_mfma()
        a.I("s_branch", le)
        a.label(l7)
        self.if_wave(7, 8, le)
        self.stats_read(R)
        a.wait(lgkm=0)
        self.stats_publish(R, sPQ, 768)
        a.label(le)

    def pub_mask(self):
        a = self.a
        a.I("s_cmp_eq_u32", s(sP), 0)
        a.I("s_cselect_b64", s(sT4, 2), s(mN01, 2), s(mN0, 2))

    def v_dma(self, part):
        a = self.a
        a.I("s_mul_i32", s(sT2), s(sW), 12288)
        a.I("s_add_u32", s(sT2), s(sT2), LB + 6144 * part)
        for grp in range(2):
            a.I("s_mov_b32", s(sT3), 6144 * part + 3072 * grp)
            for k in range(3):
                a.I("s_add_u32", "m0", s(sT2), 3072 * grp + 1024 * k)
                a.I("buffer_load_dwordx4", v(vVOF + k), s(SRD_V, 4), s(sT3), mods="offen" + self.nt_kv + " lds")

    HS = [sT0, sT1, sT2, sT3, sT4, sT5, sT6, sT7]

    def handshake_issue(self):
        a = self.a
        lab = self.L("hsi")
        self.if_wave(0, 1, lab)
        for k in range(8):
            a.I("s_load_dword", s(HSR[k]), s(SRD_DBG, 2), 32 * k)
        a.label(lab)

    def handshake(self):
        a = self.a
        l_ok, l_loop, l_skip = self.L("hs_ok"), self.L("hs_loop"), self.L("hs_skip")
        T = vT + 40
        self.if_wave(0, 1, l_skip)
        a.wait(lgkm=0)
        for k in range(1, 8):
            a.I("s_add_u32", s(HSR[0]), s(HSR[0]), s(HSR[k]))
        a.I("s_cmp_ge_u32", s(HSR[0]), 256)
        a.I("s_cbranch_scc1", l_ok)
        a.I("v_and_b32", v(T), 7, v(vL))
        a.I("v_lshlrev_b32", v(T), 5, v(T))
        a.label(l_loop)
        a.I("s_sleep", 32)
        a.I("buffer_load_dword", v(T + 1), v(T), s(SRD_DBG, 4), 0, mods="offen sc1")
        a.wait(vm=0)
        self.bfly8("v_add_u32", [T + 1])
        a.I("v_readfirstlane_b32", s(sT2), v(T + 1))
        a.I("s_cmp_ge_u32", s(sT2), 256)
        a.I("s_cbranch_scc1", l_ok)
        self.retry(l_loop)
        a.label(l_ok)
        self.stamp("hs_done")
        a.label(l_skip)

    def qg0_issue(self):
        a = self.a
        T = vT + 36
        a.I("s_lshl_b32", s(sT0), s(sW), 9)
        a.I("s_add_u32", s(sT0), s(sT0), s(sG8))
        a.I("v_lshlrev_b32", v(T), 13, v(vG))
        a.I("v_lshl_add_u32", v(T), v(vN), 5, v(T))
        a.I("v_add_u32", v(T), s(sT0), v(T))
        a.I("s_mov_b32", s(sT1), 32768)
        for pp in range(2):
            so = s(sT1) if pp else 0
            for hh in range(2):
                a.I("buffer_load_dwordx4", v(vT + 8 * pp + 4 * hh, 4), v(T), s(SRD_WS, 4), so, mods=f"offen offset:{16 * hh} sc1")
                a.I("buffer_load_dwordx4", v(vT + 16 + 8 * pp + 4 * hh, 4), v(T), s(SRD_WS, 4), so, mods=f"offen offset:{1536 + 16 * hh} sc1")
        a.I("buffer_load_dwordx4", v(vT + 32, 4), v(vSG), s(SRD_WS, 4), 0, mods="offen offset:3072 sc1")
        a.I("buffer_load_dwordx2", v(vT + 38, 2), v(vSG), s(SRD_WS, 4), 0, mods="offen offset:3088 sc1")

    def qg0_finish(self, l_retry):
        a = self.a
        chk = vT + 37
        tags = [vT + 2 * i + 1 for i in range(16)] + [vT + 33, vT + 35, vT + 39]
        a.I("v_xor_b32", v(chk), s(sTag), v(tags[0]))
        for t in tags[1:]:
            a.I("v_xor_b32", v(t), s(sTag), v(t))
            a.I("v_or_b32", v(chk), v(chk), v(t))
        a.I("v_cmp_ne_u32", "vcc", 0, v(chk))
        a.I("s_cmp_lg_u64", "vcc", 0)
        a.I("s_cbranch_scc1", l_retry)
        a.I("v_readfirstlane_b32", s(sT0), v(vT + 38))
        a.I("v_cmp_ne_u32", "vcc", s(sT0), v(vT + 38))
        a.I("s_cmp_eq_u64", "vcc", 0)
        a.I("s_cselect_b32", s(sT0), 0 if self.force_slow else 1, 0)
        a.I("v_mov_b32", v(vT + 36), FSL)
        a.I("v_mov_b32", v(vT + 37), s(sT0))
        a.I("ds_write_b32", v(vT + 36), v(vT + 37))
        A, CA, S = vT + 40, vT + 44, vT + 8
        for i in range(4):
            a.I("v_add_f32", v(A + i), v(vT + 2 * i), v(vT + 8 + 2 * i))
            a.I("v_add_f32", v(CA + i), v(vT + 16 + 2 * i), v(vT + 24 + 2 * i))
        a.I("v_mov_b32", v(S), v(vT + 32))
        a.I("v_mov_b32", v(S + 1), v(vT + 34))
        q, mean, rstd, t = vT + 21, vT + 22, vT + 23, vT + 24
        self.rr4_a(CA); self.rr4_b(CA); self.rr4_c(CA); self.rr4_d(CA, vCQ)
        self.rr4_a(A); self.rr4_b(A); self.rr4_c(A); self.rr4_d(A, q)
        self.stats_chain(S, mean, rstd, t)
        a.I("v_fma_f32", v(q), f"-v{mean}", v(vCQ), v(q))
        a.I("v_mul_f32", v(q), hex(f2u(QSCALE)), v(q))
        a.I("v_mul_f32", v(q), v(q), v(rstd))
        a.I("v_cvt_pk_bf16_f32", v(q), v(q), v(q))
        a.I("ds_write_b16", v(vQW), v(q))

    def qg_issue(self, pair):
        a = self.a
        A, Bq, S, CA, CB = vT, vT + 4, vT + 8, vT + 12, vT + 16
        a.I("buffer_load_dwordx4", v(A, 4), v(vQG), s(SRD_WS, 4), s(sPQ), mods="offen sc1")
        a.I("s_add_u32", s(sT0), s(sPQ), 32768)
        a.I("buffer_load_dwordx4", v(Bq, 4), v(vQG), s(SRD_WS, 4), s(sT0), mods="offen sc1")
        a.I("buffer_load_dwordx2", v(S, 2), v(vSG), s(SRD_WS, 4), s(sPQ), mods="offen offset:768 sc1")
        if pair == 0:
            a.I("buffer_load_dwordx4", v(CA, 4), v(vQG), s(SRD_WS, 4), s(sPQ), mods="offen offset:768 sc1")
            a.I("buffer_load_dwordx4", v(CB, 4), v(vQG), s(SRD_WS, 4), s(sT0), mods="offen offset:768 sc1")

    def stats_chain(self, S, mean, rstd, t):
        a = self.a
        self.bfly8("v_add_f32", [S, S + 1])
        a.I("v_mul_f32", v(mean), hex(f2u(1.0 / 640)), v(S))
        a.I("v_mul_f32", v(t), hex(f2u(1.0 / 640)), v(S + 1))
        a.I("v_fma_f32", v(t), f"-v{mean}", v(mean), v(t))
        a.I("v_max_f32", v(t), 0, v(t))
        a.I("v_add_f32", v(t), hex(f2u(1e-5)), v(t))
        a.I("v_rsq_f32", v(rstd), v(t))

    def qg_finish(self, pair, l_retry):
        a = self.a
        A, Bq, S, CA, CB = vT, vT + 4, vT + 8, vT + 12, vT + 16
        chk, q, mean, rstd, t = vT + 20, vT + 21, vT + 22, vT + 23, vT + 24
        regs = list(range(A, A + 10)) + (list(range(CA, CA + 8)) if pair == 0 else [])
        self.maxtree(regs, chk)
        for i in range(4):
            a.I("v_add_f32", v(A + i), v(A + i), v(Bq + i))
        self.branch_if_invalid(chk, l_retry)
        if pair == 0:
            for i in range(4):
                a.I("v_add_f32", v(CA + i), v(CA + i), v(CB + i))
            self.rr4_a(CA); self.rr4_b(CA); self.rr4_c(CA); self.rr4_d(CA, vCQ)
        self.rr4_a(A)
        self.dpp("v_add_f32", S, S, S, self.BF8[0]); self.dpp("v_add_f32", S + 1, S + 1, S + 1, self.BF8[0])
        self.rr4_b(A)
        self.dpp("v_add_f32", S, S, S, self.BF8[1]); self.dpp("v_add_f32", S + 1, S + 1, S + 1, self.BF8[1])
        self.rr4_c(A)
        self.dpp("v_add_f32", S, S, S, self.BF8[2]); self.dpp("v_add_f32", S + 1, S + 1, S + 1, self.BF8[2])
        self.rr4_d(A, q)
        a.I("v_mul_f32", v(mean), hex(f2u(1.0 / 640)), v(S))
        a.I("v_mul_f32", v(t), hex(f2u(1.0 / 640)), v(S + 1))
        a.I("v_fma_f32", v(t), f"-v{mean}", v(mean), v(t))
        a.I("v_fma_f32", v(q), f"-v{mean}", v(vCQ), v(q))
        a.I("v_max_f32", v(t), 0, v(t))
        a.I("v_add_f32", v(t), hex(f2u(1e-5)), v(t))
        a.I("v_rsq_f32", v(rstd), v(t))
        a.I("v_mul_f32", v(q), hex(f2u(QSCALE)), v(q))
        a.I("v_mul_f32", v(q), v(q), v(rstd))
        a.I("v_cvt_pk_bf16_f32", v(q), v(q), v(q))
        a.I("ds_write_b16", v(vQW), v(q))

    def q_gather0_finish(self, l_join):
        a = self.a
        l_w, l_chk, l_r = [self.L(x) for x in ("qg0w", "qg0c", "qg0r")]
        self.if_wave(0, 3, l_join)
        a.I("s_branch", l_w)
        a.label(l_r)
        self.qg0_issue()
        self.retry(l_w)
        a.label(l_w)
        a.wait(vm=0)
        self.qg0_finish(l_r)
        self.stamp("qg_ok0")
        a.I("s_branch", l_join)

    def q_gather1(self, l_join):
        a = self.a
        l_w, l_r = self.L("qg1w"), self.L("qg1r")
        self.if_wave(0, 3, l_join)
        self.delay("q")
        self.qg_issue(1)
        a.label(l_w)
        a.wait(vm=0)
        self.qg_finish(1, l_r)
        self.stamp("qg_ok1")
        self.tail_retry.append((l_r, lambda: self.qg_issue(1), l_w))

    def rowblock_dma(self, idx_s, ncol, rowbytes, mul, lds_base, clampP=None, T=vT + 40):
        a = self.a
        a.I("s_lshl_b32", s(sT4), s(idx_s), 6)
        a.I("v_add_u32", v(T), s(sT4), v(vL))
        if clampP is not None:
            a.I("v_min_u32", v(T), clampP, v(T))
        a.I("v_mul_u32_u24", v(T + 1), mul, v(T))
        a.I("v_lshrrev_b32", v(T + 1), 16, v(T + 1))
        a.I("v_mul_u32_u24", v(T + 2), ncol, v(T + 1))
        a.I("v_sub_u32", v(T + 2), v(T), v(T + 2))
        a.I("v_mul_u32_u24", v(T + 1), rowbytes, v(T + 1))
        a.I("v_lshl_add_u32", v(T + 3), v(T + 2), 4, v(T + 1))
        a.I("s_lshl_b32", s(sT4), s(idx_s), 10)
        a.I("s_add_u32", "m0", s(sT4), lds_base)
        a.I("buffer_load_dwordx4", v(T + 3), s(SRD_W, 4), 0, mods="offen" + self.nt_w + " lds")

    def wo_dma(self):
        a = self.a
        a.I("s_mul_i32", s(sT2), s(sH), 245760)
        a.I("s_add_u32", s(sT2), s(sT2), s(sJ160))
        self.srd(SRD_W, pWO, sT2, 7864320)
        T = vT + 32
        for k in range(5):
            a.I("v_add_u32", v(T + 5), 64 * k, v(vL))
            a.I("v_mul_u32_u24", v(T + 6), 6554, v(T + 5))
            a.I("v_lshrrev_b32", v(T + 6), 16, v(T + 6))
            a.I("v_mul_u32_u24", v(T + 7), 10, v(T + 6))
            a.I("v_sub_u32", v(T + 7), v(T + 5), v(T + 7))
            a.I("v_mul_u32_u24", v(T + 6), 1280, v(T + 6))
            a.I("v_lshl_add_u32", v(T + k), v(T + 7), 4, v(T + 6))
        lab = self.L("wo")
        a.I("s_mov_b32", s(sT2), LC)
        a.I("s_mov_b32", s(sT3), 0)
        a.label(lab)
        for k in range(5):
            a.I("s_add_u32", "m0", s(sT2), 1024 * k)
            a.I("buffer_load_dwordx4", v(T + k), s(SRD_W, 4), s(sT3), mods="offen" + self.nt_w + " lds")
        a.I("s_add_u32", s(sT2), s(sT2), 5120)
        a.I("s_add_u32", s(sT3), s(sT3), 32 * 1280)
        a.I("s_cmp_lt_u32", s(sT2), LC + 30720)
        a.I("s_cbranch_scc1", lab)

    def gud_dma(self):
        a = self.a
        l6, l7, le = self.L("g6"), self.L("g7"), self.L("ge")
        a.I("s_mul_i32", s(sT2), s(sJ), 245760)
        a.I("s_mul_i32", s(sT3), s(sH), 96)
        a.I("s_add_u32", s(sT2), s(sT2), s(sT3))
        a.I("s_cmp_eq_u32", s(sW), 6)
        a.I("s_cbranch_scc1", l6)
        a.I("s_cmp_eq_u32", s(sW), 7)
        a.I("s_cbranch_scc1", l7)
        self.srd(SRD_W, pWG, sT2, 1966080)
        for k in range(8):
            a.I("s_mov_b32", s(sT0), k)
            self.rowblock_dma(sT0, 6, 3072, 10923, LA, clampP=479)
        a.I("s_branch", le)
        a.label(l6)
        self.srd(SRD_W, pWU, sT2, 1966080)
        for k in range(8):
            a.I("s_mov_b32", s(sT0), k)
            self.rowblock_dma(sT0, 6, 3072, 10923, LA + 8192, clampP=479)
        a.I("s_branch", le)
        a.label(l7)
        a.I("s_mul_i32", s(sT2), s(sH), 61440)
        a.I("s_add_u32", s(sT2), s(sT2), s(sJ160))
        self.srd(SRD_W, pWD, sT2, 1966080)
        for k in range(8):
            a.I("s_mov_b32", s(sT0), k)
            self.rowblock_dma(sT0, 10, 1280, 6554, LA + 16384, clampP=479)
        a.label(le)

    def v_frags(self, p, T=vT + 12):
        a = self.a
        self.tr_base(T, 384, swz=True)
        a.I("s_mul_i32", s(sT0), s(sW), 12288)
        a.I("s_add_u32", s(sT0), s(sT0), LB + 6144 * p)
        a.I("v_add_u32", v(T), s(sT0), v(T))
        for t in range(1, 4):
            a.I("v_xor_b32", v(T + t), 32 * t, v(T))
        return T

    def v_frag_reads(self, T, p):
        for t in range(4):
            for hi in range(3):
                tile = 4 * hi + t
                self.a.I("ds_read_b64_tr_b16", v(vV + 4 * tile + 2 * p, 2), v(T + t), mods=f"offset:{128 * hi}")

    def attention(self):
        a = self.a
        QA, S4, S, M, PK, O, Ls, F, X = vT, vT + 12, vT + 28, vT + 29, vT + 30, vT + 32, vT + 44, vT + 45, vT
        for l in range(3):
            a.I("ds_read_b128", v(QA + 4 * l, 4), v(vQA), mods=f"offset:{128 * l}")
        a.I("v_mov_b32", v(S), "0xff800000")
        a.wait(lgkm=0)
        for t in range(4):
            for l in range(3):
                a.I("v_mfma_f32_16x16x32_bf16", v(S4 + 4 * t, 4), v(QA + 4 * l, 4), v(vK + 12 * t + 4 * l, 4), 0 if l == 0 else v(S4 + 4 * t, 4))
            if t >= 2:
                tt = t - 2
                a.I("v_add_f32_dpp", v(S), v(S4 + 4 * tt + 1), v(S4 + 4 * tt), mods=f"row_ror:8 row_mask:{hex(1 << tt)} bank_mask:0x3")
        for tt in (2, 3):
            a.I("v_add_f32_dpp", v(S), v(S4 + 4 * tt + 1), v(S4 + 4 * tt), mods=f"row_ror:8 row_mask:{hex(1 << tt)} bank_mask:0x3")
        self.stamp("qk_1", 1)
        first = True
        for ctrl, row in (("quad_perm:[1,0,3,2]", 0xf), ("quad_perm:[2,3,0,1]", 0xf), ("row_half_mirror", 0xf), ("row_ror:8", 0xf), ("row_bcast:15", 0xa), ("row_bcast:31", 0xc)):
            if first:
                self.dpp("v_max_f32", M, S, S, ctrl, row=row)
                first = False
            else:
                self.dpp("v_max_f32", M, M, M, ctrl, row=row)
        a.I("v_readlane_b32", s(sM), v(M), 63)
        a.I("v_subrev_f32", v(S), s(sM), v(S))
        a.I("v_mov_b32", v(F), s(sM))
        a.I("v_exp_f32", v(S), v(S))
        self.exi(1)
        a.I("ds_write_b32", v(vMXW), v(F))
        self.exec_all()
        self.dpp("v_mov_b32", PK, S, None, "row_shl:1")
        a.I("v_cvt_pk_bf16_f32", v(PK), v(S), v(PK))
        a.I("v_mov_b32", v(Ls), v(S))
        lab = self.L("v1")
        self.if_pair0(lab)
        self.handshake()
        T = self.v_frags(1)
        self.stamp("softmax0")
        self.loader(lambda: a.wait(vm=30))
        a.I("s_barrier")
        self.stamp("v_landed")
        self.v_frag_reads(T, 1)
        a.wait(lgkm=0)
        a.label(lab)
        for g2 in range(4):
            for i in range(4):
                a.I("v_mov_b32_dpp", v(vPA + 4 * g2 + i), v(PK), mods=f"row_newbcast:{2 * i} row_mask:0xf bank_mask:{hex(1 << g2)}")
            for i in range(3):
                a.I("v_mfma_f32_16x16x32_bf16", v(O + 4 * i, 4), v(vPA + 4 * g2, 4), v(vV + 4 * (4 * i + g2), 4), 0 if g2 == 0 else v(O + 4 * i, 4))
        self.stamp("pv_iss1", 1)
        a.wait(lgkm=0)
        a.I("s_barrier")
        self.stamp("B4_1", 1)
        a.I("v_mov_b32", v(vT + 46), MXL)
        a.I("ds_read_b128", v(X, 4), v(vT + 46))
        a.I("ds_read_b128", v(X + 4, 4), v(vT + 46), mods="offset:16")
        lab = self.L("ff")
        self.if_pair0(lab)
        a.I("ds_read_b32", v(vT + 47), v(vT + 46), mods=f"offset:{FSL - MXL}")
        a.wait(lgkm=0)
        a.I("v_readfirstlane_b32", s(sFast), v(vT + 47))
        a.label(lab)
        for ctrl, row in (("quad_perm:[1,0,3,2]", 0xf), ("quad_perm:[2,3,0,1]", 0xf), ("row_half_mirror", 0xf), ("row_ror:8", 0xf), ("row_bcast:15", 0xa), ("row_bcast:31", 0xc)):
            self.dpp("v_add_f32", Ls, Ls, Ls, ctrl, row=row)
        a.wait(lgkm=0)
        a.I("v_max3_f32", v(X), v(X), v(X + 1), v(X + 2))
        a.I("v_max3_f32", v(X + 3), v(X + 3), v(X + 4), v(X + 5))
        a.I("v_max3_f32", v(X), v(X), v(X + 6), v(X + 7))
        a.I("v_max_f32", v(X), v(X), v(X + 3))
        a.I("v_sub_f32", v(F), v(F), v(X))
        a.I("v_exp_f32", v(F), v(F))
        for i in range(3):
            a.I("v_mul_f32", v(O + 4 * i), v(O + 4 * i), v(F))
        a.I("v_mul_f32", v(Ls), v(Ls), v(F))
        self.stamp("pre_add1", 1)
        for i in range(3):
            a.I("ds_write_b32", v(vOAC), v(O + 4 * i), mods=f"offset:{256 * i}")
        self.ex(m63)
        a.I("ds_write_b32", v(vMXW), v(Ls), mods=f"offset:{LSL - MXL}")
        self.exec_all()
        a.wait(lgkm=0)
        a.I("s_barrier")
        self.stamp("B5_1", 1)
        R = vT
        l_skip, l_ml = self.L("fc"), self.L("ml")
        self.if_wave(0, 3, l_ml)
        for w2 in range(8):
            a.I("ds_read_b32", v(R + w2), v(vORD + (w2 >= 5)), mods=f"offset:{12288 * (w2 if w2 < 5 else w2 - 5)}")
        a.wait(lgkm=0 if self.stamps else 4)
        a.I("v_add_f32", v(R), v(R), v(R + 1))
        a.I("v_add_f32", v(R + 2), v(R + 2), v(R + 3))
        a.wait(lgkm=0)
        a.I("v_add_f32", v(R + 4), v(R + 4), v(R + 5))
        a.I("v_add_f32", v(R + 6), v(R + 6), v(R + 7))
        a.I("v_add_f32", v(R), v(R), v(R + 2))
        a.I("v_add_f32", v(R + 4), v(R + 4), v(R + 6))
        a.I("v_add_f32", v(R), v(R), v(R + 4))
        self.dpp("v_mov_b32", R + 1, R, None, "row_shl:1")
        a.I("v_cvt_pk_bf16_f32", v(R + 2), v(R), v(R + 1))
        self.dpp("v_mov_b32", R + 3, R + 2, None, "row_shl:2")
        a.I("v_min_u32", v(R + 2), "0xfffffffe", v(R + 2))
        a.I("v_min_u32", v(R + 3), "0xfffffffe", v(R + 3))
        self.ex(mQ0)
        self.store8("buffer_store_dwordx2", v(R + 2, 2), v(vOPUB), s(sPO))
        self.exec_all()
        a.I("s_branch", l_skip)
        a.label(l_ml)
        self.if_wave(3, 4, l_skip)
        a.I("v_mov_b32", v(R + 12), LSL)
        a.I("ds_read_b128", v(R + 4, 4), v(R + 12))
        a.I("ds_read_b128", v(R + 8, 4), v(R + 12), mods="offset:16")
        a.I("v_mov_b32", v(R), v(X))
        a.I("v_mov_b32", v(R + 13), s(sOwn))
        a.wait(lgkm=0)
        for i in range(0, 8, 2):
            a.I("v_add_f32", v(R + 4 + i), v(R + 4 + i), v(R + 5 + i))
        a.I("v_add_f32", v(R + 4), v(R + 4), v(R + 6))
        a.I("v_add_f32", v(R + 8), v(R + 8), v(R + 10))
        a.I("v_add_f32", v(R + 1), v(R + 4), v(R + 8))
        self.exi(1)
        self.store8("buffer_store_dwordx2", v(R, 2), v(R + 13), s(sPO), mods="offset:384")
        self.exec_all()
        a.label(l_skip)
        self.stamp("o_pub0", 0)
        self.stamp("o_pub1", 1)

    def wo_frags(self, T=vT + 44):
        a = self.a
        self.tr_base(T, 160)
        a.I("s_lshl_b32", s(sT0), s(sW), 5)
        a.I("s_add_u32", s(sT0), s(sT0), LC)
        a.I("v_add_u32", v(T), s(sT0), v(T))
        for st in range(6):
            for p in range(2):
                a.I("ds_read_b64_tr_b16", v(vWT + 4 * st + 2 * p, 2), v(T), mods=f"offset:{160 * (32 * st + 16 * p)}")

    def og_issue(self):
        a = self.a
        a.I("buffer_load_dwordx4", v(vT, 4), v(vOG), s(SRD_WS, 4), s(sPO), mods="offen sc1")
        a.I("buffer_load_dwordx2", v(vT + 4, 2), v(vOML), s(SRD_WS, 4), s(sPO), mods="offen offset:384 sc1")

    def o_phase(self):
        a = self.a
        B, ML, D = vT, vT + 24, vT + 28
        Mx, W, U = vT + 33, vT + 34, vT + 36
        l_ng, l_w, l_r, l_skip2 = [self.L(x) for x in ("o_ng", "o_w", "o_r", "o_s2")]
        self.if_wave(5, 8, l_ng)
        a.I("v_lshrrev_b32", v(vT + 8), 3, v(vL))
        a.I("v_lshlrev_b32", v(vT + 8), 3, v(vT + 8))
        a.I("v_add_u32", v(vT + 8), MLS, v(vT + 8))
        self.delay("o")
        self.og_issue()
        self.stamp("o_iss1", 1)
        a.label(l_w)
        a.wait(vm=0)
        self.stamp("o_ret1", 1)
        self.maxtree(list(range(vT, vT + 6)), vT + 7)
        self.branch_if_invalid(vT + 7, l_r)
        a.I("ds_write_b128", v(vOSW), v(vT, 4))
        a.I("ds_write_b64", v(vT + 8), v(vT + 4, 2))
        self.stamp("o_ok0", 0)
        self.stamp("o_ok1", 1)
        self.tail_retry.append((l_r, lambda: self.og_issue(), l_w))
        l_pf = self.L("o_pf")
        a.I("s_branch", l_pf)
        a.label(l_ng)
        self.if_pair1(l_pf)
        self.wo_frags()
        a.label(l_pf)
        lab = self.L("o_wl")
        self.if_pair0(lab)
        self.loader(lambda: a.wait(vm=0))
        a.label(lab)
        self.log_retries(1)
        a.wait(lgkm=0)
        a.I("s_barrier")
        self.stamp("Bo0", 0)
        self.stamp("Bo1", 1)
        lab, l_x = self.L("o_p0"), self.L("o_x")
        self.if_pair0(lab)
        self.if_wave(5, 8, l_x)
        self.gud_dma()
        a.I("s_branch", l_skip2)
        a.label(l_x)
        self.wo_frags()
        a.label(lab)
        self.if_wave(0, 5, l_skip2)
        for st in range(6):
            a.I("ds_read_b128", v(B + 4 * st, 4), v(vOSR), mods=f"offset:{64 * st}")
        a.I("ds_read_b64", v(ML, 2), v(vMLR))
        a.wait(lgkm=0)
        for st in range(6):
            a.I("v_mfma_f32_16x16x32_bf16", v(D, 4), v(vWT + 4 * st, 4), v(B + 4 * st, 4), 0 if st == 0 else v(D, 4))
            if st == 0:
                self.dpp("v_max_f32", Mx, ML, ML, self.BF8[0])
            if st == 1:
                self.dpp("v_max_f32", Mx, Mx, Mx, self.BF8[1])
            if st == 2:
                self.dpp("v_max_f32", Mx, Mx, Mx, self.BF8[2])
            if st == 3:
                a.I("v_sub_f32", v(W), v(ML), v(Mx))
            if st == 4:
                a.I("v_exp_f32", v(W), v(W))
        a.I("v_mul_f32", v(Mx), v(W), v(ML + 1))
        self.bfly8("v_add_f32", [Mx])
        a.I("v_rcp_f32", v(Mx), v(Mx))
        a.I("v_mul_f32", v(W), v(W), v(Mx))
        for i in range(4):
            a.I("v_mul_f32", v(D + i), v(D + i), v(W))
        a.I("v_add_f32_dpp", v(U), v(D), v(D), mods="row_shl:4 row_mask:0xf bank_mask:0x5")
        a.I("v_add_f32_dpp", v(U + 1), v(D + 1), v(D + 1), mods="row_shl:4 row_mask:0xf bank_mask:0x5")
        a.I("v_add_f32_dpp", v(U), v(D + 2), v(D + 2), mods="row_shr:4 row_mask:0xf bank_mask:0xa")
        a.I("v_add_f32_dpp", v(U + 1), v(D + 3), v(D + 3), mods="row_shr:4 row_mask:0xf bank_mask:0xa")
        for ctrl in ("quad_perm:[1,0,3,2]", "quad_perm:[2,3,0,1]"):
            self.dpp("v_add_f32", U, U, U, ctrl)
            self.dpp("v_add_f32", U + 1, U + 1, U + 1, ctrl)
        self.ex(mY)
        a.I("buffer_store_dwordx2", v(U, 2), v(vYP), s(SRD_WS, 4), s(sPY), mods="offen sc1")
        self.exec_all()
        self.stamp("y_pub0", 0)
        self.stamp("y_pub1", 1)
        a.label(l_skip2)

    def xg_issue(self, soff):
        a = self.a
        A = vT
        a.I("buffer_load_dwordx4", v(A, 4), v(vYG), s(SRD_WS, 4), s(soff), mods="offen sc1")
        a.I("buffer_load_dwordx4", v(A + 4, 4), v(vYG), s(SRD_WS, 4), s(soff), mods="offen offset:1024 sc1")

    def x_gather(self, soff, key, tag):
        a = self.a
        A = vT
        l_w, l_r = self.L("x_w"), self.L("x_r")
        self.delay(key)
        self.xg_issue(soff)
        self.stamp(tag + "_iss1", 1)
        a.label(l_w)
        a.wait(vm=0)
        self.stamp(tag + "_ret1", 1)
        chk, r01, r23, r = vT + 11, vT + 8, vT + 9, vT + 10
        self.maxtree(list(range(A, A + 8)), chk)
        for i in range(4):
            a.I("v_add_f32", v(A + i), v(A + i), v(A + 4 + i))
        self.branch_if_invalid(chk, l_r)
        a.I("v_add_f32_dpp", v(r01), v(A), v(A), mods="row_ror:8 row_mask:0xf bank_mask:0x3")
        a.I("v_add_f32_dpp", v(r23), v(A + 2), v(A + 2), mods="row_ror:8 row_mask:0xf bank_mask:0x3")
        a.I("v_add_f32_dpp", v(r01), v(A + 1), v(A + 1), mods="row_ror:8 row_mask:0xf bank_mask:0xc")
        a.I("v_add_f32_dpp", v(r23), v(A + 3), v(A + 3), mods="row_ror:8 row_mask:0xf bank_mask:0xc")
        a.I("v_add_f32_dpp", v(r), v(r01), v(r01), mods="row_shl:4 row_mask:0xf bank_mask:0x5")
        a.I("v_add_f32_dpp", v(r), v(r23), v(r23), mods="row_shr:4 row_mask:0xf bank_mask:0xa")
        self.dpp("v_add_f32", r, r, r, "quad_perm:[1,0,3,2]")
        self.dpp("v_add_f32", r, r, r, "quad_perm:[2,3,0,1]")
        a.I("v_add_f32", v(r), v(r), v(vXR))
        self.stamp(tag + "0", 0)
        self.stamp(tag + "1", 1)
        self.tail_retry.append((l_r, lambda: self.xg_issue(soff), l_w))
        return r

    def gu_tr_addr(self):
        a = self.a
        T = vT + 44
        self.tr_base(T, 96)
        a.I("s_cmp_ge_u32", s(sW), 3)
        a.I("s_cselect_b32", s(sT0), 8192 - 96, 0)
        a.I("s_lshl_b32", s(sT1), s(sW), 5)
        a.I("s_add_u32", s(sT0), s(sT0), s(sT1))
        a.I("s_add_u32", s(sT0), s(sT0), LA)
        a.I("v_add_u32", v(T), s(sT0), v(T))
        a.I("v_mov_b32", v(vWT + 10), 0)
        a.I("v_mov_b32", v(vWT + 11), 0)
        return T

    def gu_phase(self):
        a = self.a
        B, D, T, R = vT, vT + 16, vT + 44, vT + 24
        l_skip, l7, l_st = self.L("gu_s"), self.L("gu_7"), self.L("gu_st")
        self.if_wave(0, 6, l7)
        for st in range(3):
            for p in range(2):
                if st == 2 and p == 1:
                    continue
                a.I("ds_read_b64_tr_b16", v(vWT + 4 * st + 2 * p, 2), v(T), mods=f"offset:{96 * (32 * st + 16 * p)}")
        self.read_xfrags(B)
        a.wait(lgkm=0)
        for st in range(3):
            a.I("v_mfma_f32_16x16x32_bf16", v(D, 4), v(vWT + 4 * st, 4), v(B + 4 * st, 4), 0 if st == 0 else v(D, 4))
        self.ex(sT4)
        a.nop(7)
        self.store8("buffer_store_dwordx4", v(D, 4), v(vGPUB), s(sPG))
        self.exec_all()
        a.I("s_branch", l_skip)
        a.label(l7)
        self.if_wave(7, 8, l_skip)
        self.stats_read(R)
        a.wait(lgkm=0)
        self.stats_publish(R, sPG, 768)
        a.label(l_skip)

    def gg_issue(self, pair):
        a = self.a
        A = vT
        offs = (0, 192) if pair else (0, 192, 384, 576)
        for k, off in enumerate(offs):
            a.I("buffer_load_dwordx4", v(A + 4 * k, 4), v(vGG), s(SRD_WS, 4), s(sPG), mods=f"offen offset:{off} sc1")
        a.I("buffer_load_dwordx2", v(A + 16, 2), v(vSG), s(SRD_WS, 4), s(sPG), mods="offen offset:768 sc1")

    def gg_finish(self, pair, l_r):
        a = self.a
        A, S = vT, vT + 16
        chk, G, U, mean, rstd, t = vT + 18, vT + 19, vT + 20, vT + 21, vT + 22, vT + 23
        n = 8 if pair else 16
        self.maxtree(list(range(A, A + n)) + [S, S + 1], chk)
        self.branch_if_invalid(chk, l_r)
        if pair == 0:
            for base, out in ((A + 8, vCG), (A + 12, vCU)):
                self.rr4_a(base); self.rr4_b(base); self.rr4_c(base); self.rr4_d(base, out)
                self.dpp("v_add_f32", out, out, out, "row_ror:8")
        self.rr4_a(A); self.rr4_a(A + 4)
        self.dpp("v_add_f32", S, S, S, self.BF8[0]); self.dpp("v_add_f32", S + 1, S + 1, S + 1, self.BF8[0])
        self.rr4_b(A); self.rr4_b(A + 4)
        self.dpp("v_add_f32", S, S, S, self.BF8[1]); self.dpp("v_add_f32", S + 1, S + 1, S + 1, self.BF8[1])
        self.rr4_c(A); self.rr4_c(A + 4)
        self.dpp("v_add_f32", S, S, S, self.BF8[2]); self.dpp("v_add_f32", S + 1, S + 1, S + 1, self.BF8[2])
        self.rr4_d(A, G); self.rr4_d(A + 4, U)
        a.I("v_mul_f32", v(mean), hex(f2u(1.0 / 640)), v(S))
        a.I("v_mul_f32", v(t), hex(f2u(1.0 / 640)), v(S + 1))
        self.dpp("v_add_f32", G, G, G, "row_ror:8")
        self.dpp("v_add_f32", U, U, U, "row_ror:8")
        a.I("v_fma_f32", v(t), f"-v{mean}", v(mean), v(t))
        a.I("v_max_f32", v(t), 0, v(t))
        a.I("v_add_f32", v(t), hex(f2u(1e-5)), v(t))
        a.I("v_fma_f32", v(G), f"-v{mean}", v(vCG), v(G))
        a.I("v_fma_f32", v(U), f"-v{mean}", v(vCU), v(U))
        a.I("v_rcp_f32", v(rstd), v(t))
        a.I("v_mul_f32", v(G), v(G), v(U))
        a.I("v_mul_f32", v(G), v(G), v(rstd))
        a.I("v_cvt_pk_bf16_f32", v(G), v(G), v(G))
        a.I("ds_write_b16", v(vHW), v(G))

    def wd_prefetch(self):
        a = self.a
        T = vT + 44
        self.tr_base(T, 160)
        a.I("s_lshl_b32", s(sT0), s(sW), 5)
        a.I("s_add_u32", s(sT0), s(sT0), LA + 16384)
        a.I("v_add_u32", v(T), s(sT0), v(T))
        for st, p in ((0, 0), (0, 1), (1, 0)):
            a.I("ds_read_b64_tr_b16", v(vWT + 4 * st + 2 * p, 2), v(T), mods=f"offset:{160 * (32 * st + 16 * p)}")
        a.I("v_mov_b32", v(vWT + 6), 0)
        a.I("v_mov_b32", v(vWT + 7), 0)
        a.I("v_mov_b32", v(vT + 6), 0)
        a.I("v_mov_b32", v(vT + 7), 0)

    def g_gather(self):
        a = self.a
        l_skip, l_pf, l_p1, l_j = self.L("gg_s"), self.L("gg_pf"), self.L("gg_p1"), self.L("gg_j")
        self.if_wave(6, 8, l_pf)
        self.delay("g")
        for pair in (0, 1):
            l_w, l_r = self.L("gg_w"), self.L("gg_r")
            if pair == 0:
                self.if_pair0(l_p1)
            else:
                a.label(l_p1)
            self.gg_issue(pair)
            a.label(l_w)
            a.wait(vm=0)
            self.gg_finish(pair, l_r)
            self.stamp(f"gg_ok{pair}")
            self.tail_retry.append((l_r, (lambda p=pair: self.gg_issue(p)), l_w))
            a.I("s_branch", l_j)
        a.label(l_pf)
        self.if_wave(0, 5, l_j)
        self.wd_prefetch()
        a.label(l_j)
        self.log_retries(3)
        a.wait(lgkm=0)
        a.I("s_barrier")

    def d_phase(self):
        a = self.a
        B, D = vT, vT + 16
        l_skip = self.L("d_s")
        self.if_wave(0, 5, l_skip)
        for st, p in ((0, 0), (0, 1), (1, 0)):
            a.I("ds_read_b64", v(B + 4 * st + 2 * p, 2), v(vHB), mods=f"offset:{64 * st + 32 * p}")
        a.wait(lgkm=0)
        for st in range(2):
            a.I("v_mfma_f32_16x16x32_bf16", v(D, 4), v(vWT + 4 * st, 4), v(B + 4 * st, 4), 0 if st == 0 else v(D, 4))
        self.ex(mN0)
        a.nop(7)
        a.I("buffer_store_dwordx4", v(D, 4), v(vDP), s(SRD_WS, 4), s(sPD), mods="offen sc1")
        self.exec_all()
        a.label(l_skip)

    def set_pair_offsets(self):
        a = self.a
        a.I("s_mul_i32", s(sPQ), s(sP), QB[1])
        a.I("s_lshl_b32", s(sPO), s(sP), 9)
        a.I("s_add_u32", s(sPO), s(sPO), OB[0])
        a.I("s_lshl_b32", s(sPG), s(sP), 10)
        a.I("s_add_u32", s(sPG), s(sPG), GB[0])
        a.I("s_mul_i32", s(sPY), s(sP), 2 * YPK)
        a.I("s_add_u32", s(sPD), s(sPY), YPK)

    def build(self):
        a = self.a
        self.tail_retry = []
        if self.stamps and (self.stamp_sel is None or "start" in self.stamp_sel):
            pass
        self.prologue()
        self.set_pair_offsets()
        l_qj = self.L("qgJ")
        self.layer1_load()
        self.q_gather0_finish(l_qj)
        a.label("L_pair")
        l_skip = self.L("xs")
        self.if_wave(0, 5, l_skip)
        self.x_write(vT + 10)
        a.label(l_skip)
        a.I("v_mov_b32", v(vT + 10), 0)
        a.I("v_mov_b32", v(vT + 11), 0)
        self.pub_mask()
        a.wait(lgkm=0)
        a.I("s_barrier")
        self.stamp("B2_1")
        self.q_phase1()
        self.stamp("q_pub1")
        self.q_gather1(l_qj)
        a.label(l_qj)
        self.log_retries(0)
        a.wait(lgkm=0)
        a.I("s_barrier")
        self.stamp("B3_0", 0)
        self.stamp("B3_1", 1)
        self.attention()
        self.o_phase()
        l_skip, l_w = self.L("xs2"), self.L("xw")
        lg = self.L("gua")
        self.if_wave(0, 6, lg)
        self.gu_tr_addr()
        a.label(lg)
        self.if_wave(0, 5, l_w)
        r = self.x_gather(sPY, "y", "yg_ok")
        self.x_write(r)
        a.I("s_branch", l_skip)
        a.label(l_w)
        a.wait(vm=0)
        a.label(l_skip)
        self.log_retries(2)
        a.I("v_mov_b32", v(vT + 10), 0)
        a.I("v_mov_b32", v(vT + 11), 0)
        self.pub_mask()
        a.wait(lgkm=0)
        a.I("s_barrier")
        self.stamp("B6_1", 1)
        self.gu_phase()
        self.stamp("g_pub1", 1)
        self.g_gather()
        self.stamp("B7_1", 1)
        self.d_phase()
        self.stamp("d_pub0", 0)
        self.stamp("d_pub1", 1)
        l_fin = self.L("fin")
        a.I("s_cmp_eq_u32", s(sP), 1)
        a.I("s_cbranch_scc1", l_fin)
        l_skip = self.L("xs3")
        self.if_wave(0, 5, l_skip)
        r = self.x_gather(sPD, "d", "dg_ok")
        assert r == vT + 10
        a.label(l_skip)
        self.log_retries(4)
        a.I("s_mov_b32", s(sP), 1)
        self.set_pair_offsets()
        a.I("s_branch", "L_pair")
        a.label(l_fin)
        a.I("s_cmp_lg_u32", s(sH), 0)
        a.I("s_cbranch_scc1", "L_dump")
        self.if_wave(0, 5, "L_dump")
        self.srd(SRD_X, pOUT, sJ160, 1280)
        a.I("v_subrev_u32", v(vT + 13), XB, v(vXW))
        r = self.x_gather(sPD, "d", "fin_ok")
        a.I("v_cvt_pk_bf16_f32", v(r), v(r), v(r))
        self.ex(mQ0)
        a.I("buffer_store_short", v(r), v(vT + 13), s(SRD_X, 4), 0, mods="offen")
        self.exec_all()
        self.log_retries(4)
        lab = self.L("ep")
        a.I("s_or_b32", s(sT0), s(sJ), s(sW))
        a.I("s_cmp_lg_u32", s(sT0), 0)
        a.I("s_cbranch_scc1", lab)
        a.I("v_mov_b32", v(vT), s(sTag))
        a.I("v_mov_b32", v(vT + 1), hex(EPOCH))
        self.exi(1)
        a.I("buffer_store_dword", v(vT), v(vT + 1), s(SRD_WS, 4), 0, mods="offen sc1")
        self.exec_all()
        a.label(lab)
        a.label("L_dump")
        if self.stamps:
            self.stamp("end")
            a.wait(lgkm=0)
            T = vT
            a.I("v_mov_b32", v(T), 0)
            for k in range(len(self.stamp_names)):
                a.I("v_writelane_b32", v(T), s(STAMP_SLOTS[k]), k)
            a.I("v_writelane_b32", v(T), s(sTmo), 14)
            a.I("v_writelane_b32", v(T), s(sFast), 15)
            if self.dbgout:
                lab = self.L("dbo")
                a.I("s_cmp_lg_u32", s(sW), 0)
                a.I("s_cbranch_scc1", lab)
                a.I("s_cmp_eq_u32", s(2), 0)
                a.I("s_cselect_b32", s(sT1), 4, 36)
                a.I("s_cmp_eq_u32", s(2), 255)
                a.I("s_cselect_b32", s(sT2), 1, 0)
                a.I("s_cmp_eq_u32", s(2), 0)
                a.I("s_cselect_b32", s(sT2), 1, s(sT2))
                a.I("s_cmp_eq_u32", s(sT2), 0)
                a.I("s_cbranch_scc1", lab)
                a.I("v_subrev_u32", v(T + 2), s(STAMP_SLOTS[0]), v(T))
                a.I("v_lshlrev_b32", v(T + 3), 2, v(vL))
                a.I("v_add_u32", v(T + 3), s(sT1), v(T + 3))
                a.I("v_subrev_u32", v(T + 3), 4, v(T + 3))
                a.I("s_mov_b64", "exec", "0xfe")
                a.I("buffer_store_dword", v(T + 2), v(T + 3), s(SRD_DBG, 4), 0, mods="offen")
                self.exec_all()
                a.label(lab)
            a.I("s_lshl_b32", s(sT0), s(2), 3)
            a.I("s_add_u32", s(sT0), s(sT0), s(sW))
            a.I("s_lshl_b32", s(sT0), s(sT0), 7)
            a.I("s_add_u32", s(sT0), s(sT0), hex(DBGBASE))
            a.I("v_lshlrev_b32", v(T + 1), 2, v(vL))
            a.I("v_add_u32", v(T + 1), s(sT0), v(T + 1))
            a.I("s_mov_b64", "exec", "0xffff")
            a.I("buffer_store_dword", v(T), v(T + 1), s(SRD_WS, 4), 0, mods="offen")
            a.I("buffer_store_dword", v(vDBG), v(T + 1), s(SRD_WS, 4), 0, mods="offen offset:64")
            self.exec_all()
        a.label("L_end")
        a.I("s_endpgm")
        for (lab, fn, back) in self.tail_retry:
            a.label(lab)
            fn()
            self.retry(back)
        for (lab, op, data, vaddr, soff, mods, back) in self.ool:
            a.label(lab)
            a.I(op, data, vaddr, s(SRD_WS, 4), soff, mods=mods)
            a.I("s_branch", back)
        return a.fix()

    def text(self):
        hdr = open(os.path.join(os.path.dirname(os.path.abspath(__file__)), "header.txt")).read()
        body = self.a.text()
        return f"""{hdr}; @launch grid=(256,1,1) block=(512,1,1) lds={LDS_BYTES}
.amdgcn_target "amdgcn-amd-amdhsa--gfx950"
.text
.globl {KNAME}
.p2align 8
.type {KNAME},@function
{KNAME}:
{body}.section .rodata,"a"
.p2align 6
.amdhsa_kernel {KNAME}
  .amdhsa_next_free_vgpr 256
  .amdhsa_next_free_sgpr 102
  .amdhsa_accum_offset 256
  .amdhsa_group_segment_fixed_size 0
  .amdhsa_kernarg_size 96
  .amdhsa_user_sgpr_count 2
  .amdhsa_user_sgpr_kernarg_segment_ptr 1
  .amdhsa_system_sgpr_workgroup_id_x 1
.end_amdhsa_kernel
"""


def make(**kw):
    g = Gen(**kw)
    g.build()
    return g, g.text()


if __name__ == "__main__":
    out = sys.argv[1] if len(sys.argv) > 1 else "interleave_layers__sliding_block_cached__glu_gated_bilinear__decode.s"
    kw = {}
    for x in sys.argv[2:]:
        k, val = x.split("=")
        kw[k] = val.split(",") if k == "stamp_sel" else int(val)
    g, t = make(**kw)
    open(out, "w").write(t)
    print("instructions:", g.a.count(), "stamps:", g.stamp_names)
```

```python
import sys, os, struct
sys.path.insert(0, os.path.dirname(os.path.abspath(__file__)))
from asmlib import Asm, v, s

KNAME = "interleave_layers__sliding_block_cached__glu_gated_bilinear__decode_kernel"

LA = 0
LB = 30720
LC = 129024
LM = 159744
XB = LM
ONES = LM + 192
QBL = LM + 384
HBL = LM + 768
MXL = LM + 896
FSL = LM + 928
LSL = LM + 960
OST = LB + 1024
MLS = OST + 3200
LDS_BYTES = 163840

SLOT = 8192
QB = [0, 3328]
OB = [4224, 4736]
GB = [5248, 6272]
CLR0, CLRN = 3328, 4
EPOCH = 0x3F0000
YBASE = 0x200000
YPK = 81920
WS_BYTES = 0x400000
DBGBASE = 0x300000

sH, sJ, sW, sP = 4, 5, 6, 7
SRD_WS, SRD_DBG, SRD_K, SRD_V, SRD_W, SRD_X = 8, 12, 16, 20, 24, 28
mN0, mN01, mQ0, mY, mGP, m63 = 32, 34, 36, 38, 40, 42
sOwn, sG8, sFast, sTmo, sM, sPQ, sPO, sPG, sPY, sPD = 44, 45, 46, 47, 48, 49, 50, 51, 52, 53
sT0, sT1, sT2, sT3, sT4, sT5, sT6, sT7 = 54, 55, 56, 57, 58, 59, 60, 61
sJ160 = 62
sTag = 63
HSR = [16, 17, 18, 19, 28, 29, 30, 31]
sKA = 64
pX, pK, pV, pWQ, pWO, pWG, pWU, pWD, pOUT, pDBG, pWS = 64, 66, 68, 70, 72, 76, 78, 80, 82, 84, 86
STAMP_SLOTS = [88, 90, 92, 94, 96, 98, 100, 64, 66, 68, 70, 74, 84, 86]

vL, vG, vN = 1, 2, 3
vXB, vXW, vYG, vYP, vDP, vQG, vSG, vGG = 4, 5, 6, 7, 8, 9, 10, 12
vOG = 0
vXR, vCQ, vCG, vCU = 13, 14, 15, 16
vQPUB, vGPUB, vQA = 17, 18, 19
vT = 20
vQW, vHW, vHB, vOAC, vOPUB, vMXW, vVOF, vORD, vDBG = 68, 69, 70, 71, 72, 73, 74, 77, 79
vPA = 80
vWT = 96
vWQ = 120
vOML, vOSW, vOSR, vMLR = 156, 157, 158, 159
vXCOL = 11
vXF = 96
vV = 160
vK = 208

SENT = -1
LOG2E = 1.4426950408889634
QSCALE = (192.0 ** -0.5) * LOG2E


def f2u(x):
    return struct.unpack("<I", struct.pack("<f", x))[0]


LOADER = 4


class Gen:
    def __init__(self, nt_kv=True, nt_w=False, stamps=False, d_q=0, d_o=0, d_y=0, d_g=0, d_d=0, force_slow=False,
                 tmo=0x40000, stamp_sel=None, rt=True, rsleep=0, clr_late=1, d_q0=0, warm=1, dbgout=0, wo_early=0, win=0, touch=0, codepf=0):
        self.a = Asm()
        self.ool = []
        self.nt_kv = " nt" if nt_kv else ""
        self.nt_w = " nt" if nt_w else ""
        self.stamps = stamps
        self.stamp_names = []
        self.stamp_sel = stamp_sel
        self.rt = rt
        self.d = dict(q=d_q, o=d_o, y=d_y, g=d_g, d=d_d, q0=d_q0)
        self.force_slow = force_slow
        self.tmo = tmo
        self.rsleep = rsleep
        self.clr_late = clr_late
        self.warm = warm
        self.touch = touch
        self.codepf = codepf
        self.win = win
        self.wo_early = wo_early
        self.dbgout = dbgout
        self.uid = 0
        self.nretry = 0

    def L(self, base):
        self.uid += 1
        return f"L_{base}_{self.uid}"

    def stamp(self, name, pair=None):
        if not self.stamps or (self.stamp_sel is not None and name not in self.stamp_sel):
            return
        a = self.a
        k = len(self.stamp_names)
        if k >= len(STAMP_SLOTS):
            return
        self.stamp_names.append(name)
        op = "s_memrealtime" if self.rt else "s_memtime"
        if pair is None:
            a.I(op, s(STAMP_SLOTS[k], 2))
        else:
            lab = self.L("st")
            a.I("s_cmp_lg_u32", s(sP), pair)
            a.I("s_cbranch_scc1", lab)
            a.I(op, s(STAMP_SLOTS[k], 2))
            a.label(lab)

    def log_retries(self, hop):
        if not self.stamps:
            return
        a = self.a
        a.I("s_lshl_b32", s(sT7), s(sP), 3)
        a.I("s_add_u32", s(sT7), s(sT7), hop)
        a.I("s_mov_b32", "m0", s(sT7))
        a.I("v_writelane_b32", v(vDBG), s(sTmo), "m0")

    def srd(self, d, lo, off_s, size):
        a = self.a
        if off_s is None:
            a.I("s_mov_b32", s(d), s(lo))
            a.I("s_mov_b32", s(d + 1), s(lo + 1))
            a.I("s_mov_b32", s(d + 2), size)
        else:
            a.I("s_add_u32", s(d), s(lo), s(off_s))
            a.I("s_addc_u32", s(d + 1), s(lo + 1), 0)
            a.I("s_sub_u32", s(d + 2), size, s(off_s))
        a.I("s_mov_b32", s(d + 3), "0x20000")

    def ex(self, mask):
        self.a.I("s_mov_b64", "exec", s(mask, 2) if isinstance(mask, int) and mask >= 32 else mask)

    def exi(self, imm):
        self.a.I("s_mov_b64", "exec", imm)

    def exec_all(self):
        self.a.I("s_mov_b64", "exec", -1)

    def if_wave(self, lo, hi, else_label):
        a = self.a
        if hi - lo == 1:
            a.I("s_cmp_lg_u32", s(sW), lo)
            a.I("s_cbranch_scc1", else_label)
            return
        if lo > 0:
            a.I("s_cmp_lt_u32", s(sW), lo)
            a.I("s_cbranch_scc1", else_label)
        if hi < 8:
            a.I("s_cmp_ge_u32", s(sW), hi)
            a.I("s_cbranch_scc1", else_label)

    def if_pair0(self, else_label):
        self.a.I("s_cmp_lg_u32", s(sP), 0)
        self.a.I("s_cbranch_scc1", else_label)

    def if_pair1(self, else_label):
        self.a.I("s_cmp_eq_u32", s(sP), 0)
        self.a.I("s_cbranch_scc1", else_label)

    def store8(self, op, data, vaddr, soff, mods=""):
        a = self.a
        l_slow, l_done = self.L("slow"), self.L("sd")
        a.I("s_cmp_eq_u32", s(sFast), 0)
        a.I("s_cbranch_scc1", l_slow)
        a.I(op, data, vaddr, s(SRD_WS, 4), soff, mods=("offen " + mods).strip())
        a.label(l_done)
        self.ool.append((l_slow, op, data, vaddr, soff, ("offen " + mods + " sc1").strip(), l_done))

    def retry(self, loop_label):
        a = self.a
        if self.rsleep:
            a.I("s_sleep", self.rsleep)
        a.I("s_add_u32", s(sTmo), s(sTmo), 1)
        a.I("s_cmp_lt_u32", s(sTmo), hex(self.tmo))
        a.I("s_cbranch_scc1", loop_label)
        a.I("s_branch", "L_end")

    def maxtree(self, regs, tmp):
        a = self.a
        regs = list(regs)
        first = True
        while regs:
            if first:
                if len(regs) >= 3:
                    a.I("v_max3_u32", v(tmp), v(regs[0]), v(regs[1]), v(regs[2]))
                    regs = regs[3:]
                else:
                    a.I("v_max_u32", v(tmp), v(regs[0]), v(regs[-1]))
                    regs = []
                first = False
            elif len(regs) >= 2:
                a.I("v_max3_u32", v(tmp), v(tmp), v(regs[0]), v(regs[1]))
                regs = regs[2:]
            else:
                a.I("v_max_u32", v(tmp), v(tmp), v(regs[0]))
                regs = []

    def branch_if_invalid(self, tmp, retry_label):
        a = self.a
        a.I("v_cmp_eq_u32", "vcc", SENT, v(tmp))
        a.I("s_cmp_lg_u64", "vcc", 0)
        a.I("s_cbranch_scc1", retry_label)

    def wait_by_wave(self, counts):
        a = self.a
        done = self.L("wbw")
        vals = sorted(set(counts.values()))
        for val in vals[:-1]:
            nxt, hit = self.L("wbn"), self.L("wbh")
            for w in [w for w, c in counts.items() if c == val]:
                a.I("s_cmp_eq_u32", s(sW), w)
                a.I("s_cbranch_scc1", hit)
            a.I("s_branch", nxt)
            a.label(hit)
            a.wait(vm=val)
            a.I("s_branch", done)
            a.label(nxt)
        a.wait(vm=vals[-1])
        a.label(done)

    def k_addr(self):
        a = self.a
        T = vT + 40
        a.I("v_and_b32", v(T + 2), 3, v(vN))
        a.I("v_bfe_u32", v(T + 3), v(vN), 2, 1)
        a.I("v_mul_u32_u24", v(T), 384, v(T + 2))
        a.I("v_mul_u32_u24", v(T + 3), 3072, v(T + 3))
        a.I("v_add_u32", v(T), v(T), v(T + 3))
        a.I("v_lshrrev_b32", v(T + 3), 3, v(vN))
        a.I("v_lshl_add_u32", v(T + 3), v(T + 3), 2, v(vG))
        a.I("v_and_b32", v(T + 2), 2, v(T + 2))
        a.I("v_xor_b32", v(T + 3), v(T + 3), v(T + 2))
        a.I("v_lshl_add_u32", v(T), v(T + 3), 4, v(T))
        a.I("s_mul_i32", s(sT2), s(sW), 12288)
        a.I("s_add_u32", s(sT2), s(sT2), LB)
        a.I("v_add_u32", v(T), s(sT2), v(T))
        a.I("v_xor_b32", v(T + 1), 64, v(T))
        a.I("v_add_u32", v(T + 1), 1536, v(T + 1))

    def k_frags(self, part):
        T = vT + 40
        for tt in range(2):
            t = 2 * part + tt
            for l in range(3):
                self.a.I("ds_read_b128", v(vK + 12 * t + 4 * l, 4), v(T + tt), mods=f"offset:{6144 * part + 128 * l}")

    def delay(self, key):
        n = self.d[key]
        if n:
            self.a.I("s_sleep", n)

    def dpp(self, op, dst, src0, src1, ctrl, row=0xf, bank=0xf):
        mods = f"{ctrl} row_mask:{hex(row)} bank_mask:{hex(bank)}"
        if src1 is None:
            self.a.I(op + "_dpp", v(dst), v(src0), mods=mods)
        else:
            self.a.I(op + "_dpp", v(dst), v(src0), v(src1), mods=mods)

    BF8 = ("quad_perm:[1,0,3,2]", "quad_perm:[2,3,0,1]", "row_half_mirror")

    def bfly8(self, op, regs):
        for ctrl in self.BF8:
            for r in regs:
                self.dpp(op, r, r, r, ctrl)

    def rr4_a(self, a0):
        a = self.a
        a.I("v_permlane32_swap_b32", v(a0), v(a0 + 1))
        a.I("v_permlane32_swap_b32", v(a0 + 2), v(a0 + 3))

    def rr4_b(self, a0):
        a = self.a
        a.I("v_add_f32", v(a0), v(a0), v(a0 + 1))
        a.I("v_add_f32", v(a0 + 2), v(a0 + 2), v(a0 + 3))

    def rr4_c(self, a0):
        self.a.I("v_permlane16_swap_b32", v(a0), v(a0 + 2))

    def rr4_d(self, a0, out):
        self.a.I("v_add_f32", v(out), v(a0), v(a0 + 2))

    def sigma_row(self, dst, tmp):
        a = self.a
        a.I("v_lshlrev_b32", v(dst), 1, v(vG))
        a.I("v_lshrrev_b32", v(tmp), 1, v(vG))
        a.I("v_and_b32", v(dst), 2, v(dst))
        a.I("v_or_b32", v(dst), v(dst), v(tmp))

    def tr_base(self, dst, pitch, swz=False):
        a = self.a
        a.I("v_lshrrev_b32", v(dst + 1), 2, v(vN))
        a.I("v_lshl_add_u32", v(dst + 1), v(vG), 2, v(dst + 1))
        a.I("v_mul_u32_u24", v(dst), pitch, v(dst + 1))
        if swz:
            a.I("v_and_b32", v(dst + 1), 6, v(dst + 1))
            a.I("v_bfe_u32", v(dst + 2), v(vN), 1, 1)
            a.I("v_xor_b32", v(dst + 1), v(dst + 1), v(dst + 2))
            a.I("v_lshl_add_u32", v(dst), v(dst + 1), 4, v(dst))
            a.I("v_and_b32", v(dst + 2), 1, v(vN))
            a.I("v_lshl_add_u32", v(dst), v(dst + 2), 3, v(dst))
        else:
            a.I("v_and_b32", v(dst + 2), 3, v(vN))
            a.I("v_lshl_add_u32", v(dst), v(dst + 2), 3, v(dst))

    def prologue(self):
        a = self.a
        T = vT
        a.I("s_cmp_ge_u32", s(2), 256)
        a.I("s_cbranch_scc1", "L_end")
        self.stamp("start")
        a.I("s_load_dwordx16", s(sKA, 16), s(0, 2), 0)
        a.I("s_load_dwordx8", s(sKA + 16, 8), s(0, 2), 64)
        a.I("v_readfirstlane_b32", s(sW), v(0))
        a.I("s_and_b32", s(sH), s(2), 7)
        a.I("s_lshl_b32", s(sH), s(sH), 2)
        a.I("s_bfe_u32", s(3), s(2), "0x20003")
        a.I("s_or_b32", s(sH), s(sH), s(3))
        a.I("s_lshr_b32", s(sJ), s(2), 5)
        a.I("s_lshr_b32", s(sW), s(sW), 6)
        a.I("v_and_b32", v(vL), 63, v(0))
        a.I("v_lshrrev_b32", v(vG), 4, v(vL))
        a.I("v_and_b32", v(vN), 15, v(vL))
        a.I("s_lshl_b32", s(sG8), s(sH), 16)
        a.I("s_lshl_b32", s(3), s(sJ), 13)
        a.I("s_add_u32", s(sOwn), s(sG8), s(3))
        a.I("s_mul_i32", s(sJ160), s(sJ), 160)
        for k in range(3):
            P, r, pos, ch = T + 10, T + 11, T + 12, T + 13
            a.I("v_add_u32", v(P), 64 * k, v(vL))
            a.I("v_mul_u32_u24", v(r), 2731, v(P))
            a.I("v_lshrrev_b32", v(r), 16, v(r))
            a.I("v_mul_u32_u24", v(pos), 24, v(r))
            a.I("v_sub_u32", v(pos), v(P), v(pos))
            a.I("v_and_b32", v(ch), 6, v(r))
            a.I("v_xor_b32", v(ch), v(ch), v(pos))
            a.I("v_lshlrev_b32", v(ch), 4, v(ch))
            a.I("v_mul_u32_u24", v(T + 14), 384, v(r))
            a.I("v_add_u32", v(vVOF + k), v(T + 14), v(ch))
            a.I("v_mul_u32_u24", v(T + 14), 12288, v(r))
            a.I("v_add_u32", v(T + 4 + k), v(T + 14), v(ch))
        a.I("s_mul_i32", s(sT6), s(sH), 3145728)
        a.I("s_mul_i32", s(sT3), s(sJ), 98304)
        a.I("s_add_u32", s(sT6), s(sT6), s(sT3))
        a.I("s_add_u32", s(sT6), s(sT6), 2359296)
        a.I("s_mul_i32", s(sT7), s(sJ), 983040)
        a.I("s_mul_i32", s(sT3), s(sH), 384)
        a.I("s_add_u32", s(sT7), s(sT7), s(sT3))
        a.wait(lgkm=0)
        self.stamp("karg")
        self.srd(SRD_WS, pWS, None, hex(WS_BYTES))
        a.I("s_mov_b32", s(sT0), hex(EPOCH))
        a.I("s_load_dword", s(sTag), s(SRD_WS, 2), s(sT0))
        self.srd(SRD_X, pX, sJ160, 1280)
        if not self.clr_late:
            l7 = self.L("p7")
            self.if_wave(7, 8, l7)
            a.I("s_setprio", 3)
            self.clears()
            a.label(l7)
        self.srd(SRD_W, pWQ, sT7, 7864320)
        self.srd(SRD_K, pK, sT6, 100663296)
        lq = self.L("wqe")
        self.if_wave(0, 4, lq)
        for rep in range(3):
            if rep == 2:
                a.I("s_cmp_ge_u32", s(sW), 2)
                a.I("s_cbranch_scc1", lq)
            a.I("s_add_u32", s(sT2), s(sW), 4 * rep)
            a.I("s_mul_i32", s(sT3), s(sT2), 98304)
            a.I("s_mul_i32", s(sT2), s(sT2), 3072)
            for k in range(3):
                a.I("s_add_u32", "m0", s(sT2), LA + 1024 * k)
                a.I("buffer_load_dwordx4", v(T + 4 + k), s(SRD_W, 4), s(sT3), mods="offen" + self.nt_kv + " lds")
        a.label(lq)
        la = self.L("xf")
        self.if_wave(0, 4, la)
        a.I("v_lshlrev_b32", v(T + 12), 3, v(vG))
        for st in range(3):
            for p in range(2):
                if st == 2 and p == 1:
                    continue
                a.I("buffer_load_dwordx2", v(vXF + 4 * st + 2 * p, 2), v(T + 12), s(SRD_X, 4), 0, mods=f"offen offset:{64 * st + 32 * p}")
        a.label(la)
        a.I("s_mul_i32", s(sT3), s(sW), 12288)
        a.I("s_add_u32", s(sT2), s(sT3), LB)
        a.I("s_add_u32", s(sT4), s(sT3), 6144)
        for pos in range(2):
            for k in range(3):
                a.I("s_add_u32", "m0", s(sT2), 3072 * pos + 1024 * k)
                a.I("buffer_load_dwordx4", v(vVOF + k), s(SRD_K, 4), s(sT3 + pos), mods="offen" + self.nt_kv + " lds")
        self.stamp("ka_issued")
        if self.clr_late:
            l7 = self.L("p7")
            self.if_wave(7, 8, l7)
            self.clears()
            a.label(l7)
        self.srd(SRD_V, pV, sT6, 100663296)
        self.srd(SRD_DBG, pDBG, None, 256)
        a.I("s_mov_b32", s(sTmo), 0)
        a.I("s_mov_b32", s(sFast), 0)
        a.I("s_mov_b32", s(sP), 0)

    def perm_pos(self, dst, col, t):
        a = self.a
        a.I("v_and_b32", v(dst), "0x63", v(col))
        a.I("v_bfe_u32", v(t), v(col), 2, 2)
        a.I("v_lshl_add_u32", v(dst), v(t), 3, v(dst))
        a.I("v_bfe_u32", v(t), v(col), 4, 1)
        a.I("v_lshl_add_u32", v(dst), v(t), 2, v(dst))
        a.I("v_lshlrev_b32", v(dst), 1, v(dst))

    def x_cols(self):
        a = self.a
        T = vT
        a.I("s_min_u32", s(sT1), s(sW), 4)
        a.I("v_bfe_u32", v(T + 10), v(vL), 2, 2)
        a.I("v_lshlrev_b32", v(T + 11), 1, v(T + 10))
        a.I("v_lshrrev_b32", v(T + 12), 1, v(T + 10))
        a.I("v_and_b32", v(T + 11), 2, v(T + 11))
        a.I("v_or_b32", v(T + 11), v(T + 11), v(T + 12))
        a.I("v_lshl_add_u32", v(T + 11), v(vG), 2, v(T + 11))
        a.I("s_lshl_b32", s(sT2), s(sT1), 4)
        a.I("v_add_u32", v(T + 11), s(sT2), v(T + 11))
        a.I("v_lshlrev_b32", v(T + 30), 1, v(T + 11))
        a.I("v_mov_b32", v(vXCOL), v(T + 30))
        self.perm_pos(vXW, T + 11, T + 12)
        a.I("v_add_u32", v(vXW), XB, v(vXW))

    def kv_dma(self, srd, groups, slot):
        a = self.a
        lab = self.L("kv")
        a.I("s_mov_b32", s(sT2), LB + 6144 * slot)
        a.I("s_mov_b32", s(sT3), 3072 * groups[0])
        a.I("s_mov_b32", s(sT4), 3072 * groups[1])
        a.I("s_mov_b32", s(sT5), 0)
        a.label(lab)
        for pos in range(2):
            for k in range(3):
                a.I("s_add_u32", "m0", s(sT2), 3072 * pos + 1024 * k)
                a.I("buffer_load_dwordx4", v(vVOF + k), s(srd, 4), s(sT3 + pos), mods="offen" + self.nt_kv + " lds")
                if self.win and k == 2:
                    a.wait(vm=self.win - 3)
        a.I("s_add_u32", s(sT2), s(sT2), 12288)
        a.I("s_add_u32", s(sT3), s(sT3), 12288)
        a.I("s_add_u32", s(sT4), s(sT4), 12288)
        a.I("s_add_u32", s(sT5), s(sT5), 1)
        a.I("s_cmp_lt_u32", s(sT5), 8)
        a.I("s_cbranch_scc1", lab)

    def wq_dma(self):
        a = self.a
        T = vT
        a.I("s_mul_i32", s(sT2), s(sJ), 983040)
        a.I("s_mul_i32", s(sT3), s(sH), 384)
        a.I("s_add_u32", s(sT2), s(sT2), s(sT3))
        self.srd(SRD_W, pWQ, sT2, 7864320)
        lab = self.L("wq")
        a.I("s_mov_b32", s(sT2), LA)
        a.I("s_mov_b32", s(sT3), 0)
        a.label(lab)
        for k in range(3):
            a.I("s_add_u32", "m0", s(sT2), 1024 * k)
            a.I("buffer_load_dwordx4", v(T + 4 + k), s(SRD_W, 4), s(sT3), mods="offen" + self.nt_kv + " lds")
        a.I("s_add_u32", s(sT2), s(sT2), 3072)
        a.I("s_add_u32", s(sT3), s(sT3), 98304)
        a.I("s_cmp_lt_u32", s(sT2), LA + 30720)
        a.I("s_cbranch_scc1", lab)

    def clears(self):
        a = self.a
        T = vT
        for i in range(4):
            a.I("v_mov_b32", v(T + 16 + i), SENT)
        a.I("v_lshlrev_b32", v(T + 8), 4, v(vL))
        a.I("v_add_u32", v(T + 8), s(sOwn), v(T + 8))
        for k in range(CLRN):
            a.I("s_mov_b32", s(sT2), CLR0 + 1024 * k)
            a.I("buffer_store_dwordx4", v(T + 16, 4), v(T + 8), s(SRD_WS, 4), s(sT2), mods="offen sc1")
        a.I("s_mul_i32", s(sT2), s(sJ), 10240)
        a.I("s_lshl_b32", s(sT3), s(sH), 6)
        a.I("s_add_u32", s(sT2), s(sT2), s(sT3))
        a.I("s_add_u32", s(sT2), s(sT2), hex(YBASE))
        for half in range(2):
            a.I("v_lshrrev_b32", v(T + 10), 2, v(vL))
            if half:
                a.I("v_add_u32", v(T + 10), 16, v(T + 10))
                a.I("v_min_u32", v(T + 10), 19, v(T + 10))
            a.I("v_mul_u32_u24", v(T + 11), 52, v(T + 10))
            a.I("v_lshrrev_b32", v(T + 11), 8, v(T + 11))
            a.I("v_mul_u32_u24", v(T + 12), 5, v(T + 11))
            a.I("v_sub_u32", v(T + 12), v(T + 10), v(T + 12))
            a.I("v_mul_u32_u24", v(T + 11), YPK, v(T + 11))
            a.I("v_lshl_add_u32", v(T + 11), v(T + 12), 11, v(T + 11))
            a.I("v_and_b32", v(T + 12), 3, v(vL))
            a.I("v_lshl_add_u32", v(T + 11), v(T + 12), 4, v(T + 11))
            a.I("v_add_u32", v(T + 11), s(sT2), v(T + 11))
            a.I("buffer_store_dwordx4", v(T + 16, 4), v(T + 11), s(SRD_WS, 4), 0, mods="offen sc1")
        a.I("v_mov_b32", v(T + 40), 0)
        a.I("v_lshlrev_b32", v(T + 41), 2, v(vL))
        a.I("s_mov_b32", s(sT0), -1)
        a.I("s_mov_b32", s(sT1), "0xff")
        a.I("s_mov_b64", "exec", s(sT0, 2))
        a.I("buffer_load_dword", v(T + 40), v(T + 41), s(SRD_X, 4), 0, mods="offen")
        self.exec_all()

    def arrive(self):
        a = self.a
        T = vT
        a.I("s_and_b32", s(sT2), s(2), 7)
        a.I("s_lshl_b32", s(sT2), s(sT2), 5)
        a.I("v_mov_b32", v(T + 10), s(sT2))
        a.I("v_mov_b32", v(T + 11), 1)
        self.stamp("clr_ack")
        self.exi(1)
        a.I("buffer_atomic_add", v(T + 11), v(T + 10), s(SRD_DBG, 4), 0, mods="offen")
        self.exec_all()

    def stats0_publish(self, R):
        a = self.a
        lo, hi = R + 2, R + 3
        a.I("v_lshlrev_b32", v(lo), 16, v(R))
        a.I("v_and_b32", v(hi), "0xffff0000", v(R))
        a.I("v_add_f32", v(R), v(lo), v(hi))
        a.I("v_mul_f32", v(R + 1), v(lo), v(lo))
        a.I("v_fmac_f32", v(R + 1), v(hi), v(hi))
        for ctrl, row in (("quad_perm:[1,0,3,2]", 0xf), ("quad_perm:[2,3,0,1]", 0xf), ("row_half_mirror", 0xf), ("row_mirror", 0xf),
                          ("row_bcast:15", 0xa), ("row_bcast:31", 0xc)):
            self.dpp("v_add_f32", R, R, R, ctrl, row=row)
            self.dpp("v_add_f32", R + 1, R + 1, R + 1, ctrl, row=row)
        P = vT + 4
        a.I("s_getreg_b32", s(sT3), "hwreg(HW_REG_XCC_ID, 0, 4)")
        a.I("v_mov_b32", v(P), v(R))
        a.I("v_mov_b32", v(P + 1), s(sTag))
        a.I("v_mov_b32", v(P + 2), v(R + 1))
        a.I("v_mov_b32", v(P + 3), s(sTag))
        a.I("v_mov_b32", v(P + 4), s(sT3))
        a.I("v_mov_b32", v(P + 5), s(sTag))
        a.I("v_mov_b32", v(P + 6), s(sOwn))
        self.ex(m63)
        a.I("buffer_store_dwordx4", v(P, 4), v(P + 6), s(SRD_WS, 4), 0, mods="offen offset:3072 sc1")
        a.I("buffer_store_dwordx2", v(P + 4, 2), v(P + 6), s(SRD_WS, 4), 0, mods="offen offset:3088 sc1")
        self.exec_all()

    def q0_publish(self):
        a = self.a
        D, P = vT + 16, vT + 28
        a.I("s_mul_i32", s(sT0), s(sW), 384)
        a.I("s_add_u32", s(sT0), s(sT0), s(sOwn))
        a.I("v_lshlrev_b32", v(P + 8), 5, v(vG))
        a.I("v_mul_u32_u24", v(P + 9), 1536, v(vN))
        a.I("v_add3_u32", v(P + 8), v(P + 8), v(P + 9), s(sT0))
        for i in range(4):
            a.I("v_mov_b32", v(P + 2 * i + 1), s(sTag))
        for k in range(3):
            for i in range(4):
                a.I("v_mov_b32", v(P + 2 * i), v(D + 4 * k + i))
            self.ex(mN01)
            a.I("buffer_store_dwordx4", v(P, 4), v(P + 8), s(SRD_WS, 4), 0, mods=f"offen offset:{128 * k} sc1")
            a.I("buffer_store_dwordx4", v(P + 4, 4), v(P + 8), s(SRD_WS, 4), 0, mods=f"offen offset:{128 * k + 16} sc1")
            self.exec_all()

    def loader(self, fn):
        lab = self.L("ld")
        self.if_wave(LOADER, LOADER + 1, lab)
        fn()
        self.a.label(lab)

    def warmups(self):
        a = self.a
        if not (self.touch or self.codepf):
            return
        lab = self.L("wup")
        self.if_wave(6, 7, lab)
        R = vWT + 16
        if self.touch:
            a.I("v_mov_b32", v(R + 7), 0)
            self.exi(1)
            for k, (ptr, mul_h, mul_j) in enumerate(((pWO, 245760, 160), (pWG, 96, 245760), (pWU, 96, 245760), (pWD, 61440, 160), (pOUT, 0, 160))):
                a.I("s_mul_i32", s(sT0), s(sH), mul_h)
                a.I("s_mul_i32", s(sT1), s(sJ), mul_j)
                a.I("s_add_u32", s(sT0), s(sT0), s(sT1))
                self.srd(SRD_W, ptr, sT0, (7864320, 1966080, 1966080, 1966080, 1280)[k])
                a.I("buffer_load_ushort", v(R + k), v(R + 7), s(SRD_W, 4), 0, mods="offen")
            self.exec_all()
        if self.codepf:
            a.I("s_getpc_b64", s(sT0, 2))
            a.I("s_and_b32", s(sT0), s(sT0), "0xffffff00")
            a.I("v_lshlrev_b32", v(R + 6), 4, v(vL))
            a.I("v_mov_b32", v(R + 5), s(sT1))
            a.I("v_add_co_u32", v(R + 4), "vcc", s(sT0), v(R + 6))
            a.I("v_addc_co_u32", v(R + 5), "vcc", 0, v(R + 5), "vcc")
            for k in range(self.codepf):
                a.I("global_load_dwordx4", v(R, 4), v(R + 4, 2), "off")
                a.I("v_add_co_u32", v(R + 4), "vcc", 1024, v(R + 4))
                a.I("v_addc_co_u32", v(R + 5), "vcc", 0, v(R + 5), "vcc")
        a.label(lab)

    def layer1_load(self):
        a = self.a
        B = vT
        self.x_cols()
        a.I("buffer_load_ushort", v(vXR), v(vT + 30), s(SRD_X, 4), 0, mods="offen")
        self.warmups()
        self.setup2()
        T = vT + 44
        self.tr_base(T, 384, swz=True)
        la = self.L("l1w")
        self.if_wave(0, 4, la)
        a.wait(vm=7)
        self.stamp("wq_ok")
        a.label(la)
        a.wait(lgkm=0)
        a.I("s_add_u32", s(sTag), s(sTag), 1)
        a.I("s_barrier")
        self.stamp("Ba")
        self.loader(lambda: (a.I("s_setprio", 3), self.kv_dma(SRD_K, (1, 3), 1)))
        self.stamp("kb_issued")
        l7 = self.L("l17s")
        self.if_wave(7, 8, l7)
        a.wait(vm=1)
        self.arrive()
        self.stats0_publish(vT + 40)
        a.label(l7)
        la = self.L("l1q")
        self.if_wave(0, 4, la)
        for k in range(3):
            a.I("s_mul_i32", s(sT0), s(sW), 3)
            a.I("s_add_u32", s(sT0), s(sT0), k)
            a.I("s_and_b32", s(sT1), s(sT0), 3)
            a.I("s_lshl_b32", s(sT1), s(sT1), 5)
            a.I("s_lshr_b32", s(sT2), s(sT0), 2)
            a.I("s_lshl_b32", s(sT2), s(sT2), 7)
            a.I("v_xor_b32", v(T + 3), s(sT1), v(T))
            a.I("v_add_u32", v(T + 3), s(sT2), v(T + 3))
            for st in range(3):
                for p in range(2):
                    if st == 2 and p == 1:
                        continue
                    a.I("ds_read_b64_tr_b16", v(vWQ + 12 * k + 4 * st + 2 * p, 2), v(T + 3), mods=f"offset:{LA + 384 * (32 * st + 16 * p)}")
            a.I("v_mov_b32", v(vWQ + 12 * k + 10), 0)
            a.I("v_mov_b32", v(vWQ + 12 * k + 11), 0)
        for i in range(10):
            a.I("v_mov_b32", v(B + i), v(vXF + i))
        self.mask(sT0, 0x0002000200020002)
        a.I("s_mov_b64", "exec", s(sT0, 2))
        for i in range(10):
            a.I("v_mov_b32", v(B + i), "0x3f803f80")
        self.exec_all()
        a.I("v_mov_b32", v(B + 10), 0)
        a.I("v_mov_b32", v(B + 11), 0)
        a.wait(lgkm=0)
        self.q_mfma(publish=False)
        self.q0_publish()
        self.stamp("q_pub0")
        a.label(la)
        self.k_addr()
        self.wait_by_wave({0: 7, 1: 7, 2: 7, 3: 7, 4: 49, 5: 1, 6: 1 + (5 if self.touch else 0) + self.codepf, 7: 63})
        self.stamp("ka_landed")
        self.k_frags(0)
        a.wait(lgkm=0)
        a.I("s_barrier")
        self.loader(lambda: (self.kv_dma(SRD_V, (0, 1), 0), a.wait(vm=48)))
        if self.wo_early:
            lw = self.L("wo5")
            self.if_wave(5, 6, lw)
            self.wo_dma()
            a.label(lw)
        l_s = self.L("qg0s")
        self.if_wave(0, 3, l_s)
        self.delay("q0")
        self.qg0_issue()
        self.stamp("qg_iss0")
        a.label(l_s)
        a.I("s_barrier")
        self.stamp("Bc1")
        a.I("v_lshlrev_b32", v(vXR), 16, v(vXR))
        self.k_frags(1)
        a.wait(lgkm=0)
        self.handshake_issue()
        a.I("s_barrier")
        self.loader(lambda: (self.kv_dma(SRD_V, (2, 3), 1), a.wait(vm=48)))
        a.I("s_barrier")
        self.stamp("Be")
        if self.warm:
            lw = self.L("warm")
            self.if_wave(6, 7, lw)
            a.I("v_lshlrev_b32", v(vT + 8), 4, v(vL))
            a.I("v_add_u32", v(vT + 8), s(sOwn), v(vT + 8))
            for k in range(CLRN):
                a.I("s_mov_b32", s(sT2), CLR0 + 1024 * k)
                a.I("buffer_load_dwordx4", v(vWT + 4 * k, 4), v(vT + 8), s(SRD_WS, 4), s(sT2), mods="offen sc1")
            a.label(lw)
        T = self.v_frags(0, vT + 44)
        self.v_frag_reads(T, 0)

    def mask(self, m, val):
        self.a.I("s_mov_b32", s(m), hex(val & 0xffffffff))
        self.a.I("s_mov_b32", s(m + 1), hex(val >> 32))

    def setup2(self):
        a = self.a
        T = vT + 24
        self.mask(mN0, 0x0001000100010001)
        self.mask(mN01, 0x0003000300030003)
        self.mask(mQ0, 0x1111111111111111)
        self.mask(mY, 0x0011001100110011)
        self.mask(m63, 1 << 63)
        self.set_gp_mask()
        for i in range(16):
            a.I("v_mov_b32", v(vPA + i), 0)
        if self.stamps:
            a.I("v_mov_b32", v(vDBG), 0)
        a.I("v_lshlrev_b32", v(T), 4, v(vG))
        a.I("v_add_u32", v(vXB), XB, v(T))
        a.I("v_add_u32", v(vHB), HBL, v(T))
        a.I("v_add_u32", v(T + 1), ONES, v(T))
        a.I("v_cmp_eq_u32", "vcc", 1, v(vN))
        a.I("v_cndmask_b32", v(vXB), v(vXB), v(T + 1), "vcc")
        a.I("s_mul_i32", s(sT0), s(sW), 192)
        a.I("s_add_u32", s(sT0), s(sT0), s(sOwn))
        a.I("v_lshlrev_b32", v(T), 4, v(vG))
        a.I("v_mul_u32_u24", v(T + 1), 768, v(vN))
        a.I("v_add3_u32", v(vQPUB), v(T), v(T + 1), s(sT0))
        a.I("s_lshl_b32", s(sT0), s(sW), 6)
        a.I("s_add_u32", s(sT0), s(sT0), s(sOwn))
        a.I("v_mul_u32_u24", v(T + 1), 384, v(vN))
        a.I("v_add3_u32", v(vGPUB), v(T), v(T + 1), s(sT0))
        a.I("v_and_b32", v(T + 1), 1, v(vN))
        a.I("v_lshl_add_u32", v(T + 1), v(T + 1), 6, v(T))
        a.I("v_add_u32", v(vQA), QBL, v(T + 1))
        a.I("s_mul_i32", s(sT0), s(sW), 12288)
        a.I("s_add_u32", s(sT0), s(sT0), LB)
        a.I("v_lshlrev_b32", v(T), 2, v(vL))
        a.I("v_add_u32", v(vOAC), s(sT0), v(T))
        a.I("s_lshl_b32", s(sT0), s(sW), 8)
        a.I("s_add_u32", s(sT0), s(sT0), LB)
        a.I("v_add_u32", v(vORD), s(sT0), v(T))
        a.I("v_add_u32", v(vORD + 1), 12288 * 5, v(vORD))
        a.I("s_lshl_b32", s(sT0), s(sW), 2)
        a.I("s_add_u32", s(sT0), s(sT0), MXL)
        a.I("v_mov_b32", v(vMXW), s(sT0))
        a.I("s_min_u32", s(sT1), s(sW), 4)
        a.I("s_mul_i32", s(sT0), s(sJ), 10240)
        a.I("s_lshl_b32", s(sT2), s(sT1), 11)
        a.I("s_add_u32", s(sT0), s(sT0), s(sT2))
        a.I("s_add_u32", s(sT0), s(sT0), hex(YBASE))
        a.I("v_lshlrev_b32", v(T), 6, v(vN))
        a.I("v_lshl_add_u32", v(T), v(vG), 4, v(T))
        a.I("v_add_u32", v(vYG), s(sT0), v(T))
        a.I("s_lshl_b32", s(sT2), s(sH), 6)
        a.I("s_add_u32", s(sT0), s(sT0), s(sT2))
        a.I("v_lshlrev_b32", v(T), 4, v(vG))
        a.I("v_add_u32", v(vDP), s(sT0), v(T))
        a.I("v_lshrrev_b32", v(T + 1), 2, v(vN))
        a.I("v_lshl_add_u32", v(vYP), v(T + 1), 3, v(vDP))
        a.I("s_lshl_b32", s(sT0), s(sW), 8)
        a.I("s_add_u32", s(sT0), s(sT0), s(sG8))
        a.I("v_lshlrev_b32", v(T), 13, v(vG))
        a.I("v_lshl_add_u32", v(T), v(vN), 4, v(T))
        a.I("v_add_u32", v(vQG), s(sT0), v(T))
        a.I("v_and_b32", v(T), 7, v(vL))
        a.I("v_lshlrev_b32", v(T), 13, v(T))
        a.I("v_add_u32", v(vSG), s(sG8), v(T))
        a.I("v_lshrrev_b32", v(T), 3, v(vL))
        a.I("v_lshlrev_b32", v(T + 1), 13, v(T))
        a.I("v_add_u32", v(vOML), s(sG8), v(T + 1))
        a.I("s_sub_u32", s(sT0), s(sW), 5)
        a.I("s_lshl_b32", s(sT0), s(sT0), 3)
        a.I("v_and_b32", v(T + 2), 7, v(vL))
        a.I("v_add_u32", v(T + 2), s(sT0), v(T + 2))
        a.I("v_lshl_add_u32", v(vOG), v(T + 2), 4, v(vOML))
        a.I("v_mul_u32_u24", v(T + 1), 400, v(T))
        a.I("v_lshl_add_u32", v(T + 1), v(T + 2), 4, v(T + 1))
        a.I("v_add_u32", v(vOSW), OST, v(T + 1))
        a.I("v_and_b32", v(T), 7, v(vN))
        a.I("v_mul_u32_u24", v(T + 1), 400, v(T))
        a.I("v_lshl_add_u32", v(T + 1), v(vG), 4, v(T + 1))
        a.I("v_add_u32", v(vOSR), OST, v(T + 1))
        a.I("v_lshlrev_b32", v(T), 3, v(T))
        a.I("v_add_u32", v(vMLR), MLS, v(T))
        a.I("s_sub_u32", s(sT0), s(sW), 6)
        a.I("s_lshl_b32", s(sT0), s(sT0), 3)
        a.I("v_and_b32", v(T), 7, v(vL))
        a.I("v_add_u32", v(T), s(sT0), v(T))
        a.I("v_min_u32", v(T), 11, v(T))
        a.I("v_lshrrev_b32", v(T + 1), 3, v(vL))
        a.I("v_lshlrev_b32", v(T + 1), 13, v(T + 1))
        a.I("v_lshl_add_u32", v(T + 1), v(T), 4, v(T + 1))
        a.I("v_add_u32", v(vGG), s(sG8), v(T + 1))
        self.sigma_row(T + 2, T + 3)
        a.I("v_lshl_add_u32", v(T), v(T), 2, v(T + 2))
        self.perm_pos(vHW, T, T + 3)
        a.I("v_add_u32", v(vHW), HBL, v(vHW))
        a.I("v_lshl_add_u32", v(T), v(vN), 2, v(T + 2))
        a.I("s_lshl_b32", s(sT0), s(sW), 7)
        a.I("s_add_u32", s(sT0), s(sT0), QBL)
        a.I("v_lshl_add_u32", v(vQW), v(T), 1, s(sT0))
        a.I("v_lshrrev_b32", v(T), 5, v(vL))
        a.I("v_lshlrev_b32", v(T), 6, v(T))
        a.I("v_bfe_u32", v(T + 1), v(vL), 2, 2)
        a.I("v_lshl_add_u32", v(T), v(T + 1), 4, v(T))
        a.I("v_bfe_u32", v(T + 1), v(vL), 4, 1)
        a.I("v_lshl_add_u32", v(T), v(T + 1), 3, v(T))
        a.I("s_lshl_b32", s(sT0), s(sW), 7)
        a.I("s_add_u32", s(sT0), s(sT0), s(sOwn))
        a.I("v_add_u32", v(vOPUB), s(sT0), v(T))
        lab = self.L("c0")
        self.if_wave(0, 1, lab)
        a.I("v_lshlrev_b32", v(T), 2, v(vL))
        a.I("v_add_u32", v(T), ONES, v(T))
        a.I("v_mov_b32", v(T + 1), "0x3f803f80")
        a.I("s_mov_b32", s(sT0), -1)
        a.I("s_mov_b32", s(sT1), "0xffff")
        a.I("s_mov_b64", "exec", s(sT0, 2))
        a.I("ds_write_b32", v(T), v(T + 1))
        a.I("v_mov_b32", v(T + 1), 0)
        a.I("ds_write_b32", v(T), v(T + 1), mods=f"offset:{HBL - ONES}")
        a.I("v_subrev_u32", v(T), 192, v(T))
        a.I("ds_write_b32", v(T), v(T + 1))
        self.exec_all()
        a.label(lab)

    def x_write(self, xin):
        a = self.a
        t = vT + 12
        a.I("v_cvt_pk_bf16_f32", v(t), v(xin), v(xin))
        a.I("ds_write_b16", v(vXW), v(t))
        a.I("v_lshlrev_b32", v(vXR), 16, v(t))

    def read_xfrags(self, B):
        for st in range(3):
            self.a.I("ds_read_b128", v(B + 4 * st, 4), v(vXB), mods=f"offset:{64 * st}")

    def stats_read(self, R):
        a = self.a
        a.I("v_mov_b32", v(R), 0)
        a.I("v_lshlrev_b32", v(R + 1), 2, v(vL))
        a.I("v_add_u32", v(R + 1), XB, v(R + 1))
        a.I("s_mov_b32", s(sT0), -1)
        a.I("s_mov_b32", s(sT1), "0xffff")
        a.I("s_mov_b64", "exec", s(sT0, 2))
        a.I("ds_read_b32", v(R), v(R + 1))
        self.exec_all()

    def stats_publish(self, R, off_s, imm):
        a = self.a
        lo, hi = R + 2, R + 3
        a.I("v_lshlrev_b32", v(lo), 16, v(R))
        a.I("v_and_b32", v(hi), "0xffff0000", v(R))
        a.I("v_add_f32", v(R), v(lo), v(hi))
        a.I("v_mul_f32", v(R + 1), v(lo), v(lo))
        a.I("v_fmac_f32", v(R + 1), v(hi), v(hi))
        for ctrl, row in (("quad_perm:[1,0,3,2]", 0xf), ("quad_perm:[2,3,0,1]", 0xf), ("row_half_mirror", 0xf), ("row_mirror", 0xf),
                          ("row_bcast:15", 0xa), ("row_bcast:31", 0xc)):
            self.dpp("v_add_f32", R, R, R, ctrl, row=row)
            self.dpp("v_add_f32", R + 1, R + 1, R + 1, ctrl, row=row)
        a.I("v_mov_b32", v(lo), s(sOwn))
        self.ex(m63)
        self.store8("buffer_store_dwordx2", v(R, 2), v(lo), s(off_s), mods=f"offset:{imm}")
        self.exec_all()

    def q_mfma(self, publish=True):
        a = self.a
        B, D = vT, vT + 16
        for k in range(3):
            for st in range(3):
                a.I("v_mfma_f32_16x16x32_bf16", v(D + 4 * k, 4), v(vWQ + 12 * k + 4 * st, 4), v(B + 4 * st, 4), 0 if st == 0 else v(D + 4 * k, 4))
        if not publish:
            a.nop(8)
            return
        self.ex(mN0)
        for k in range(3):
            self.store8("buffer_store_dwordx4", v(D + 4 * k, 4), v(vQPUB), s(sPQ), mods=f"offset:{64 * k}" if k else "")
        self.exec_all()

    def q_phase1(self):
        a = self.a
        B, R = vT, vT + 40
        l7, le = self.L("q7"), self.L("qe")
        self.if_wave(0, 4, l7)
        self.read_xfrags(B)
        a.wait(lgkm=0)
        self.q_mfma()
        a.I("s_branch", le)
        a.label(l7)
        self.if_wave(7, 8, le)
        self.stats_read(R)
        a.wait(lgkm=0)
        self.stats_publish(R, sPQ, 768)
        a.label(le)

    def pub_mask(self):
        a = self.a
        a.I("s_cmp_eq_u32", s(sP), 0)
        a.I("s_cselect_b64", s(sT4, 2), s(mN01, 2), s(mN0, 2))

    def v_dma(self, part):
        a = self.a
        a.I("s_mul_i32", s(sT2), s(sW), 12288)
        a.I("s_add_u32", s(sT2), s(sT2), LB + 6144 * part)
        for grp in range(2):
            a.I("s_mov_b32", s(sT3), 6144 * part + 3072 * grp)
            for k in range(3):
                a.I("s_add_u32", "m0", s(sT2), 3072 * grp + 1024 * k)
                a.I("buffer_load_dwordx4", v(vVOF + k), s(SRD_V, 4), s(sT3), mods="offen" + self.nt_kv + " lds")

    HS = [sT0, sT1, sT2, sT3, sT4, sT5, sT6, sT7]

    def handshake_issue(self):
        a = self.a
        lab = self.L("hsi")
        self.if_wave(0, 1, lab)
        for k in range(8):
            a.I("s_load_dword", s(HSR[k]), s(SRD_DBG, 2), 32 * k)
        a.label(lab)

    def handshake(self):
        a = self.a
        l_ok, l_loop, l_skip = self.L("hs_ok"), self.L("hs_loop"), self.L("hs_skip")
        T = vT + 12
        self.if_wave(0, 1, l_skip)
        a.wait(lgkm=0)
        for k in range(1, 8):
            a.I("s_add_u32", s(HSR[0]), s(HSR[0]), s(HSR[k]))
        a.I("s_cmp_ge_u32", s(HSR[0]), 256)
        a.I("s_cbranch_scc1", l_ok)
        a.I("v_and_b32", v(T), 7, v(vL))
        a.I("v_lshlrev_b32", v(T), 5, v(T))
        a.label(l_loop)
        a.I("s_sleep", 32)
        a.I("buffer_load_dword", v(T + 1), v(T), s(SRD_DBG, 4), 0, mods="offen sc1")
        a.wait(vm=0)
        self.bfly8("v_add_u32", [T + 1])
        a.I("v_readfirstlane_b32", s(sT2), v(T + 1))
        a.I("s_cmp_ge_u32", s(sT2), 256)
        a.I("s_cbranch_scc1", l_ok)
        self.retry(l_loop)
        a.label(l_ok)
        self.stamp("hs_done")
        a.label(l_skip)

    def qg0_issue(self):
        a = self.a
        T = vT + 36
        a.I("s_lshl_b32", s(sT0), s(sW), 9)
        a.I("s_add_u32", s(sT0), s(sT0), s(sG8))
        a.I("v_lshlrev_b32", v(T), 13, v(vG))
        a.I("v_lshl_add_u32", v(T), v(vN), 5, v(T))
        a.I("v_add_u32", v(T), s(sT0), v(T))
        a.I("s_mov_b32", s(sT1), 32768)
        for pp in range(2):
            so = s(sT1) if pp else 0
            for hh in range(2):
                a.I("buffer_load_dwordx4", v(vT + 8 * pp + 4 * hh, 4), v(T), s(SRD_WS, 4), so, mods=f"offen offset:{16 * hh} sc1")
                a.I("buffer_load_dwordx4", v(vT + 16 + 8 * pp + 4 * hh, 4), v(T), s(SRD_WS, 4), so, mods=f"offen offset:{1536 + 16 * hh} sc1")
        a.I("buffer_load_dwordx4", v(vT + 32, 4), v(vSG), s(SRD_WS, 4), 0, mods="offen offset:3072 sc1")
        a.I("buffer_load_dwordx2", v(vT + 38, 2), v(vSG), s(SRD_WS, 4), 0, mods="offen offset:3088 sc1")

    def qg0_finish(self, l_retry):
        a = self.a
        chk = vT + 37
        tags = [vT + 2 * i + 1 for i in range(16)] + [vT + 33, vT + 35, vT + 39]
        a.I("v_xor_b32", v(chk), s(sTag), v(tags[0]))
        for t in tags[1:]:
            a.I("v_xor_b32", v(t), s(sTag), v(t))
            a.I("v_or_b32", v(chk), v(chk), v(t))
        a.I("v_cmp_ne_u32", "vcc", 0, v(chk))
        a.I("s_cmp_lg_u64", "vcc", 0)
        a.I("s_cbranch_scc1", l_retry)
        a.I("v_readfirstlane_b32", s(sT0), v(vT + 38))
        a.I("v_cmp_ne_u32", "vcc", s(sT0), v(vT + 38))
        a.I("s_cmp_eq_u64", "vcc", 0)
        a.I("s_cselect_b32", s(sT0), 0 if self.force_slow else 1, 0)
        a.I("v_mov_b32", v(vT + 36), FSL)
        a.I("v_mov_b32", v(vT + 37), s(sT0))
        a.I("ds_write_b32", v(vT + 36), v(vT + 37))
        A, CA, S = vT + 40, vT + 44, vT + 8
        for i in range(4):
            a.I("v_add_f32", v(A + i), v(vT + 2 * i), v(vT + 8 + 2 * i))
            a.I("v_add_f32", v(CA + i), v(vT + 16 + 2 * i), v(vT + 24 + 2 * i))
        a.I("v_mov_b32", v(S), v(vT + 32))
        a.I("v_mov_b32", v(S + 1), v(vT + 34))
        q, mean, rstd, t = vT + 21, vT + 22, vT + 23, vT + 24
        self.rr4_a(CA); self.rr4_b(CA); self.rr4_c(CA); self.rr4_d(CA, vCQ)
        self.rr4_a(A); self.rr4_b(A); self.rr4_c(A); self.rr4_d(A, q)
        self.stats_chain(S, mean, rstd, t)
        a.I("v_fma_f32", v(q), f"-v{mean}", v(vCQ), v(q))
        a.I("v_mul_f32", v(q), hex(f2u(QSCALE)), v(q))
        a.I("v_mul_f32", v(q), v(q), v(rstd))
        a.I("v_cvt_pk_bf16_f32", v(q), v(q), v(q))
        a.I("ds_write_b16", v(vQW), v(q))

    def qg_issue(self, pair):
        a = self.a
        A, Bq, S, CA, CB = vT, vT + 4, vT + 8, vT + 12, vT + 16
        a.I("buffer_load_dwordx4", v(A, 4), v(vQG), s(SRD_WS, 4), s(sPQ), mods="offen sc1")
        a.I("s_add_u32", s(sT0), s(sPQ), 32768)
        a.I("buffer_load_dwordx4", v(Bq, 4), v(vQG), s(SRD_WS, 4), s(sT0), mods="offen sc1")
        a.I("buffer_load_dwordx2", v(S, 2), v(vSG), s(SRD_WS, 4), s(sPQ), mods="offen offset:768 sc1")
        if pair == 0:
            a.I("buffer_load_dwordx4", v(CA, 4), v(vQG), s(SRD_WS, 4), s(sPQ), mods="offen offset:768 sc1")
            a.I("buffer_load_dwordx4", v(CB, 4), v(vQG), s(SRD_WS, 4), s(sT0), mods="offen offset:768 sc1")

    def stats_chain(self, S, mean, rstd, t):
        a = self.a
        self.bfly8("v_add_f32", [S, S + 1])
        a.I("v_mul_f32", v(mean), hex(f2u(1.0 / 640)), v(S))
        a.I("v_mul_f32", v(t), hex(f2u(1.0 / 640)), v(S + 1))
        a.I("v_fma_f32", v(t), f"-v{mean}", v(mean), v(t))
        a.I("v_max_f32", v(t), 0, v(t))
        a.I("v_add_f32", v(t), hex(f2u(1e-5)), v(t))
        a.I("v_rsq_f32", v(rstd), v(t))

    def qg_finish(self, pair, l_retry):
        a = self.a
        A, Bq, S, CA, CB = vT, vT + 4, vT + 8, vT + 12, vT + 16
        chk, q, mean, rstd, t = vT + 20, vT + 21, vT + 22, vT + 23, vT + 24
        regs = list(range(A, A + 10)) + (list(range(CA, CA + 8)) if pair == 0 else [])
        self.maxtree(regs, chk)
        for i in range(4):
            a.I("v_add_f32", v(A + i), v(A + i), v(Bq + i))
        self.branch_if_invalid(chk, l_retry)
        if pair == 0:
            for i in range(4):
                a.I("v_add_f32", v(CA + i), v(CA + i), v(CB + i))
            self.rr4_a(CA); self.rr4_b(CA); self.rr4_c(CA); self.rr4_d(CA, vCQ)
        self.rr4_a(A)
        self.dpp("v_add_f32", S, S, S, self.BF8[0]); self.dpp("v_add_f32", S + 1, S + 1, S + 1, self.BF8[0])
        self.rr4_b(A)
        self.dpp("v_add_f32", S, S, S, self.BF8[1]); self.dpp("v_add_f32", S + 1, S + 1, S + 1, self.BF8[1])
        self.rr4_c(A)
        self.dpp("v_add_f32", S, S, S, self.BF8[2]); self.dpp("v_add_f32", S + 1, S + 1, S + 1, self.BF8[2])
        self.rr4_d(A, q)
        a.I("v_mul_f32", v(mean), hex(f2u(1.0 / 640)), v(S))
        a.I("v_mul_f32", v(t), hex(f2u(1.0 / 640)), v(S + 1))
        a.I("v_fma_f32", v(t), f"-v{mean}", v(mean), v(t))
        a.I("v_fma_f32", v(q), f"-v{mean}", v(vCQ), v(q))
        a.I("v_max_f32", v(t), 0, v(t))
        a.I("v_add_f32", v(t), hex(f2u(1e-5)), v(t))
        a.I("v_rsq_f32", v(rstd), v(t))
        a.I("v_mul_f32", v(q), hex(f2u(QSCALE)), v(q))
        a.I("v_mul_f32", v(q), v(q), v(rstd))
        a.I("v_cvt_pk_bf16_f32", v(q), v(q), v(q))
        a.I("ds_write_b16", v(vQW), v(q))

    def q_gather0_finish(self, l_join):
        a = self.a
        l_w, l_chk, l_r = [self.L(x) for x in ("qg0w", "qg0c", "qg0r")]
        self.if_wave(0, 3, l_join)
        a.I("s_branch", l_w)
        a.label(l_r)
        self.qg0_issue()
        self.retry(l_w)
        a.label(l_w)
        a.wait(vm=0)
        self.qg0_finish(l_r)
        self.stamp("qg_ok0")
        a.I("s_branch", l_join)

    def q_gather1(self, l_join):
        a = self.a
        l_w, l_r = self.L("qg1w"), self.L("qg1r")
        self.if_wave(0, 3, l_join)
        self.delay("q")
        self.qg_issue(1)
        a.label(l_w)
        a.wait(vm=0)
        self.qg_finish(1, l_r)
        self.stamp("qg_ok1")
        self.tail_retry.append((l_r, lambda: self.qg_issue(1), l_w))

    def rowblock_dma(self, idx_s, ncol, rowbytes, mul, lds_base, clampP=None, T=vT + 40):
        a = self.a
        a.I("s_lshl_b32", s(sT4), s(idx_s), 6)
        a.I("v_add_u32", v(T), s(sT4), v(vL))
        if clampP is not None:
            a.I("v_min_u32", v(T), clampP, v(T))
        a.I("v_mul_u32_u24", v(T + 1), mul, v(T))
        a.I("v_lshrrev_b32", v(T + 1), 16, v(T + 1))
        a.I("v_mul_u32_u24", v(T + 2), ncol, v(T + 1))
        a.I("v_sub_u32", v(T + 2), v(T), v(T + 2))
        a.I("v_mul_u32_u24", v(T + 1), rowbytes, v(T + 1))
        a.I("v_lshl_add_u32", v(T + 3), v(T + 2), 4, v(T + 1))
        a.I("s_lshl_b32", s(sT4), s(idx_s), 10)
        a.I("s_add_u32", "m0", s(sT4), lds_base)
        a.I("buffer_load_dwordx4", v(T + 3), s(SRD_W, 4), 0, mods="offen" + self.nt_w + " lds")

    def wo_dma(self, T=vT + 32):
        a = self.a
        a.I("s_mul_i32", s(sT2), s(sH), 245760)
        a.I("s_add_u32", s(sT2), s(sT2), s(sJ160))
        self.srd(SRD_W, pWO, sT2, 7864320)
        for k in range(5):
            a.I("v_add_u32", v(T + 5), 64 * k, v(vL))
            a.I("v_mul_u32_u24", v(T + 6), 6554, v(T + 5))
            a.I("v_lshrrev_b32", v(T + 6), 16, v(T + 6))
            a.I("v_mul_u32_u24", v(T + 7), 10, v(T + 6))
            a.I("v_sub_u32", v(T + 7), v(T + 5), v(T + 7))
            a.I("v_mul_u32_u24", v(T + 6), 1280, v(T + 6))
            a.I("v_lshl_add_u32", v(T + k), v(T + 7), 4, v(T + 6))
        lab = self.L("wo")
        a.I("s_mov_b32", s(sT2), LC)
        a.I("s_mov_b32", s(sT3), 0)
        a.label(lab)
        for k in range(5):
            a.I("s_add_u32", "m0", s(sT2), 1024 * k)
            a.I("buffer_load_dwordx4", v(T + k), s(SRD_W, 4), s(sT3), mods="offen" + self.nt_w + " lds")
        a.I("s_add_u32", s(sT2), s(sT2), 5120)
        a.I("s_add_u32", s(sT3), s(sT3), 32 * 1280)
        a.I("s_cmp_lt_u32", s(sT2), LC + 30720)
        a.I("s_cbranch_scc1", lab)

    def gud_dma(self):
        a = self.a
        l6, l7, le = self.L("g6"), self.L("g7"), self.L("ge")
        a.I("s_mul_i32", s(sT2), s(sJ), 245760)
        a.I("s_mul_i32", s(sT3), s(sH), 96)
        a.I("s_add_u32", s(sT2), s(sT2), s(sT3))
        a.I("s_cmp_eq_u32", s(sW), 6)
        a.I("s_cbranch_scc1", l6)
        a.I("s_cmp_eq_u32", s(sW), 7)
        a.I("s_cbranch_scc1", l7)
        self.srd(SRD_W, pWG, sT2, 1966080)
        for k in range(8):
            a.I("s_mov_b32", s(sT0), k)
            self.rowblock_dma(sT0, 6, 3072, 10923, LA, clampP=479)
        a.I("s_branch", le)
        a.label(l6)
        self.srd(SRD_W, pWU, sT2, 1966080)
        for k in range(8):
            a.I("s_mov_b32", s(sT0), k)
            self.rowblock_dma(sT0, 6, 3072, 10923, LA + 8192, clampP=479)
        a.I("s_branch", le)
        a.label(l7)
        a.I("s_mul_i32", s(sT2), s(sH), 61440)
        a.I("s_add_u32", s(sT2), s(sT2), s(sJ160))
        self.srd(SRD_W, pWD, sT2, 1966080)
        for k in range(8):
            a.I("s_mov_b32", s(sT0), k)
            self.rowblock_dma(sT0, 10, 1280, 6554, LA + 16384, clampP=479)
        a.label(le)

    def v_frags(self, p, T=vT + 12):
        a = self.a
        self.tr_base(T, 384, swz=True)
        a.I("s_mul_i32", s(sT0), s(sW), 12288)
        a.I("s_add_u32", s(sT0), s(sT0), LB + 6144 * p)
        a.I("v_add_u32", v(T), s(sT0), v(T))
        for t in range(1, 4):
            a.I("v_xor_b32", v(T + t), 32 * t, v(T))
        return T

    def v_frag_reads(self, T, p):
        for t in range(4):
            for hi in range(3):
                tile = 4 * hi + t
                self.a.I("ds_read_b64_tr_b16", v(vV + 4 * tile + 2 * p, 2), v(T + t), mods=f"offset:{128 * hi}")

    def attention(self):
        a = self.a
        QA, S4, S, M, PK, O, Ls, F, X = vT, vT + 12, vT + 28, vT + 29, vT + 30, vT + 32, vT + 44, vT + 45, vT
        for l in range(3):
            a.I("ds_read_b128", v(QA + 4 * l, 4), v(vQA), mods=f"offset:{128 * l}")
        a.I("v_mov_b32", v(S), "0xff800000")
        a.wait(lgkm=0)
        for t in range(4):
            for l in range(3):
                a.I("v_mfma_f32_16x16x32_bf16", v(S4 + 4 * t, 4), v(QA + 4 * l, 4), v(vK + 12 * t + 4 * l, 4), 0 if l == 0 else v(S4 + 4 * t, 4))
            if t >= 2:
                tt = t - 2
                a.I("v_add_f32_dpp", v(S), v(S4 + 4 * tt), v(S4 + 4 * tt + 1), mods=f"row_ror:8 row_mask:{hex(1 << tt)} bank_mask:0xc")
        for tt in (2, 3):
            a.I("v_add_f32_dpp", v(S), v(S4 + 4 * tt), v(S4 + 4 * tt + 1), mods=f"row_ror:8 row_mask:{hex(1 << tt)} bank_mask:0xc")
        self.stamp("qk_1", 1)
        first = True
        for ctrl, row in (("quad_perm:[1,0,3,2]", 0xf), ("quad_perm:[2,3,0,1]", 0xf), ("row_half_mirror", 0xf), ("row_bcast:15", 0xa), ("row_bcast:31", 0xc)):
            if first:
                self.dpp("v_max_f32", M, S, S, ctrl, row=row)
                first = False
            else:
                self.dpp("v_max_f32", M, M, M, ctrl, row=row)
        a.I("v_readlane_b32", s(sM), v(M), 63)
        a.I("v_subrev_f32", v(S), s(sM), v(S))
        a.I("v_mov_b32", v(F), s(sM))
        a.I("v_exp_f32", v(S), v(S))
        self.exi(1)
        a.I("ds_write_b32", v(vMXW), v(F))
        self.exec_all()
        self.dpp("v_mov_b32", PK, S, None, "row_shl:1")
        a.I("v_cvt_pk_bf16_f32", v(PK), v(S), v(PK))
        a.I("v_mov_b32", v(Ls), v(S))
        lab = self.L("v1")
        self.if_pair0(lab)
        T = self.v_frags(1)
        self.stamp("softmax0")
        if self.wo_early:
            self.loader(lambda: (a.wait(vm=0), a.I("s_setprio", 0)))
        else:
            self.loader(lambda: (self.wo_dma(T=vT + 48 - 16), a.wait(vm=30), a.I("s_setprio", 0)))
        a.I("s_barrier")
        self.stamp("v_landed")
        self.v_frag_reads(T, 1)
        a.wait(lgkm=0)
        a.label(lab)
        for g2 in range(4):
            for i in range(4):
                a.I("v_mov_b32_dpp", v(vPA + 4 * g2 + i), v(PK), mods=f"row_newbcast:{8 + 2 * i} row_mask:0xf bank_mask:{hex(1 << g2)}")
            for i in range(3):
                a.I("v_mfma_f32_16x16x32_bf16", v(O + 4 * i, 4), v(vPA + 4 * g2, 4), v(vV + 4 * (4 * i + g2), 4), 0 if g2 == 0 else v(O + 4 * i, 4))
        self.stamp("pv_iss1", 1)
        a.wait(lgkm=0)
        a.I("s_barrier")
        self.stamp("B4_1", 1)
        a.I("v_mov_b32", v(vT + 46), MXL)
        a.I("ds_read_b128", v(X, 4), v(vT + 46))
        a.I("ds_read_b128", v(X + 4, 4), v(vT + 46), mods="offset:16")
        lab = self.L("ff")
        self.if_pair0(lab)
        a.I("ds_read_b32", v(vT + 47), v(vT + 46), mods=f"offset:{FSL - MXL}")
        a.wait(lgkm=0)
        a.I("v_readfirstlane_b32", s(sFast), v(vT + 47))
        a.label(lab)
        for ctrl, row in (("quad_perm:[1,0,3,2]", 0xf), ("quad_perm:[2,3,0,1]", 0xf), ("row_half_mirror", 0xf), ("row_bcast:15", 0xa), ("row_bcast:31", 0xc)):
            self.dpp("v_add_f32", Ls, Ls, Ls, ctrl, row=row)
        a.wait(lgkm=0)
        a.I("v_max3_f32", v(X), v(X), v(X + 1), v(X + 2))
        a.I("v_max3_f32", v(X + 3), v(X + 3), v(X + 4), v(X + 5))
        a.I("v_max3_f32", v(X), v(X), v(X + 6), v(X + 7))
        a.I("v_max_f32", v(X), v(X), v(X + 3))
        a.I("v_sub_f32", v(F), v(F), v(X))
        a.I("v_exp_f32", v(F), v(F))
        for i in range(3):
            a.I("v_mul_f32", v(O + 4 * i), v(O + 4 * i), v(F))
        a.I("v_mul_f32", v(Ls), v(Ls), v(F))
        self.stamp("pre_add1", 1)
        for i in range(3):
            a.I("ds_write_b32", v(vOAC), v(O + 4 * i), mods=f"offset:{256 * i}")
        self.ex(m63)
        a.I("ds_write_b32", v(vMXW), v(Ls), mods=f"offset:{LSL - MXL}")
        self.exec_all()
        lab = self.L("hs0")
        self.if_pair0(lab)
        self.handshake()
        a.label(lab)
        a.wait(lgkm=0)
        a.I("s_barrier")
        self.stamp("B5_1", 1)
        R = vT
        l_skip, l_ml = self.L("fc"), self.L("ml")
        self.if_wave(0, 3, l_ml)
        for w2 in range(8):
            a.I("ds_read_b32", v(R + w2), v(vORD + (w2 >= 5)), mods=f"offset:{12288 * (w2 if w2 < 5 else w2 - 5)}")
        a.wait(lgkm=0 if self.stamps else 4)
        a.I("v_add_f32", v(R), v(R), v(R + 1))
        a.I("v_add_f32", v(R + 2), v(R + 2), v(R + 3))
        a.wait(lgkm=0)
        a.I("v_add_f32", v(R + 4), v(R + 4), v(R + 5))
        a.I("v_add_f32", v(R + 6), v(R + 6), v(R + 7))
        a.I("v_add_f32", v(R), v(R), v(R + 2))
        a.I("v_add_f32", v(R + 4), v(R + 4), v(R + 6))
        a.I("v_add_f32", v(R), v(R), v(R + 4))
        self.dpp("v_mov_b32", R + 1, R, None, "row_shl:1")
        a.I("v_cvt_pk_bf16_f32", v(R + 2), v(R), v(R + 1))
        self.dpp("v_mov_b32", R + 3, R + 2, None, "row_shl:2")
        a.I("v_min_u32", v(R + 2), "0xfffffffe", v(R + 2))
        a.I("v_min_u32", v(R + 3), "0xfffffffe", v(R + 3))
        self.ex(mQ0)
        self.store8("buffer_store_dwordx2", v(R + 2, 2), v(vOPUB), s(sPO))
        self.exec_all()
        a.I("s_branch", l_skip)
        a.label(l_ml)
        self.if_wave(3, 4, l_skip)
        a.I("v_mov_b32", v(R + 12), LSL)
        a.I("ds_read_b128", v(R + 4, 4), v(R + 12))
        a.I("ds_read_b128", v(R + 8, 4), v(R + 12), mods="offset:16")
        a.I("v_mov_b32", v(R), v(X))
        a.I("v_mov_b32", v(R + 13), s(sOwn))
        a.wait(lgkm=0)
        for i in range(0, 8, 2):
            a.I("v_add_f32", v(R + 4 + i), v(R + 4 + i), v(R + 5 + i))
        a.I("v_add_f32", v(R + 4), v(R + 4), v(R + 6))
        a.I("v_add_f32", v(R + 8), v(R + 8), v(R + 10))
        a.I("v_add_f32", v(R + 1), v(R + 4), v(R + 8))
        self.exi(1)
        self.store8("buffer_store_dwordx2", v(R, 2), v(R + 13), s(sPO), mods="offset:384")
        self.exec_all()
        a.label(l_skip)
        self.stamp("o_pub0", 0)
        self.stamp("o_pub1", 1)

    def wo_frags(self, T=vT + 44):
        a = self.a
        self.tr_base(T, 160)
        a.I("s_lshl_b32", s(sT0), s(sW), 5)
        a.I("s_add_u32", s(sT0), s(sT0), LC)
        a.I("v_add_u32", v(T), s(sT0), v(T))
        for st in range(6):
            for p in range(2):
                a.I("ds_read_b64_tr_b16", v(vWT + 4 * st + 2 * p, 2), v(T), mods=f"offset:{160 * (32 * st + 16 * p)}")

    def og_issue(self):
        a = self.a
        a.I("buffer_load_dwordx4", v(vT, 4), v(vOG), s(SRD_WS, 4), s(sPO), mods="offen sc1")
        a.I("buffer_load_dwordx2", v(vT + 4, 2), v(vOML), s(SRD_WS, 4), s(sPO), mods="offen offset:384 sc1")

    def o_phase(self):
        a = self.a
        B, ML, D = vT, vT + 24, vT + 28
        Mx, W, U = vT + 33, vT + 34, vT + 36
        l_ng, l_w, l_r, l_skip2 = [self.L(x) for x in ("o_ng", "o_w", "o_r", "o_s2")]
        self.if_wave(5, 8, l_ng)
        a.I("v_lshrrev_b32", v(vT + 8), 3, v(vL))
        a.I("v_lshlrev_b32", v(vT + 8), 3, v(vT + 8))
        a.I("v_add_u32", v(vT + 8), MLS, v(vT + 8))
        self.delay("o")
        self.og_issue()
        self.stamp("o_iss1", 1)
        a.label(l_w)
        a.wait(vm=0)
        self.stamp("o_ret1", 1)
        self.maxtree(list(range(vT, vT + 6)), vT + 7)
        self.branch_if_invalid(vT + 7, l_r)
        a.I("ds_write_b128", v(vOSW), v(vT, 4))
        a.I("ds_write_b64", v(vT + 8), v(vT + 4, 2))
        self.stamp("o_ok0", 0)
        self.stamp("o_ok1", 1)
        self.tail_retry.append((l_r, lambda: self.og_issue(), l_w))
        l_pf = self.L("o_pf")
        a.I("s_branch", l_pf)
        a.label(l_ng)
        self.if_pair1(l_pf)
        self.wo_frags()
        a.label(l_pf)
        lab = self.L("o_wl")
        self.if_pair0(lab)
        if not self.wo_early:
            self.loader(lambda: a.wait(vm=0))
        a.label(lab)
        self.log_retries(1)
        a.wait(lgkm=0)
        a.I("s_barrier")
        self.stamp("Bo0", 0)
        self.stamp("Bo1", 1)
        lab, l_x = self.L("o_p0"), self.L("o_x")
        self.if_pair0(lab)
        self.if_wave(5, 8, l_x)
        self.gud_dma()
        a.I("s_branch", l_skip2)
        a.label(l_x)
        self.wo_frags()
        a.label(lab)
        self.if_wave(0, 5, l_skip2)
        for st in range(6):
            a.I("ds_read_b128", v(B + 4 * st, 4), v(vOSR), mods=f"offset:{64 * st}")
        a.I("ds_read_b64", v(ML, 2), v(vMLR))
        a.wait(lgkm=0)
        for st in range(6):
            a.I("v_mfma_f32_16x16x32_bf16", v(D, 4), v(vWT + 4 * st, 4), v(B + 4 * st, 4), 0 if st == 0 else v(D, 4))
            if st == 0:
                self.dpp("v_max_f32", Mx, ML, ML, self.BF8[0])
            if st == 1:
                self.dpp("v_max_f32", Mx, Mx, Mx, self.BF8[1])
            if st == 2:
                self.dpp("v_max_f32", Mx, Mx, Mx, self.BF8[2])
            if st == 3:
                a.I("v_sub_f32", v(W), v(ML), v(Mx))
            if st == 4:
                a.I("v_exp_f32", v(W), v(W))
        a.I("v_mul_f32", v(Mx), v(W), v(ML + 1))
        self.bfly8("v_add_f32", [Mx])
        a.I("v_rcp_f32", v(Mx), v(Mx))
        a.I("v_mul_f32", v(W), v(W), v(Mx))
        for i in range(4):
            a.I("v_mul_f32", v(D + i), v(D + i), v(W))
        a.I("v_add_f32_dpp", v(U), v(D), v(D), mods="row_shl:4 row_mask:0xf bank_mask:0x5")
        a.I("v_add_f32_dpp", v(U + 1), v(D + 1), v(D + 1), mods="row_shl:4 row_mask:0xf bank_mask:0x5")
        a.I("v_add_f32_dpp", v(U), v(D + 2), v(D + 2), mods="row_shr:4 row_mask:0xf bank_mask:0xa")
        a.I("v_add_f32_dpp", v(U + 1), v(D + 3), v(D + 3), mods="row_shr:4 row_mask:0xf bank_mask:0xa")
        for ctrl in ("quad_perm:[1,0,3,2]", "quad_perm:[2,3,0,1]"):
            self.dpp("v_add_f32", U, U, U, ctrl)
            self.dpp("v_add_f32", U + 1, U + 1, U + 1, ctrl)
        self.ex(mY)
        a.I("buffer_store_dwordx2", v(U, 2), v(vYP), s(SRD_WS, 4), s(sPY), mods="offen sc1")
        self.exec_all()
        self.stamp("y_pub0", 0)
        self.stamp("y_pub1", 1)
        a.label(l_skip2)

    def xg_issue(self, soff):
        a = self.a
        A = vT
        a.I("buffer_load_dwordx4", v(A, 4), v(vYG), s(SRD_WS, 4), s(soff), mods="offen sc1")
        a.I("buffer_load_dwordx4", v(A + 4, 4), v(vYG), s(SRD_WS, 4), s(soff), mods="offen offset:1024 sc1")

    def x_gather(self, soff, key, tag):
        a = self.a
        A = vT
        l_w, l_r = self.L("x_w"), self.L("x_r")
        self.delay(key)
        self.xg_issue(soff)
        self.stamp(tag + "_iss1", 1)
        a.label(l_w)
        a.wait(vm=0)
        self.stamp(tag + "_ret1", 1)
        chk, r01, r23, r = vT + 11, vT + 8, vT + 9, vT + 10
        self.maxtree(list(range(A, A + 8)), chk)
        for i in range(4):
            a.I("v_add_f32", v(A + i), v(A + i), v(A + 4 + i))
        self.branch_if_invalid(chk, l_r)
        a.I("v_add_f32_dpp", v(r01), v(A), v(A), mods="row_ror:8 row_mask:0xf bank_mask:0x3")
        a.I("v_add_f32_dpp", v(r23), v(A + 2), v(A + 2), mods="row_ror:8 row_mask:0xf bank_mask:0x3")
        a.I("v_add_f32_dpp", v(r01), v(A + 1), v(A + 1), mods="row_ror:8 row_mask:0xf bank_mask:0xc")
        a.I("v_add_f32_dpp", v(r23), v(A + 3), v(A + 3), mods="row_ror:8 row_mask:0xf bank_mask:0xc")
        a.I("v_add_f32_dpp", v(r), v(r01), v(r01), mods="row_shl:4 row_mask:0xf bank_mask:0x5")
        a.I("v_add_f32_dpp", v(r), v(r23), v(r23), mods="row_shr:4 row_mask:0xf bank_mask:0xa")
        self.dpp("v_add_f32", r, r, r, "quad_perm:[1,0,3,2]")
        self.dpp("v_add_f32", r, r, r, "quad_perm:[2,3,0,1]")
        a.I("v_add_f32", v(r), v(r), v(vXR))
        self.stamp(tag + "0", 0)
        self.stamp(tag + "1", 1)
        self.tail_retry.append((l_r, lambda: self.xg_issue(soff), l_w))
        return r

    def gu_tr_addr(self):
        a = self.a
        T = vT + 44
        self.tr_base(T, 96)
        a.I("s_cmp_ge_u32", s(sW), 3)
        a.I("s_cselect_b32", s(sT0), 8192 - 96, 0)
        a.I("s_lshl_b32", s(sT1), s(sW), 5)
        a.I("s_add_u32", s(sT0), s(sT0), s(sT1))
        a.I("s_add_u32", s(sT0), s(sT0), LA)
        a.I("v_add_u32", v(T), s(sT0), v(T))
        a.I("v_mov_b32", v(vWT + 10), 0)
        a.I("v_mov_b32", v(vWT + 11), 0)
        return T

    def gu_phase(self):
        a = self.a
        B, D, T, R = vT, vT + 16, vT + 44, vT + 24
        l_skip, l7, l_st = self.L("gu_s"), self.L("gu_7"), self.L("gu_st")
        self.if_wave(0, 6, l7)
        for st in range(3):
            for p in range(2):
                if st == 2 and p == 1:
                    continue
                a.I("ds_read_b64_tr_b16", v(vWT + 4 * st + 2 * p, 2), v(T), mods=f"offset:{96 * (32 * st + 16 * p)}")
        self.read_xfrags(B)
        a.wait(lgkm=0)
        for st in range(3):
            a.I("v_mfma_f32_16x16x32_bf16", v(D, 4), v(vWT + 4 * st, 4), v(B + 4 * st, 4), 0 if st == 0 else v(D, 4))
        self.ex(mGP)
        a.nop(7)
        self.store8("buffer_store_dwordx4", v(D, 4), v(vGPUB), s(sPG))
        self.exec_all()
        a.I("s_branch", l_skip)
        a.label(l7)
        self.if_wave(7, 8, l_skip)
        self.stats_read(R)
        a.wait(lgkm=0)
        self.stats_publish(R, sPG, 768)
        a.label(l_skip)

    def gg_issue(self, pair):
        a = self.a
        A = vT
        offs = (0, 192) if pair else (0, 192, 384, 576)
        for k, off in enumerate(offs):
            a.I("buffer_load_dwordx4", v(A + 4 * k, 4), v(vGG), s(SRD_WS, 4), s(sPG), mods=f"offen offset:{off} sc1")
        a.I("buffer_load_dwordx2", v(A + 16, 2), v(vSG), s(SRD_WS, 4), s(sPG), mods="offen offset:768 sc1")

    def gg_finish(self, pair, l_r):
        a = self.a
        A, S = vT, vT + 16
        chk, G, U, mean, rstd, t = vT + 18, vT + 19, vT + 20, vT + 21, vT + 22, vT + 23
        n = 8 if pair else 16
        self.maxtree(list(range(A, A + n)) + [S, S + 1], chk)
        self.branch_if_invalid(chk, l_r)
        if pair == 0:
            for base, out in ((A + 8, vCG), (A + 12, vCU)):
                self.rr4_a(base); self.rr4_b(base); self.rr4_c(base); self.rr4_d(base, out)
                self.dpp("v_add_f32", out, out, out, "row_ror:8")
        self.rr4_a(A); self.rr4_a(A + 4)
        self.dpp("v_add_f32", S, S, S, self.BF8[0]); self.dpp("v_add_f32", S + 1, S + 1, S + 1, self.BF8[0])
        self.rr4_b(A); self.rr4_b(A + 4)
        self.dpp("v_add_f32", S, S, S, self.BF8[1]); self.dpp("v_add_f32", S + 1, S + 1, S + 1, self.BF8[1])
        self.rr4_c(A); self.rr4_c(A + 4)
        self.dpp("v_add_f32", S, S, S, self.BF8[2]); self.dpp("v_add_f32", S + 1, S + 1, S + 1, self.BF8[2])
        self.rr4_d(A, G); self.rr4_d(A + 4, U)
        a.I("v_mul_f32", v(mean), hex(f2u(1.0 / 640)), v(S))
        a.I("v_mul_f32", v(t), hex(f2u(1.0 / 640)), v(S + 1))
        self.dpp("v_add_f32", G, G, G, "row_ror:8")
        self.dpp("v_add_f32", U, U, U, "row_ror:8")
        a.I("v_fma_f32", v(t), f"-v{mean}", v(mean), v(t))
        a.I("v_max_f32", v(t), 0, v(t))
        a.I("v_add_f32", v(t), hex(f2u(1e-5)), v(t))
        a.I("v_fma_f32", v(G), f"-v{mean}", v(vCG), v(G))
        a.I("v_fma_f32", v(U), f"-v{mean}", v(vCU), v(U))
        a.I("v_rcp_f32", v(rstd), v(t))
        a.I("v_mul_f32", v(G), v(G), v(U))
        a.I("v_mul_f32", v(G), v(G), v(rstd))
        a.I("v_cvt_pk_bf16_f32", v(G), v(G), v(G))
        a.I("ds_write_b16", v(vHW), v(G))

    def wd_prefetch(self):
        a = self.a
        T = vT + 44
        self.tr_base(T, 160)
        a.I("s_lshl_b32", s(sT0), s(sW), 5)
        a.I("s_add_u32", s(sT0), s(sT0), LA + 16384)
        a.I("v_add_u32", v(T), s(sT0), v(T))
        for st, p in ((0, 0), (0, 1), (1, 0)):
            a.I("ds_read_b64_tr_b16", v(vWT + 4 * st + 2 * p, 2), v(T), mods=f"offset:{160 * (32 * st + 16 * p)}")
        a.I("v_mov_b32", v(vWT + 6), 0)
        a.I("v_mov_b32", v(vWT + 7), 0)

    def g_gather(self):
        a = self.a
        l_skip, l_pf, l_p1, l_j = self.L("gg_s"), self.L("gg_pf"), self.L("gg_p1"), self.L("gg_j")
        self.if_wave(6, 8, l_pf)
        self.delay("g")
        for pair in (0, 1):
            l_w, l_r = self.L("gg_w"), self.L("gg_r")
            if pair == 0:
                self.if_pair0(l_p1)
            else:
                a.label(l_p1)
            self.gg_issue(pair)
            a.label(l_w)
            a.wait(vm=0)
            self.gg_finish(pair, l_r)
            self.stamp(f"gg_ok{pair}")
            self.tail_retry.append((l_r, (lambda p=pair: self.gg_issue(p)), l_w))
            a.I("s_branch", l_j)
        a.label(l_pf)
        self.if_wave(0, 5, l_j)
        self.wd_prefetch()
        a.label(l_j)
        self.log_retries(3)
        a.wait(lgkm=0)
        a.I("s_barrier")

    def d_phase(self):
        a = self.a
        B, D = vT, vT + 16
        l_skip = self.L("d_s")
        self.if_wave(0, 5, l_skip)
        for st in range(2):
            a.I("ds_read_b128", v(B + 4 * st, 4), v(vHB), mods=f"offset:{64 * st}")
        a.wait(lgkm=0)
        for st in range(2):
            a.I("v_mfma_f32_16x16x32_bf16", v(D, 4), v(vWT + 4 * st, 4), v(B + 4 * st, 4), 0 if st == 0 else v(D, 4))
        self.ex(mN0)
        a.nop(7)
        a.I("buffer_store_dwordx4", v(D, 4), v(vDP), s(SRD_WS, 4), s(sPD), mods="offen sc1")
        self.exec_all()
        a.label(l_skip)

    def set_pair_offsets(self):
        a = self.a
        a.I("s_mul_i32", s(sPQ), s(sP), QB[1])
        a.I("s_lshl_b32", s(sPO), s(sP), 9)
        a.I("s_add_u32", s(sPO), s(sPO), OB[0])
        a.I("s_lshl_b32", s(sPG), s(sP), 10)
        a.I("s_add_u32", s(sPG), s(sPG), GB[0])
        a.I("s_mul_i32", s(sPY), s(sP), 2 * YPK)
        a.I("s_add_u32", s(sPD), s(sPY), YPK)

    def set_gp_mask(self):
        a = self.a
        a.I("s_cmp_eq_u32", s(sP), 0)
        a.I("s_cselect_b64", s(mGP, 2), s(mN01, 2), s(mN0, 2))

    def build(self):
        a = self.a
        self.tail_retry = []
        if self.stamps and (self.stamp_sel is None or "start" in self.stamp_sel):
            pass
        self.prologue()
        self.set_pair_offsets()
        l_qj = self.L("qgJ")
        self.layer1_load()
        self.q_gather0_finish(l_qj)
        a.label("L_pair")
        l_skip = self.L("xs")
        self.if_wave(0, 5, l_skip)
        self.x_write(vT + 10)
        a.label(l_skip)
        a.wait(lgkm=0)
        a.I("s_barrier")
        self.stamp("B2_1")
        self.q_phase1()
        self.stamp("q_pub1")
        self.q_gather1(l_qj)
        a.label(l_qj)
        self.log_retries(0)
        a.wait(lgkm=0)
        a.I("s_barrier")
        self.stamp("B3_0", 0)
        self.stamp("B3_1", 1)
        self.attention()
        self.o_phase()
        l_skip, l_w = self.L("xs2"), self.L("xw")
        lg = self.L("gua")
        self.if_wave(0, 6, lg)
        self.gu_tr_addr()
        a.label(lg)
        self.if_wave(0, 5, l_w)
        r = self.x_gather(sPY, "y", "yg_ok")
        self.x_write(r)
        a.I("s_branch", l_skip)
        a.label(l_w)
        a.wait(vm=0)
        a.label(l_skip)
        self.log_retries(2)
        a.wait(lgkm=0)
        a.I("s_barrier")
        self.stamp("B6_1", 1)
        self.gu_phase()
        self.stamp("g_pub1", 1)
        self.g_gather()
        self.stamp("B7_1", 1)
        self.d_phase()
        self.stamp("d_pub0", 0)
        self.stamp("d_pub1", 1)
        l_fin = self.L("fin")
        a.I("s_cmp_eq_u32", s(sP), 1)
        a.I("s_cbranch_scc1", l_fin)
        l_skip = self.L("xs3")
        self.if_wave(0, 5, l_skip)
        r = self.x_gather(sPD, "d", "dg_ok")
        assert r == vT + 10
        a.label(l_skip)
        self.log_retries(4)
        a.I("s_mov_b32", s(sP), 1)
        self.set_pair_offsets()
        self.set_gp_mask()
        a.I("s_branch", "L_pair")
        a.label(l_fin)
        a.I("s_cmp_lg_u32", s(sH), 0)
        a.I("s_cbranch_scc1", "L_dump")
        self.if_wave(0, 5, "L_dump")
        self.srd(SRD_X, pOUT, sJ160, 1280)
        a.I("v_mov_b32", v(vT + 13), v(vXCOL))
        r = self.x_gather(sPD, "d", "fin_ok")
        a.I("v_cvt_pk_bf16_f32", v(r), v(r), v(r))
        self.ex(mQ0)
        a.I("buffer_store_short", v(r), v(vT + 13), s(SRD_X, 4), 0, mods="offen")
        self.exec_all()
        self.log_retries(4)
        lab = self.L("ep")
        a.I("s_or_b32", s(sT0), s(sJ), s(sW))
        a.I("s_cmp_lg_u32", s(sT0), 0)
        a.I("s_cbranch_scc1", lab)
        a.I("v_mov_b32", v(vT), s(sTag))
        a.I("v_mov_b32", v(vT + 1), hex(EPOCH))
        self.exi(1)
        a.I("buffer_store_dword", v(vT), v(vT + 1), s(SRD_WS, 4), 0, mods="offen sc1")
        self.exec_all()
        a.label(lab)
        a.label("L_dump")
        if self.stamps:
            self.stamp("end")
            a.wait(lgkm=0)
            T = vT
            a.I("v_mov_b32", v(T), 0)
            for k in range(len(self.stamp_names)):
                a.I("v_writelane_b32", v(T), s(STAMP_SLOTS[k]), k)
            a.I("v_writelane_b32", v(T), s(sTmo), 14)
            a.I("v_writelane_b32", v(T), s(sFast), 15)
            if self.dbgout:
                lab = self.L("dbo")
                a.I("s_cmp_lg_u32", s(sW), 0)
                a.I("s_cbranch_scc1", lab)
                a.I("s_cmp_eq_u32", s(2), 0)
                a.I("s_cselect_b32", s(sT1), 4, 36)
                a.I("s_cmp_eq_u32", s(2), 255)
                a.I("s_cselect_b32", s(sT2), 1, 0)
                a.I("s_cmp_eq_u32", s(2), 0)
                a.I("s_cselect_b32", s(sT2), 1, s(sT2))
                a.I("s_cmp_eq_u32", s(sT2), 0)
                a.I("s_cbranch_scc1", lab)
                a.I("v_subrev_u32", v(T + 2), s(STAMP_SLOTS[0]), v(T))
                a.I("v_lshlrev_b32", v(T + 3), 2, v(vL))
                a.I("v_add_u32", v(T + 3), s(sT1), v(T + 3))
                a.I("v_subrev_u32", v(T + 3), 4, v(T + 3))
                a.I("s_mov_b64", "exec", "0xfe")
                a.I("buffer_store_dword", v(T + 2), v(T + 3), s(SRD_DBG, 4), 0, mods="offen")
                self.exec_all()
                a.label(lab)
            a.I("s_lshl_b32", s(sT0), s(2), 3)
            a.I("s_add_u32", s(sT0), s(sT0), s(sW))
            a.I("s_lshl_b32", s(sT0), s(sT0), 7)
            a.I("s_add_u32", s(sT0), s(sT0), hex(DBGBASE))
            a.I("v_lshlrev_b32", v(T + 1), 2, v(vL))
            a.I("v_add_u32", v(T + 1), s(sT0), v(T + 1))
            a.I("s_mov_b64", "exec", "0xffff")
            a.I("buffer_store_dword", v(T), v(T + 1), s(SRD_WS, 4), 0, mods="offen")
            a.I("buffer_store_dword", v(vDBG), v(T + 1), s(SRD_WS, 4), 0, mods="offen offset:64")
            self.exec_all()
        a.label("L_end")
        a.I("s_endpgm")
        for (lab, fn, back) in self.tail_retry:
            a.label(lab)
            fn()
            self.retry(back)
        for (lab, op, data, vaddr, soff, mods, back) in self.ool:
            a.label(lab)
            a.I(op, data, vaddr, s(SRD_WS, 4), soff, mods=mods)
            a.I("s_branch", back)
        return a.fix()

    def text(self):
        hdr = open(os.path.join(os.path.dirname(os.path.abspath(__file__)), "header.txt")).read()
        body = self.a.text()
        return f"""{hdr}; @launch grid=(256,1,1) block=(512,1,1) lds={LDS_BYTES}
.amdgcn_target "amdgcn-amd-amdhsa--gfx950"
.text
.globl {KNAME}
.p2align 8
.type {KNAME},@function
{KNAME}:
{body}.section .rodata,"a"
.p2align 6
.amdhsa_kernel {KNAME}
  .amdhsa_next_free_vgpr 256
  .amdhsa_next_free_sgpr 102
  .amdhsa_accum_offset 256
  .amdhsa_group_segment_fixed_size 0
  .amdhsa_kernarg_size 96
  .amdhsa_user_sgpr_count 2
  .amdhsa_user_sgpr_kernarg_segment_ptr 1
  .amdhsa_system_sgpr_workgroup_id_x 1
.end_amdhsa_kernel
"""


def make(**kw):
    g = Gen(**kw)
    g.build()
    return g, g.text()


if __name__ == "__main__":
    out = sys.argv[1] if len(sys.argv) > 1 else "interleave_layers__sliding_block_cached__glu_gated_bilinear__decode.s"
    kw = {}
    for x in sys.argv[2:]:
        k, val = x.split("=")
        kw[k] = val.split(",") if k == "stamp_sel" else int(val)
    g, t = make(**kw)
    open(out, "w").write(t)
    print("instructions:", g.a.count(), "stamps:", g.stamp_names)
```

```python
import sys, os, struct
sys.path.insert(0, os.path.dirname(os.path.abspath(__file__)))
from asmlib import Asm, v, s

KNAME = "interleave_layers__sliding_block_cached__glu_gated_bilinear__decode_kernel"

LA = 0
LB = 30720
LC = 129024
LM = 159744
XB = LM
ONES = LM + 192
QBL = LM + 384
HBL = LM + 768
MXL = LM + 896
FSL = LM + 928
LSL = LM + 960
OST = LB + 1024
MLS = OST + 3200
LDS_BYTES = 163840

SLOT = 8192
QB = [0, 3328]
OB = [4224, 4736]
GB = [5248, 6272]
CLR0, CLRN = 3328, 4
EPOCH = 0x3F0000
YBASE = 0x200000
YPK = 81920
WS_BYTES = 0x400000
DBGBASE = 0x300000

sH, sJ, sW, sP = 4, 5, 6, 7
SRD_WS, SRD_DBG, SRD_K, SRD_V, SRD_W, SRD_X = 8, 12, 16, 20, 24, 28
mN0, mN01, mQ0, mY, mGP, m63 = 32, 34, 36, 38, 40, 42
sOwn, sG8, sFast, sTmo, sM, sPQ, sPO, sPG, sPY, sPD = 44, 45, 46, 47, 48, 49, 50, 51, 52, 53
sT0, sT1, sT2, sT3, sT4, sT5, sT6, sT7 = 54, 55, 56, 57, 58, 59, 60, 61
sJ160 = 62
sTag = 63
HSR = [16, 17, 18, 19, 28, 29, 30, 31]
sKA = 64
pX, pK, pV, pWQ, pWO, pWG, pWU, pWD, pOUT, pDBG, pWS = 64, 66, 68, 70, 72, 76, 78, 80, 82, 84, 86
STAMP_SLOTS = [88, 90, 92, 94, 96, 98, 100, 64, 66, 68, 70, 74, 84, 86]

vL, vG, vN = 1, 2, 3
vXB, vXW, vYG, vYP, vDP, vQG, vSG, vGG = 4, 5, 6, 7, 8, 9, 10, 12
vOG = 0
vXR, vCQ, vCG, vCU = 13, 14, 15, 16
vQPUB, vGPUB, vQA = 17, 18, 19
vT = 20
vQW, vHW, vHB, vOAC, vOPUB, vMXW, vVOF, vORD, vDBG = 68, 69, 70, 71, 72, 73, 74, 77, 79
vPA = 80
vWT = 96
vWQ = 120
vOML, vOSW, vOSR, vMLR = 156, 157, 158, 159
vXCOL = 11
vXF = 96
vV = 160
vK = 208

SENT = -1
LOG2E = 1.4426950408889634
QSCALE = (192.0 ** -0.5) * LOG2E


def f2u(x):
    return struct.unpack("<I", struct.pack("<f", x))[0]


LOADER = 4


class Gen:
    def __init__(self, nt_kv=True, nt_w=False, stamps=False, d_q=0, d_o=0, d_y=0, d_g=0, d_d=0, force_slow=False,
                 tmo=0x40000, stamp_sel=None, rt=True, rsleep=0, clr_late=1, d_q0=0, warm=1, dbgout=0, wo_early=0, win=0, touch=0, codepf=0, stouch=0):
        self.a = Asm()
        self.ool = []
        self.nt_kv = " nt" if nt_kv else ""
        self.nt_w = " nt" if nt_w else ""
        self.stamps = stamps
        self.stamp_names = []
        self.stamp_sel = stamp_sel
        self.rt = rt
        self.d = dict(q=d_q, o=d_o, y=d_y, g=d_g, d=d_d, q0=d_q0)
        self.force_slow = force_slow
        self.tmo = tmo
        self.rsleep = rsleep
        self.clr_late = clr_late
        self.warm = warm
        self.touch = touch
        self.stouch = stouch
        self.codepf = codepf
        self.win = win
        self.wo_early = wo_early
        self.dbgout = dbgout
        self.uid = 0
        self.nretry = 0

    def L(self, base):
        self.uid += 1
        return f"L_{base}_{self.uid}"

    def stamp(self, name, pair=None):
        if not self.stamps or (self.stamp_sel is not None and name not in self.stamp_sel):
            return
        a = self.a
        k = len(self.stamp_names)
        if k >= len(STAMP_SLOTS):
            return
        self.stamp_names.append(name)
        op = "s_memrealtime" if self.rt else "s_memtime"
        if pair is None:
            a.I(op, s(STAMP_SLOTS[k], 2))
        else:
            lab = self.L("st")
            a.I("s_cmp_lg_u32", s(sP), pair)
            a.I("s_cbranch_scc1", lab)
            a.I(op, s(STAMP_SLOTS[k], 2))
            a.label(lab)

    def log_retries(self, hop):
        if not self.stamps:
            return
        a = self.a
        a.I("s_lshl_b32", s(sT7), s(sP), 3)
        a.I("s_add_u32", s(sT7), s(sT7), hop)
        a.I("s_mov_b32", "m0", s(sT7))
        a.I("v_writelane_b32", v(vDBG), s(sTmo), "m0")

    def srd(self, d, lo, off_s, size):
        a = self.a
        if off_s is None:
            a.I("s_mov_b32", s(d), s(lo))
            a.I("s_mov_b32", s(d + 1), s(lo + 1))
            a.I("s_mov_b32", s(d + 2), size)
        else:
            a.I("s_add_u32", s(d), s(lo), s(off_s))
            a.I("s_addc_u32", s(d + 1), s(lo + 1), 0)
            a.I("s_sub_u32", s(d + 2), size, s(off_s))
        a.I("s_mov_b32", s(d + 3), "0x20000")

    def ex(self, mask):
        self.a.I("s_mov_b64", "exec", s(mask, 2) if isinstance(mask, int) and mask >= 32 else mask)

    def exi(self, imm):
        self.a.I("s_mov_b64", "exec", imm)

    def exec_all(self):
        self.a.I("s_mov_b64", "exec", -1)

    def if_wave(self, lo, hi, else_label):
        a = self.a
        if hi - lo == 1:
            a.I("s_cmp_lg_u32", s(sW), lo)
            a.I("s_cbranch_scc1", else_label)
            return
        if lo > 0:
            a.I("s_cmp_lt_u32", s(sW), lo)
            a.I("s_cbranch_scc1", else_label)
        if hi < 8:
            a.I("s_cmp_ge_u32", s(sW), hi)
            a.I("s_cbranch_scc1", else_label)

    def if_pair0(self, else_label):
        self.a.I("s_cmp_lg_u32", s(sP), 0)
        self.a.I("s_cbranch_scc1", else_label)

    def if_pair1(self, else_label):
        self.a.I("s_cmp_eq_u32", s(sP), 0)
        self.a.I("s_cbranch_scc1", else_label)

    def store8(self, op, data, vaddr, soff, mods=""):
        a = self.a
        l_slow, l_done = self.L("slow"), self.L("sd")
        a.I("s_cmp_eq_u32", s(sFast), 0)
        a.I("s_cbranch_scc1", l_slow)
        a.I(op, data, vaddr, s(SRD_WS, 4), soff, mods=("offen " + mods).strip())
        a.label(l_done)
        self.ool.append((l_slow, op, data, vaddr, soff, ("offen " + mods + " sc1").strip(), l_done))

    def retry(self, loop_label):
        a = self.a
        if self.rsleep:
            a.I("s_sleep", self.rsleep)
        a.I("s_add_u32", s(sTmo), s(sTmo), 1)
        a.I("s_cmp_lt_u32", s(sTmo), hex(self.tmo))
        a.I("s_cbranch_scc1", loop_label)
        a.I("s_branch", "L_end")

    def maxtree(self, regs, tmp):
        a = self.a
        regs = list(regs)
        first = True
        while regs:
            if first:
                if len(regs) >= 3:
                    a.I("v_max3_u32", v(tmp), v(regs[0]), v(regs[1]), v(regs[2]))
                    regs = regs[3:]
                else:
                    a.I("v_max_u32", v(tmp), v(regs[0]), v(regs[-1]))
                    regs = []
                first = False
            elif len(regs) >= 2:
                a.I("v_max3_u32", v(tmp), v(tmp), v(regs[0]), v(regs[1]))
                regs = regs[2:]
            else:
                a.I("v_max_u32", v(tmp), v(tmp), v(regs[0]))
                regs = []

    def branch_if_invalid(self, tmp, retry_label):
        a = self.a
        a.I("v_cmp_eq_u32", "vcc", SENT, v(tmp))
        a.I("s_cmp_lg_u64", "vcc", 0)
        a.I("s_cbranch_scc1", retry_label)

    def wait_by_wave(self, counts):
        a = self.a
        done = self.L("wbw")
        vals = sorted(set(counts.values()))
        for val in vals[:-1]:
            nxt, hit = self.L("wbn"), self.L("wbh")
            for w in [w for w, c in counts.items() if c == val]:
                a.I("s_cmp_eq_u32", s(sW), w)
                a.I("s_cbranch_scc1", hit)
            a.I("s_branch", nxt)
            a.label(hit)
            a.wait(vm=val)
            a.I("s_branch", done)
            a.label(nxt)
        a.wait(vm=vals[-1])
        a.label(done)

    def k_addr(self):
        a = self.a
        T = vT + 40
        a.I("v_and_b32", v(T + 2), 3, v(vN))
        a.I("v_bfe_u32", v(T + 3), v(vN), 2, 1)
        a.I("v_mul_u32_u24", v(T), 384, v(T + 2))
        a.I("v_mul_u32_u24", v(T + 3), 3072, v(T + 3))
        a.I("v_add_u32", v(T), v(T), v(T + 3))
        a.I("v_lshrrev_b32", v(T + 3), 3, v(vN))
        a.I("v_lshl_add_u32", v(T + 3), v(T + 3), 2, v(vG))
        a.I("v_and_b32", v(T + 2), 2, v(T + 2))
        a.I("v_xor_b32", v(T + 3), v(T + 3), v(T + 2))
        a.I("v_lshl_add_u32", v(T), v(T + 3), 4, v(T))
        a.I("s_mul_i32", s(sT2), s(sW), 12288)
        a.I("s_add_u32", s(sT2), s(sT2), LB)
        a.I("v_add_u32", v(T), s(sT2), v(T))
        a.I("v_xor_b32", v(T + 1), 64, v(T))
        a.I("v_add_u32", v(T + 1), 1536, v(T + 1))

    def k_frags(self, part):
        T = vT + 40
        for tt in range(2):
            t = 2 * part + tt
            for l in range(3):
                self.a.I("ds_read_b128", v(vK + 12 * t + 4 * l, 4), v(T + tt), mods=f"offset:{6144 * part + 128 * l}")

    def delay(self, key):
        n = self.d[key]
        if n:
            self.a.I("s_sleep", n)

    def dpp(self, op, dst, src0, src1, ctrl, row=0xf, bank=0xf):
        mods = f"{ctrl} row_mask:{hex(row)} bank_mask:{hex(bank)}"
        if src1 is None:
            self.a.I(op + "_dpp", v(dst), v(src0), mods=mods)
        else:
            self.a.I(op + "_dpp", v(dst), v(src0), v(src1), mods=mods)

    BF8 = ("quad_perm:[1,0,3,2]", "quad_perm:[2,3,0,1]", "row_half_mirror")

    def bfly8(self, op, regs):
        for ctrl in self.BF8:
            for r in regs:
                self.dpp(op, r, r, r, ctrl)

    def rr4_a(self, a0):
        a = self.a
        a.I("v_permlane32_swap_b32", v(a0), v(a0 + 1))
        a.I("v_permlane32_swap_b32", v(a0 + 2), v(a0 + 3))

    def rr4_b(self, a0):
        a = self.a
        a.I("v_add_f32", v(a0), v(a0), v(a0 + 1))
        a.I("v_add_f32", v(a0 + 2), v(a0 + 2), v(a0 + 3))

    def rr4_c(self, a0):
        self.a.I("v_permlane16_swap_b32", v(a0), v(a0 + 2))

    def rr4_d(self, a0, out):
        self.a.I("v_add_f32", v(out), v(a0), v(a0 + 2))

    def sigma_row(self, dst, tmp):
        a = self.a
        a.I("v_lshlrev_b32", v(dst), 1, v(vG))
        a.I("v_lshrrev_b32", v(tmp), 1, v(vG))
        a.I("v_and_b32", v(dst), 2, v(dst))
        a.I("v_or_b32", v(dst), v(dst), v(tmp))

    def tr_base(self, dst, pitch, swz=False):
        a = self.a
        a.I("v_lshrrev_b32", v(dst + 1), 2, v(vN))
        a.I("v_lshl_add_u32", v(dst + 1), v(vG), 2, v(dst + 1))
        a.I("v_mul_u32_u24", v(dst), pitch, v(dst + 1))
        if swz:
            a.I("v_and_b32", v(dst + 1), 6, v(dst + 1))
            a.I("v_bfe_u32", v(dst + 2), v(vN), 1, 1)
            a.I("v_xor_b32", v(dst + 1), v(dst + 1), v(dst + 2))
            a.I("v_lshl_add_u32", v(dst), v(dst + 1), 4, v(dst))
            a.I("v_and_b32", v(dst + 2), 1, v(vN))
            a.I("v_lshl_add_u32", v(dst), v(dst + 2), 3, v(dst))
        else:
            a.I("v_and_b32", v(dst + 2), 3, v(vN))
            a.I("v_lshl_add_u32", v(dst), v(dst + 2), 3, v(dst))

    def prologue(self):
        a = self.a
        T = vT
        a.I("s_cmp_ge_u32", s(2), 256)
        a.I("s_cbranch_scc1", "L_end")
        self.stamp("start")
        a.I("s_load_dwordx16", s(sKA, 16), s(0, 2), 0)
        a.I("s_load_dwordx8", s(sKA + 16, 8), s(0, 2), 64)
        a.I("v_readfirstlane_b32", s(sW), v(0))
        a.I("s_and_b32", s(sH), s(2), 7)
        a.I("s_lshl_b32", s(sH), s(sH), 2)
        a.I("s_bfe_u32", s(3), s(2), "0x20003")
        a.I("s_or_b32", s(sH), s(sH), s(3))
        a.I("s_lshr_b32", s(sJ), s(2), 5)
        a.I("s_lshr_b32", s(sW), s(sW), 6)
        a.I("v_and_b32", v(vL), 63, v(0))
        a.I("v_lshrrev_b32", v(vG), 4, v(vL))
        a.I("v_and_b32", v(vN), 15, v(vL))
        a.I("s_lshl_b32", s(sG8), s(sH), 16)
        a.I("s_lshl_b32", s(3), s(sJ), 13)
        a.I("s_add_u32", s(sOwn), s(sG8), s(3))
        a.I("s_mul_i32", s(sJ160), s(sJ), 160)
        for k in range(3):
            P, r, pos, ch = T + 10, T + 11, T + 12, T + 13
            a.I("v_add_u32", v(P), 64 * k, v(vL))
            a.I("v_mul_u32_u24", v(r), 2731, v(P))
            a.I("v_lshrrev_b32", v(r), 16, v(r))
            a.I("v_mul_u32_u24", v(pos), 24, v(r))
            a.I("v_sub_u32", v(pos), v(P), v(pos))
            a.I("v_and_b32", v(ch), 6, v(r))
            a.I("v_xor_b32", v(ch), v(ch), v(pos))
            a.I("v_lshlrev_b32", v(ch), 4, v(ch))
            a.I("v_mul_u32_u24", v(T + 14), 384, v(r))
            a.I("v_add_u32", v(vVOF + k), v(T + 14), v(ch))
            a.I("v_mul_u32_u24", v(T + 14), 12288, v(r))
            a.I("v_add_u32", v(T + 4 + k), v(T + 14), v(ch))
        a.I("s_mul_i32", s(sT6), s(sH), 3145728)
        a.I("s_mul_i32", s(sT3), s(sJ), 98304)
        a.I("s_add_u32", s(sT6), s(sT6), s(sT3))
        a.I("s_add_u32", s(sT6), s(sT6), 2359296)
        a.I("s_mul_i32", s(sT7), s(sJ), 983040)
        a.I("s_mul_i32", s(sT3), s(sH), 384)
        a.I("s_add_u32", s(sT7), s(sT7), s(sT3))
        a.wait(lgkm=0)
        self.stamp("karg")
        self.srd(SRD_WS, pWS, None, hex(WS_BYTES))
        a.I("s_mov_b32", s(sT0), hex(EPOCH))
        a.I("s_load_dword", s(sTag), s(SRD_WS, 2), s(sT0))
        self.srd(SRD_X, pX, sJ160, 1280)
        if not self.clr_late:
            l7 = self.L("p7")
            self.if_wave(7, 8, l7)
            a.I("s_setprio", 3)
            self.clears()
            a.label(l7)
        self.srd(SRD_W, pWQ, sT7, 7864320)
        self.srd(SRD_K, pK, sT6, 100663296)
        lq = self.L("wqe")
        self.if_wave(0, 4, lq)
        for rep in range(3):
            if rep == 2:
                a.I("s_cmp_ge_u32", s(sW), 2)
                a.I("s_cbranch_scc1", lq)
            a.I("s_add_u32", s(sT2), s(sW), 4 * rep)
            a.I("s_mul_i32", s(sT3), s(sT2), 98304)
            a.I("s_mul_i32", s(sT2), s(sT2), 3072)
            for k in range(3):
                a.I("s_add_u32", "m0", s(sT2), LA + 1024 * k)
                a.I("buffer_load_dwordx4", v(T + 4 + k), s(SRD_W, 4), s(sT3), mods="offen" + self.nt_kv + " lds")
        a.label(lq)
        la = self.L("xf")
        self.if_wave(0, 4, la)
        a.I("v_lshlrev_b32", v(T + 12), 3, v(vG))
        for st in range(3):
            for p in range(2):
                if st == 2 and p == 1:
                    continue
                a.I("buffer_load_dwordx2", v(vXF + 4 * st + 2 * p, 2), v(T + 12), s(SRD_X, 4), 0, mods=f"offen offset:{64 * st + 32 * p}")
        a.label(la)
        a.I("s_mul_i32", s(sT3), s(sW), 12288)
        a.I("s_add_u32", s(sT2), s(sT3), LB)
        a.I("s_add_u32", s(sT4), s(sT3), 6144)
        for pos in range(2):
            for k in range(3):
                a.I("s_add_u32", "m0", s(sT2), 3072 * pos + 1024 * k)
                a.I("buffer_load_dwordx4", v(vVOF + k), s(SRD_K, 4), s(sT3 + pos), mods="offen" + self.nt_kv + " lds")
        self.stamp("ka_issued")
        if self.clr_late:
            l7 = self.L("p7")
            self.if_wave(7, 8, l7)
            self.clears()
            a.label(l7)
        self.srd(SRD_V, pV, sT6, 100663296)
        self.srd(SRD_DBG, pDBG, None, 256)
        a.I("s_mov_b32", s(sTmo), 0)
        a.I("s_mov_b32", s(sFast), 0)
        a.I("s_mov_b32", s(sP), 0)

    def perm_pos(self, dst, col, t):
        a = self.a
        a.I("v_and_b32", v(dst), "0x63", v(col))
        a.I("v_bfe_u32", v(t), v(col), 2, 2)
        a.I("v_lshl_add_u32", v(dst), v(t), 3, v(dst))
        a.I("v_bfe_u32", v(t), v(col), 4, 1)
        a.I("v_lshl_add_u32", v(dst), v(t), 2, v(dst))
        a.I("v_lshlrev_b32", v(dst), 1, v(dst))

    def x_cols(self):
        a = self.a
        T = vT
        a.I("s_min_u32", s(sT1), s(sW), 4)
        a.I("v_bfe_u32", v(T + 10), v(vL), 2, 2)
        a.I("v_lshlrev_b32", v(T + 11), 1, v(T + 10))
        a.I("v_lshrrev_b32", v(T + 12), 1, v(T + 10))
        a.I("v_and_b32", v(T + 11), 2, v(T + 11))
        a.I("v_or_b32", v(T + 11), v(T + 11), v(T + 12))
        a.I("v_lshl_add_u32", v(T + 11), v(vG), 2, v(T + 11))
        a.I("s_lshl_b32", s(sT2), s(sT1), 4)
        a.I("v_add_u32", v(T + 11), s(sT2), v(T + 11))
        a.I("v_lshlrev_b32", v(T + 30), 1, v(T + 11))
        a.I("v_mov_b32", v(vXCOL), v(T + 30))
        self.perm_pos(vXW, T + 11, T + 12)
        a.I("v_add_u32", v(vXW), XB, v(vXW))

    def kv_dma(self, srd, groups, slot):
        a = self.a
        lab = self.L("kv")
        a.I("s_mov_b32", s(sT2), LB + 6144 * slot)
        a.I("s_mov_b32", s(sT3), 3072 * groups[0])
        a.I("s_mov_b32", s(sT4), 3072 * groups[1])
        a.I("s_mov_b32", s(sT5), 0)
        a.label(lab)
        for pos in range(2):
            for k in range(3):
                a.I("s_add_u32", "m0", s(sT2), 3072 * pos + 1024 * k)
                a.I("buffer_load_dwordx4", v(vVOF + k), s(srd, 4), s(sT3 + pos), mods="offen" + self.nt_kv + " lds")
                if self.win and k == 2:
                    a.wait(vm=self.win - 3)
        a.I("s_add_u32", s(sT2), s(sT2), 12288)
        a.I("s_add_u32", s(sT3), s(sT3), 12288)
        a.I("s_add_u32", s(sT4), s(sT4), 12288)
        a.I("s_add_u32", s(sT5), s(sT5), 1)
        a.I("s_cmp_lt_u32", s(sT5), 8)
        a.I("s_cbranch_scc1", lab)

    def wq_dma(self):
        a = self.a
        T = vT
        a.I("s_mul_i32", s(sT2), s(sJ), 983040)
        a.I("s_mul_i32", s(sT3), s(sH), 384)
        a.I("s_add_u32", s(sT2), s(sT2), s(sT3))
        self.srd(SRD_W, pWQ, sT2, 7864320)
        lab = self.L("wq")
        a.I("s_mov_b32", s(sT2), LA)
        a.I("s_mov_b32", s(sT3), 0)
        a.label(lab)
        for k in range(3):
            a.I("s_add_u32", "m0", s(sT2), 1024 * k)
            a.I("buffer_load_dwordx4", v(T + 4 + k), s(SRD_W, 4), s(sT3), mods="offen" + self.nt_kv + " lds")
        a.I("s_add_u32", s(sT2), s(sT2), 3072)
        a.I("s_add_u32", s(sT3), s(sT3), 98304)
        a.I("s_cmp_lt_u32", s(sT2), LA + 30720)
        a.I("s_cbranch_scc1", lab)

    def clears(self):
        a = self.a
        T = vT
        for i in range(4):
            a.I("v_mov_b32", v(T + 16 + i), SENT)
        a.I("v_lshlrev_b32", v(T + 8), 4, v(vL))
        a.I("v_add_u32", v(T + 8), s(sOwn), v(T + 8))
        for k in range(CLRN):
            a.I("s_mov_b32", s(sT2), CLR0 + 1024 * k)
            a.I("buffer_store_dwordx4", v(T + 16, 4), v(T + 8), s(SRD_WS, 4), s(sT2), mods="offen sc1")
        a.I("s_mul_i32", s(sT2), s(sJ), 10240)
        a.I("s_lshl_b32", s(sT3), s(sH), 6)
        a.I("s_add_u32", s(sT2), s(sT2), s(sT3))
        a.I("s_add_u32", s(sT2), s(sT2), hex(YBASE))
        for half in range(2):
            a.I("v_lshrrev_b32", v(T + 10), 2, v(vL))
            if half:
                a.I("v_add_u32", v(T + 10), 16, v(T + 10))
                a.I("v_min_u32", v(T + 10), 19, v(T + 10))
            a.I("v_mul_u32_u24", v(T + 11), 52, v(T + 10))
            a.I("v_lshrrev_b32", v(T + 11), 8, v(T + 11))
            a.I("v_mul_u32_u24", v(T + 12), 5, v(T + 11))
            a.I("v_sub_u32", v(T + 12), v(T + 10), v(T + 12))
            a.I("v_mul_u32_u24", v(T + 11), YPK, v(T + 11))
            a.I("v_lshl_add_u32", v(T + 11), v(T + 12), 11, v(T + 11))
            a.I("v_and_b32", v(T + 12), 3, v(vL))
            a.I("v_lshl_add_u32", v(T + 11), v(T + 12), 4, v(T + 11))
            a.I("v_add_u32", v(T + 11), s(sT2), v(T + 11))
            a.I("buffer_store_dwordx4", v(T + 16, 4), v(T + 11), s(SRD_WS, 4), 0, mods="offen sc1")
        a.I("v_mov_b32", v(T + 40), 0)
        a.I("v_lshlrev_b32", v(T + 41), 2, v(vL))
        a.I("s_mov_b32", s(sT0), -1)
        a.I("s_mov_b32", s(sT1), "0xff")
        a.I("s_mov_b64", "exec", s(sT0, 2))
        a.I("buffer_load_dword", v(T + 40), v(T + 41), s(SRD_X, 4), 0, mods="offen")
        self.exec_all()

    def arrive(self):
        a = self.a
        T = vT
        a.I("s_and_b32", s(sT2), s(2), 7)
        a.I("s_lshl_b32", s(sT2), s(sT2), 5)
        a.I("v_mov_b32", v(T + 10), s(sT2))
        a.I("v_mov_b32", v(T + 11), 1)
        self.stamp("clr_ack")
        self.exi(1)
        a.I("buffer_atomic_add", v(T + 11), v(T + 10), s(SRD_DBG, 4), 0, mods="offen")
        self.exec_all()

    def stats0_publish(self, R):
        a = self.a
        lo, hi = R + 2, R + 3
        a.I("v_lshlrev_b32", v(lo), 16, v(R))
        a.I("v_and_b32", v(hi), "0xffff0000", v(R))
        a.I("v_add_f32", v(R), v(lo), v(hi))
        a.I("v_mul_f32", v(R + 1), v(lo), v(lo))
        a.I("v_fmac_f32", v(R + 1), v(hi), v(hi))
        for ctrl, row in (("quad_perm:[1,0,3,2]", 0xf), ("quad_perm:[2,3,0,1]", 0xf), ("row_half_mirror", 0xf), ("row_mirror", 0xf),
                          ("row_bcast:15", 0xa), ("row_bcast:31", 0xc)):
            self.dpp("v_add_f32", R, R, R, ctrl, row=row)
            self.dpp("v_add_f32", R + 1, R + 1, R + 1, ctrl, row=row)
        P = vT + 4
        a.I("s_getreg_b32", s(sT3), "hwreg(HW_REG_XCC_ID, 0, 4)")
        a.I("v_mov_b32", v(P), v(R))
        a.I("v_mov_b32", v(P + 1), s(sTag))
        a.I("v_mov_b32", v(P + 2), v(R + 1))
        a.I("v_mov_b32", v(P + 3), s(sTag))
        a.I("v_mov_b32", v(P + 4), s(sT3))
        a.I("v_mov_b32", v(P + 5), s(sTag))
        a.I("v_mov_b32", v(P + 6), s(sOwn))
        self.ex(m63)
        a.I("buffer_store_dwordx4", v(P, 4), v(P + 6), s(SRD_WS, 4), 0, mods="offen offset:3072 sc1")
        a.I("buffer_store_dwordx2", v(P + 4, 2), v(P + 6), s(SRD_WS, 4), 0, mods="offen offset:3088 sc1")
        self.exec_all()

    def q0_publish(self):
        a = self.a
        D, P = vT + 16, vT + 28
        a.I("s_mul_i32", s(sT0), s(sW), 384)
        a.I("s_add_u32", s(sT0), s(sT0), s(sOwn))
        a.I("v_lshlrev_b32", v(P + 8), 5, v(vG))
        a.I("v_mul_u32_u24", v(P + 9), 1536, v(vN))
        a.I("v_add3_u32", v(P + 8), v(P + 8), v(P + 9), s(sT0))
        for i in range(4):
            a.I("v_mov_b32", v(P + 2 * i + 1), s(sTag))
        for k in range(3):
            for i in range(4):
                a.I("v_mov_b32", v(P + 2 * i), v(D + 4 * k + i))
            self.ex(mN01)
            a.I("buffer_store_dwordx4", v(P, 4), v(P + 8), s(SRD_WS, 4), 0, mods=f"offen offset:{128 * k} sc1")
            a.I("buffer_store_dwordx4", v(P + 4, 4), v(P + 8), s(SRD_WS, 4), 0, mods=f"offen offset:{128 * k + 16} sc1")
            self.exec_all()

    def loader(self, fn):
        lab = self.L("ld")
        self.if_wave(LOADER, LOADER + 1, lab)
        fn()
        self.a.label(lab)

    def scalar_touch(self, wave):
        a = self.a
        lab = self.L("stch")
        self.if_wave(wave, wave + 1, lab)
        for k, (ptr, mul_h, mul_j) in enumerate(((pWO, 245760, 160), (pWG, 96, 245760), (pWU, 96, 245760), (pWD, 61440, 160), (pOUT, 0, 160))):
            a.I("s_mul_i32", s(sT0), s(sH), mul_h)
            a.I("s_mul_i32", s(sT1), s(sJ), mul_j)
            a.I("s_add_u32", s(sT0), s(sT0), s(sT1))
            a.I("s_and_b32", s(sT0), s(sT0), "0xfffffffc")
            a.I("s_load_dword", s(96 + k), s(ptr, 2), s(sT0))
        a.label(lab)

    def warmups(self):
        a = self.a
        if not (self.touch or self.codepf):
            return
        lab = self.L("wup")
        self.if_wave(6, 7, lab)
        R = vWT + 16
        if self.touch:
            a.I("v_mov_b32", v(R + 7), 0)
            self.exi(1)
            for k, (ptr, mul_h, mul_j) in enumerate(((pWO, 245760, 160), (pWG, 96, 245760), (pWU, 96, 245760), (pWD, 61440, 160), (pOUT, 0, 160))):
                a.I("s_mul_i32", s(sT0), s(sH), mul_h)
                a.I("s_mul_i32", s(sT1), s(sJ), mul_j)
                a.I("s_add_u32", s(sT0), s(sT0), s(sT1))
                self.srd(SRD_W, ptr, sT0, (7864320, 1966080, 1966080, 1966080, 1280)[k])
                a.I("buffer_load_ushort", v(R + k), v(R + 7), s(SRD_W, 4), 0, mods="offen")
            self.exec_all()
        if self.codepf:
            AD = vT + 34
            a.I("s_getpc_b64", s(sT0, 2))
            a.I("s_and_b32", s(sT0), s(sT0), "0xffffff00")
            a.I("v_lshlrev_b32", v(AD + 2), 4, v(vL))
            a.I("v_mov_b32", v(AD + 1), s(sT1))
            a.I("v_add_co_u32", v(AD), "vcc", s(sT0), v(AD + 2))
            a.I("v_addc_co_u32", v(AD + 1), "vcc", 0, v(AD + 1), "vcc")
            for k in range(self.codepf):
                a.I("global_load_dwordx4", v(R + 8 - 8, 4), v(AD, 2), "off")
                if k + 1 < self.codepf:
                    a.I("v_add_co_u32", v(AD), "vcc", 1024, v(AD))
                    a.I("v_addc_co_u32", v(AD + 1), "vcc", 0, v(AD + 1), "vcc")
        a.label(lab)

    def layer1_load(self):
        a = self.a
        B = vT
        self.x_cols()
        a.I("buffer_load_ushort", v(vXR), v(vT + 30), s(SRD_X, 4), 0, mods="offen")
        self.warmups()
        self.setup2()
        T = vT + 44
        self.tr_base(T, 384, swz=True)
        la = self.L("l1w")
        self.if_wave(0, 4, la)
        a.wait(vm=7)
        self.stamp("wq_ok")
        a.label(la)
        a.wait(lgkm=0)
        a.I("s_add_u32", s(sTag), s(sTag), 1)
        a.I("s_barrier")
        self.stamp("Ba")
        if self.stouch == 2:
            self.scalar_touch(6)
        self.loader(lambda: (a.I("s_setprio", 3), self.kv_dma(SRD_K, (1, 3), 1)))
        self.stamp("kb_issued")
        l7 = self.L("l17s")
        self.if_wave(7, 8, l7)
        a.wait(vm=1)
        self.arrive()
        self.stats0_publish(vT + 40)
        a.label(l7)
        la = self.L("l1q")
        self.if_wave(0, 4, la)
        for k in range(3):
            a.I("s_mul_i32", s(sT0), s(sW), 3)
            a.I("s_add_u32", s(sT0), s(sT0), k)
            a.I("s_and_b32", s(sT1), s(sT0), 3)
            a.I("s_lshl_b32", s(sT1), s(sT1), 5)
            a.I("s_lshr_b32", s(sT2), s(sT0), 2)
            a.I("s_lshl_b32", s(sT2), s(sT2), 7)
            a.I("v_xor_b32", v(T + 3), s(sT1), v(T))
            a.I("v_add_u32", v(T + 3), s(sT2), v(T + 3))
            for st in range(3):
                for p in range(2):
                    if st == 2 and p == 1:
                        continue
                    a.I("ds_read_b64_tr_b16", v(vWQ + 12 * k + 4 * st + 2 * p, 2), v(T + 3), mods=f"offset:{LA + 384 * (32 * st + 16 * p)}")
            a.I("v_mov_b32", v(vWQ + 12 * k + 10), 0)
            a.I("v_mov_b32", v(vWQ + 12 * k + 11), 0)
        for i in range(10):
            a.I("v_mov_b32", v(B + i), v(vXF + i))
        self.mask(sT0, 0x0002000200020002)
        a.I("s_mov_b64", "exec", s(sT0, 2))
        for i in range(10):
            a.I("v_mov_b32", v(B + i), "0x3f803f80")
        self.exec_all()
        a.I("v_mov_b32", v(B + 10), 0)
        a.I("v_mov_b32", v(B + 11), 0)
        a.wait(lgkm=0)
        self.q_mfma(publish=False)
        self.q0_publish()
        self.stamp("q_pub0")
        a.label(la)
        self.k_addr()
        self.wait_by_wave({0: 7, 1: 7, 2: 7, 3: 7, 4: 49, 5: 1, 6: 1 + (5 if self.touch else 0) + self.codepf, 7: 63})
        self.stamp("ka_landed")
        self.k_frags(0)
        a.wait(lgkm=0)
        a.I("s_barrier")
        if self.stouch == 1:
            self.scalar_touch(6)
        self.loader(lambda: (self.kv_dma(SRD_V, (0, 1), 0), a.wait(vm=48)))
        if self.wo_early:
            lw = self.L("wo5")
            self.if_wave(5, 6, lw)
            self.wo_dma()
            a.label(lw)
        l_s = self.L("qg0s")
        self.if_wave(0, 3, l_s)
        self.delay("q0")
        self.qg0_issue()
        self.stamp("qg_iss0")
        a.label(l_s)
        a.I("s_barrier")
        self.stamp("Bc1")
        a.I("v_lshlrev_b32", v(vXR), 16, v(vXR))
        self.k_frags(1)
        a.wait(lgkm=0)
        self.handshake_issue()
        a.I("s_barrier")
        self.loader(lambda: (self.kv_dma(SRD_V, (2, 3), 1), a.wait(vm=48)))
        a.I("s_barrier")
        self.stamp("Be")
        if self.warm:
            lw = self.L("warm")
            self.if_wave(6, 7, lw)
            a.I("v_lshlrev_b32", v(vT + 8), 4, v(vL))
            a.I("v_add_u32", v(vT + 8), s(sOwn), v(vT + 8))
            for k in range(CLRN):
                a.I("s_mov_b32", s(sT2), CLR0 + 1024 * k)
                a.I("buffer_load_dwordx4", v(vWT + 4 * k, 4), v(vT + 8), s(SRD_WS, 4), s(sT2), mods="offen sc1")
            a.label(lw)
        T = self.v_frags(0, vT + 44)
        self.v_frag_reads(T, 0)

    def mask(self, m, val):
        self.a.I("s_mov_b32", s(m), hex(val & 0xffffffff))
        self.a.I("s_mov_b32", s(m + 1), hex(val >> 32))

    def setup2(self):
        a = self.a
        T = vT + 24
        self.mask(mN0, 0x0001000100010001)
        self.mask(mN01, 0x0003000300030003)
        self.mask(mQ0, 0x1111111111111111)
        self.mask(mY, 0x0011001100110011)
        self.mask(m63, 1 << 63)
        self.set_gp_mask()
        for i in range(16):
            a.I("v_mov_b32", v(vPA + i), 0)
        if self.stamps:
            a.I("v_mov_b32", v(vDBG), 0)
        a.I("v_lshlrev_b32", v(T), 4, v(vG))
        a.I("v_add_u32", v(vXB), XB, v(T))
        a.I("v_add_u32", v(vHB), HBL, v(T))
        a.I("v_add_u32", v(T + 1), ONES, v(T))
        a.I("v_cmp_eq_u32", "vcc", 1, v(vN))
        a.I("v_cndmask_b32", v(vXB), v(vXB), v(T + 1), "vcc")
        a.I("s_mul_i32", s(sT0), s(sW), 192)
        a.I("s_add_u32", s(sT0), s(sT0), s(sOwn))
        a.I("v_lshlrev_b32", v(T), 4, v(vG))
        a.I("v_mul_u32_u24", v(T + 1), 768, v(vN))
        a.I("v_add3_u32", v(vQPUB), v(T), v(T + 1), s(sT0))
        a.I("s_lshl_b32", s(sT0), s(sW), 6)
        a.I("s_add_u32", s(sT0), s(sT0), s(sOwn))
        a.I("v_mul_u32_u24", v(T + 1), 384, v(vN))
        a.I("v_add3_u32", v(vGPUB), v(T), v(T + 1), s(sT0))
        a.I("v_and_b32", v(T + 1), 1, v(vN))
        a.I("v_lshl_add_u32", v(T + 1), v(T + 1), 6, v(T))
        a.I("v_add_u32", v(vQA), QBL, v(T + 1))
        a.I("s_mul_i32", s(sT0), s(sW), 12288)
        a.I("s_add_u32", s(sT0), s(sT0), LB)
        a.I("v_lshlrev_b32", v(T), 2, v(vL))
        a.I("v_add_u32", v(vOAC), s(sT0), v(T))
        a.I("s_lshl_b32", s(sT0), s(sW), 8)
        a.I("s_add_u32", s(sT0), s(sT0), LB)
        a.I("v_add_u32", v(vORD), s(sT0), v(T))
        a.I("v_add_u32", v(vORD + 1), 12288 * 5, v(vORD))
        a.I("s_lshl_b32", s(sT0), s(sW), 2)
        a.I("s_add_u32", s(sT0), s(sT0), MXL)
        a.I("v_mov_b32", v(vMXW), s(sT0))
        a.I("s_min_u32", s(sT1), s(sW), 4)
        a.I("s_mul_i32", s(sT0), s(sJ), 10240)
        a.I("s_lshl_b32", s(sT2), s(sT1), 11)
        a.I("s_add_u32", s(sT0), s(sT0), s(sT2))
        a.I("s_add_u32", s(sT0), s(sT0), hex(YBASE))
        a.I("v_lshlrev_b32", v(T), 6, v(vN))
        a.I("v_lshl_add_u32", v(T), v(vG), 4, v(T))
        a.I("v_add_u32", v(vYG), s(sT0), v(T))
        a.I("s_lshl_b32", s(sT2), s(sH), 6)
        a.I("s_add_u32", s(sT0), s(sT0), s(sT2))
        a.I("v_lshlrev_b32", v(T), 4, v(vG))
        a.I("v_add_u32", v(vDP), s(sT0), v(T))
        a.I("v_lshrrev_b32", v(T + 1), 2, v(vN))
        a.I("v_lshl_add_u32", v(vYP), v(T + 1), 3, v(vDP))
        a.I("s_lshl_b32", s(sT0), s(sW), 8)
        a.I("s_add_u32", s(sT0), s(sT0), s(sG8))
        a.I("v_lshlrev_b32", v(T), 13, v(vG))
        a.I("v_lshl_add_u32", v(T), v(vN), 4, v(T))
        a.I("v_add_u32", v(vQG), s(sT0), v(T))
        a.I("v_and_b32", v(T), 7, v(vL))
        a.I("v_lshlrev_b32", v(T), 13, v(T))
        a.I("v_add_u32", v(vSG), s(sG8), v(T))
        a.I("v_lshrrev_b32", v(T), 3, v(vL))
        a.I("v_lshlrev_b32", v(T + 1), 13, v(T))
        a.I("v_add_u32", v(vOML), s(sG8), v(T + 1))
        a.I("s_sub_u32", s(sT0), s(sW), 5)
        a.I("s_lshl_b32", s(sT0), s(sT0), 3)
        a.I("v_and_b32", v(T + 2), 7, v(vL))
        a.I("v_add_u32", v(T + 2), s(sT0), v(T + 2))
        a.I("v_lshl_add_u32", v(vOG), v(T + 2), 4, v(vOML))
        a.I("v_mul_u32_u24", v(T + 1), 400, v(T))
        a.I("v_lshl_add_u32", v(T + 1), v(T + 2), 4, v(T + 1))
        a.I("v_add_u32", v(vOSW), OST, v(T + 1))
        a.I("v_and_b32", v(T), 7, v(vN))
        a.I("v_mul_u32_u24", v(T + 1), 400, v(T))
        a.I("v_lshl_add_u32", v(T + 1), v(vG), 4, v(T + 1))
        a.I("v_add_u32", v(vOSR), OST, v(T + 1))
        a.I("v_lshlrev_b32", v(T), 3, v(T))
        a.I("v_add_u32", v(vMLR), MLS, v(T))
        a.I("s_sub_u32", s(sT0), s(sW), 6)
        a.I("s_lshl_b32", s(sT0), s(sT0), 3)
        a.I("v_and_b32", v(T), 7, v(vL))
        a.I("v_add_u32", v(T), s(sT0), v(T))
        a.I("v_min_u32", v(T), 11, v(T))
        a.I("v_lshrrev_b32", v(T + 1), 3, v(vL))
        a.I("v_lshlrev_b32", v(T + 1), 13, v(T + 1))
        a.I("v_lshl_add_u32", v(T + 1), v(T), 4, v(T + 1))
        a.I("v_add_u32", v(vGG), s(sG8), v(T + 1))
        self.sigma_row(T + 2, T + 3)
        a.I("v_lshl_add_u32", v(T), v(T), 2, v(T + 2))
        self.perm_pos(vHW, T, T + 3)
        a.I("v_add_u32", v(vHW), HBL, v(vHW))
        a.I("v_lshl_add_u32", v(T), v(vN), 2, v(T + 2))
        a.I("s_lshl_b32", s(sT0), s(sW), 7)
        a.I("s_add_u32", s(sT0), s(sT0), QBL)
        a.I("v_lshl_add_u32", v(vQW), v(T), 1, s(sT0))
        a.I("v_lshrrev_b32", v(T), 5, v(vL))
        a.I("v_lshlrev_b32", v(T), 6, v(T))
        a.I("v_bfe_u32", v(T + 1), v(vL), 2, 2)
        a.I("v_lshl_add_u32", v(T), v(T + 1), 4, v(T))
        a.I("v_bfe_u32", v(T + 1), v(vL), 4, 1)
        a.I("v_lshl_add_u32", v(T), v(T + 1), 3, v(T))
        a.I("s_lshl_b32", s(sT0), s(sW), 7)
        a.I("s_add_u32", s(sT0), s(sT0), s(sOwn))
        a.I("v_add_u32", v(vOPUB), s(sT0), v(T))
        lab = self.L("c0")
        self.if_wave(0, 1, lab)
        a.I("v_lshlrev_b32", v(T), 2, v(vL))
        a.I("v_add_u32", v(T), ONES, v(T))
        a.I("v_mov_b32", v(T + 1), "0x3f803f80")
        a.I("s_mov_b32", s(sT0), -1)
        a.I("s_mov_b32", s(sT1), "0xffff")
        a.I("s_mov_b64", "exec", s(sT0, 2))
        a.I("ds_write_b32", v(T), v(T + 1))
        a.I("v_mov_b32", v(T + 1), 0)
        a.I("ds_write_b32", v(T), v(T + 1), mods=f"offset:{HBL - ONES}")
        a.I("v_subrev_u32", v(T), 192, v(T))
        a.I("ds_write_b32", v(T), v(T + 1))
        self.exec_all()
        a.label(lab)

    def x_write(self, xin):
        a = self.a
        t = vT + 12
        a.I("v_cvt_pk_bf16_f32", v(t), v(xin), v(xin))
        a.I("ds_write_b16", v(vXW), v(t))
        a.I("v_lshlrev_b32", v(vXR), 16, v(t))

    def read_xfrags(self, B):
        for st in range(3):
            self.a.I("ds_read_b128", v(B + 4 * st, 4), v(vXB), mods=f"offset:{64 * st}")

    def stats_read(self, R):
        a = self.a
        a.I("v_mov_b32", v(R), 0)
        a.I("v_lshlrev_b32", v(R + 1), 2, v(vL))
        a.I("v_add_u32", v(R + 1), XB, v(R + 1))
        a.I("s_mov_b32", s(sT0), -1)
        a.I("s_mov_b32", s(sT1), "0xffff")
        a.I("s_mov_b64", "exec", s(sT0, 2))
        a.I("ds_read_b32", v(R), v(R + 1))
        self.exec_all()

    def stats_publish(self, R, off_s, imm):
        a = self.a
        lo, hi = R + 2, R + 3
        a.I("v_lshlrev_b32", v(lo), 16, v(R))
        a.I("v_and_b32", v(hi), "0xffff0000", v(R))
        a.I("v_add_f32", v(R), v(lo), v(hi))
        a.I("v_mul_f32", v(R + 1), v(lo), v(lo))
        a.I("v_fmac_f32", v(R + 1), v(hi), v(hi))
        for ctrl, row in (("quad_perm:[1,0,3,2]", 0xf), ("quad_perm:[2,3,0,1]", 0xf), ("row_half_mirror", 0xf), ("row_mirror", 0xf),
                          ("row_bcast:15", 0xa), ("row_bcast:31", 0xc)):
            self.dpp("v_add_f32", R, R, R, ctrl, row=row)
            self.dpp("v_add_f32", R + 1, R + 1, R + 1, ctrl, row=row)
        a.I("v_mov_b32", v(lo), s(sOwn))
        self.ex(m63)
        self.store8("buffer_store_dwordx2", v(R, 2), v(lo), s(off_s), mods=f"offset:{imm}")
        self.exec_all()

    def q_mfma(self, publish=True):
        a = self.a
        B, D = vT, vT + 16
        for k in range(3):
            for st in range(3):
                a.I("v_mfma_f32_16x16x32_bf16", v(D + 4 * k, 4), v(vWQ + 12 * k + 4 * st, 4), v(B + 4 * st, 4), 0 if st == 0 else v(D + 4 * k, 4))
        if not publish:
            a.nop(8)
            return
        self.ex(mN0)
        for k in range(3):
            self.store8("buffer_store_dwordx4", v(D + 4 * k, 4), v(vQPUB), s(sPQ), mods=f"offset:{64 * k}" if k else "")
        self.exec_all()

    def q_phase1(self):
        a = self.a
        B, R = vT, vT + 40
        l7, le = self.L("q7"), self.L("qe")
        self.if_wave(0, 4, l7)
        self.read_xfrags(B)
        a.wait(lgkm=0)
        self.q_mfma()
        a.I("s_branch", le)
        a.label(l7)
        self.if_wave(7, 8, le)
        self.stats_read(R)
        a.wait(lgkm=0)
        self.stats_publish(R, sPQ, 768)
        a.label(le)

    def pub_mask(self):
        a = self.a
        a.I("s_cmp_eq_u32", s(sP), 0)
        a.I("s_cselect_b64", s(sT4, 2), s(mN01, 2), s(mN0, 2))

    def v_dma(self, part):
        a = self.a
        a.I("s_mul_i32", s(sT2), s(sW), 12288)
        a.I("s_add_u32", s(sT2), s(sT2), LB + 6144 * part)
        for grp in range(2):
            a.I("s_mov_b32", s(sT3), 6144 * part + 3072 * grp)
            for k in range(3):
                a.I("s_add_u32", "m0", s(sT2), 3072 * grp + 1024 * k)
                a.I("buffer_load_dwordx4", v(vVOF + k), s(SRD_V, 4), s(sT3), mods="offen" + self.nt_kv + " lds")

    HS = [sT0, sT1, sT2, sT3, sT4, sT5, sT6, sT7]

    def handshake_issue(self):
        a = self.a
        lab = self.L("hsi")
        self.if_wave(0, 1, lab)
        for k in range(8):
            a.I("s_load_dword", s(HSR[k]), s(SRD_DBG, 2), 32 * k)
        a.label(lab)

    def handshake(self):
        a = self.a
        l_ok, l_loop, l_skip = self.L("hs_ok"), self.L("hs_loop"), self.L("hs_skip")
        T = vT + 12
        self.if_wave(0, 1, l_skip)
        a.wait(lgkm=0)
        for k in range(1, 8):
            a.I("s_add_u32", s(HSR[0]), s(HSR[0]), s(HSR[k]))
        a.I("s_cmp_ge_u32", s(HSR[0]), 256)
        a.I("s_cbranch_scc1", l_ok)
        a.I("v_and_b32", v(T), 7, v(vL))
        a.I("v_lshlrev_b32", v(T), 5, v(T))
        a.label(l_loop)
        a.I("s_sleep", 32)
        a.I("buffer_load_dword", v(T + 1), v(T), s(SRD_DBG, 4), 0, mods="offen sc1")
        a.wait(vm=0)
        self.bfly8("v_add_u32", [T + 1])
        a.I("v_readfirstlane_b32", s(sT2), v(T + 1))
        a.I("s_cmp_ge_u32", s(sT2), 256)
        a.I("s_cbranch_scc1", l_ok)
        self.retry(l_loop)
        a.label(l_ok)
        self.stamp("hs_done")
        a.label(l_skip)

    def qg0_issue(self):
        a = self.a
        T = vT + 36
        a.I("s_lshl_b32", s(sT0), s(sW), 9)
        a.I("s_add_u32", s(sT0), s(sT0), s(sG8))
        a.I("v_lshlrev_b32", v(T), 13, v(vG))
        a.I("v_lshl_add_u32", v(T), v(vN), 5, v(T))
        a.I("v_add_u32", v(T), s(sT0), v(T))
        a.I("s_mov_b32", s(sT1), 32768)
        for pp in range(2):
            so = s(sT1) if pp else 0
            for hh in range(2):
                a.I("buffer_load_dwordx4", v(vT + 8 * pp + 4 * hh, 4), v(T), s(SRD_WS, 4), so, mods=f"offen offset:{16 * hh} sc1")
                a.I("buffer_load_dwordx4", v(vT + 16 + 8 * pp + 4 * hh, 4), v(T), s(SRD_WS, 4), so, mods=f"offen offset:{1536 + 16 * hh} sc1")
        a.I("buffer_load_dwordx4", v(vT + 32, 4), v(vSG), s(SRD_WS, 4), 0, mods="offen offset:3072 sc1")
        a.I("buffer_load_dwordx2", v(vT + 38, 2), v(vSG), s(SRD_WS, 4), 0, mods="offen offset:3088 sc1")

    def qg0_finish(self, l_retry):
        a = self.a
        chk = vT + 37
        tags = [vT + 2 * i + 1 for i in range(16)] + [vT + 33, vT + 35, vT + 39]
        a.I("v_xor_b32", v(chk), s(sTag), v(tags[0]))
        for t in tags[1:]:
            a.I("v_xor_b32", v(t), s(sTag), v(t))
            a.I("v_or_b32", v(chk), v(chk), v(t))
        a.I("v_cmp_ne_u32", "vcc", 0, v(chk))
        a.I("s_cmp_lg_u64", "vcc", 0)
        a.I("s_cbranch_scc1", l_retry)
        a.I("v_readfirstlane_b32", s(sT0), v(vT + 38))
        a.I("v_cmp_ne_u32", "vcc", s(sT0), v(vT + 38))
        a.I("s_cmp_eq_u64", "vcc", 0)
        a.I("s_cselect_b32", s(sT0), 0 if self.force_slow else 1, 0)
        a.I("v_mov_b32", v(vT + 36), FSL)
        a.I("v_mov_b32", v(vT + 37), s(sT0))
        a.I("ds_write_b32", v(vT + 36), v(vT + 37))
        A, CA, S = vT + 40, vT + 44, vT + 8
        for i in range(4):
            a.I("v_add_f32", v(A + i), v(vT + 2 * i), v(vT + 8 + 2 * i))
            a.I("v_add_f32", v(CA + i), v(vT + 16 + 2 * i), v(vT + 24 + 2 * i))
        a.I("v_mov_b32", v(S), v(vT + 32))
        a.I("v_mov_b32", v(S + 1), v(vT + 34))
        q, mean, rstd, t = vT + 21, vT + 22, vT + 23, vT + 24
        self.rr4_a(CA); self.rr4_b(CA); self.rr4_c(CA); self.rr4_d(CA, vCQ)
        self.rr4_a(A); self.rr4_b(A); self.rr4_c(A); self.rr4_d(A, q)
        self.stats_chain(S, mean, rstd, t)
        a.I("v_fma_f32", v(q), f"-v{mean}", v(vCQ), v(q))
        a.I("v_mul_f32", v(q), hex(f2u(QSCALE)), v(q))
        a.I("v_mul_f32", v(q), v(q), v(rstd))
        a.I("v_cvt_pk_bf16_f32", v(q), v(q), v(q))
        a.I("ds_write_b16", v(vQW), v(q))

    def qg_issue(self, pair):
        a = self.a
        A, Bq, S, CA, CB = vT, vT + 4, vT + 8, vT + 12, vT + 16
        a.I("buffer_load_dwordx4", v(A, 4), v(vQG), s(SRD_WS, 4), s(sPQ), mods="offen sc1")
        a.I("s_add_u32", s(sT0), s(sPQ), 32768)
        a.I("buffer_load_dwordx4", v(Bq, 4), v(vQG), s(SRD_WS, 4), s(sT0), mods="offen sc1")
        a.I("buffer_load_dwordx2", v(S, 2), v(vSG), s(SRD_WS, 4), s(sPQ), mods="offen offset:768 sc1")
        if pair == 0:
            a.I("buffer_load_dwordx4", v(CA, 4), v(vQG), s(SRD_WS, 4), s(sPQ), mods="offen offset:768 sc1")
            a.I("buffer_load_dwordx4", v(CB, 4), v(vQG), s(SRD_WS, 4), s(sT0), mods="offen offset:768 sc1")

    def stats_chain(self, S, mean, rstd, t):
        a = self.a
        self.bfly8("v_add_f32", [S, S + 1])
        a.I("v_mul_f32", v(mean), hex(f2u(1.0 / 640)), v(S))
        a.I("v_mul_f32", v(t), hex(f2u(1.0 / 640)), v(S + 1))
        a.I("v_fma_f32", v(t), f"-v{mean}", v(mean), v(t))
        a.I("v_max_f32", v(t), 0, v(t))
        a.I("v_add_f32", v(t), hex(f2u(1e-5)), v(t))
        a.I("v_rsq_f32", v(rstd), v(t))

    def qg_finish(self, pair, l_retry):
        a = self.a
        A, Bq, S, CA, CB = vT, vT + 4, vT + 8, vT + 12, vT + 16
        chk, q, mean, rstd, t = vT + 20, vT + 21, vT + 22, vT + 23, vT + 24
        regs = list(range(A, A + 10)) + (list(range(CA, CA + 8)) if pair == 0 else [])
        self.maxtree(regs, chk)
        for i in range(4):
            a.I("v_add_f32", v(A + i), v(A + i), v(Bq + i))
        self.branch_if_invalid(chk, l_retry)
        if pair == 0:
            for i in range(4):
                a.I("v_add_f32", v(CA + i), v(CA + i), v(CB + i))
            self.rr4_a(CA); self.rr4_b(CA); self.rr4_c(CA); self.rr4_d(CA, vCQ)
        self.rr4_a(A)
        self.dpp("v_add_f32", S, S, S, self.BF8[0]); self.dpp("v_add_f32", S + 1, S + 1, S + 1, self.BF8[0])
        self.rr4_b(A)
        self.dpp("v_add_f32", S, S, S, self.BF8[1]); self.dpp("v_add_f32", S + 1, S + 1, S + 1, self.BF8[1])
        self.rr4_c(A)
        self.dpp("v_add_f32", S, S, S, self.BF8[2]); self.dpp("v_add_f32", S + 1, S + 1, S + 1, self.BF8[2])
        self.rr4_d(A, q)
        a.I("v_mul_f32", v(mean), hex(f2u(1.0 / 640)), v(S))
        a.I("v_mul_f32", v(t), hex(f2u(1.0 / 640)), v(S + 1))
        a.I("v_fma_f32", v(t), f"-v{mean}", v(mean), v(t))
        a.I("v_fma_f32", v(q), f"-v{mean}", v(vCQ), v(q))
        a.I("v_max_f32", v(t), 0, v(t))
        a.I("v_add_f32", v(t), hex(f2u(1e-5)), v(t))
        a.I("v_rsq_f32", v(rstd), v(t))
        a.I("v_mul_f32", v(q), hex(f2u(QSCALE)), v(q))
        a.I("v_mul_f32", v(q), v(q), v(rstd))
        a.I("v_cvt_pk_bf16_f32", v(q), v(q), v(q))
        a.I("ds_write_b16", v(vQW), v(q))

    def q_gather0_finish(self, l_join):
        a = self.a
        l_w, l_chk, l_r = [self.L(x) for x in ("qg0w", "qg0c", "qg0r")]
        self.if_wave(0, 3, l_join)
        a.I("s_branch", l_w)
        a.label(l_r)
        self.qg0_issue()
        self.retry(l_w)
        a.label(l_w)
        a.wait(vm=0)
        self.qg0_finish(l_r)
        self.stamp("qg_ok0")
        a.I("s_branch", l_join)

    def q_gather1(self, l_join):
        a = self.a
        l_w, l_r = self.L("qg1w"), self.L("qg1r")
        self.if_wave(0, 3, l_join)
        self.delay("q")
        self.qg_issue(1)
        a.label(l_w)
        a.wait(vm=0)
        self.qg_finish(1, l_r)
        self.stamp("qg_ok1")
        self.tail_retry.append((l_r, lambda: self.qg_issue(1), l_w))

    def rowblock_dma(self, idx_s, ncol, rowbytes, mul, lds_base, clampP=None, T=vT + 40):
        a = self.a
        a.I("s_lshl_b32", s(sT4), s(idx_s), 6)
        a.I("v_add_u32", v(T), s(sT4), v(vL))
        if clampP is not None:
            a.I("v_min_u32", v(T), clampP, v(T))
        a.I("v_mul_u32_u24", v(T + 1), mul, v(T))
        a.I("v_lshrrev_b32", v(T + 1), 16, v(T + 1))
        a.I("v_mul_u32_u24", v(T + 2), ncol, v(T + 1))
        a.I("v_sub_u32", v(T + 2), v(T), v(T + 2))
        a.I("v_mul_u32_u24", v(T + 1), rowbytes, v(T + 1))
        a.I("v_lshl_add_u32", v(T + 3), v(T + 2), 4, v(T + 1))
        a.I("s_lshl_b32", s(sT4), s(idx_s), 10)
        a.I("s_add_u32", "m0", s(sT4), lds_base)
        a.I("buffer_load_dwordx4", v(T + 3), s(SRD_W, 4), 0, mods="offen" + self.nt_w + " lds")

    def wo_dma(self, T=vT + 32):
        a = self.a
        a.I("s_mul_i32", s(sT2), s(sH), 245760)
        a.I("s_add_u32", s(sT2), s(sT2), s(sJ160))
        self.srd(SRD_W, pWO, sT2, 7864320)
        for k in range(5):
            a.I("v_add_u32", v(T + 5), 64 * k, v(vL))
            a.I("v_mul_u32_u24", v(T + 6), 6554, v(T + 5))
            a.I("v_lshrrev_b32", v(T + 6), 16, v(T + 6))
            a.I("v_mul_u32_u24", v(T + 7), 10, v(T + 6))
            a.I("v_sub_u32", v(T + 7), v(T + 5), v(T + 7))
            a.I("v_mul_u32_u24", v(T + 6), 1280, v(T + 6))
            a.I("v_lshl_add_u32", v(T + k), v(T + 7), 4, v(T + 6))
        lab = self.L("wo")
        a.I("s_mov_b32", s(sT2), LC)
        a.I("s_mov_b32", s(sT3), 0)
        a.label(lab)
        for k in range(5):
            a.I("s_add_u32", "m0", s(sT2), 1024 * k)
            a.I("buffer_load_dwordx4", v(T + k), s(SRD_W, 4), s(sT3), mods="offen" + self.nt_w + " lds")
        a.I("s_add_u32", s(sT2), s(sT2), 5120)
        a.I("s_add_u32", s(sT3), s(sT3), 32 * 1280)
        a.I("s_cmp_lt_u32", s(sT2), LC + 30720)
        a.I("s_cbranch_scc1", lab)

    def gud_dma(self):
        a = self.a
        l6, l7, le = self.L("g6"), self.L("g7"), self.L("ge")
        a.I("s_mul_i32", s(sT2), s(sJ), 245760)
        a.I("s_mul_i32", s(sT3), s(sH), 96)
        a.I("s_add_u32", s(sT2), s(sT2), s(sT3))
        a.I("s_cmp_eq_u32", s(sW), 6)
        a.I("s_cbranch_scc1", l6)
        a.I("s_cmp_eq_u32", s(sW), 7)
        a.I("s_cbranch_scc1", l7)
        self.srd(SRD_W, pWG, sT2, 1966080)
        for k in range(8):
            a.I("s_mov_b32", s(sT0), k)
            self.rowblock_dma(sT0, 6, 3072, 10923, LA, clampP=479)
        a.I("s_branch", le)
        a.label(l6)
        self.srd(SRD_W, pWU, sT2, 1966080)
        for k in range(8):
            a.I("s_mov_b32", s(sT0), k)
            self.rowblock_dma(sT0, 6, 3072, 10923, LA + 8192, clampP=479)
        a.I("s_branch", le)
        a.label(l7)
        a.I("s_mul_i32", s(sT2), s(sH), 61440)
        a.I("s_add_u32", s(sT2), s(sT2), s(sJ160))
        self.srd(SRD_W, pWD, sT2, 1966080)
        for k in range(8):
            a.I("s_mov_b32", s(sT0), k)
            self.rowblock_dma(sT0, 10, 1280, 6554, LA + 16384, clampP=479)
        a.label(le)

    def v_frags(self, p, T=vT + 12):
        a = self.a
        self.tr_base(T, 384, swz=True)
        a.I("s_mul_i32", s(sT0), s(sW), 12288)
        a.I("s_add_u32", s(sT0), s(sT0), LB + 6144 * p)
        a.I("v_add_u32", v(T), s(sT0), v(T))
        for t in range(1, 4):
            a.I("v_xor_b32", v(T + t), 32 * t, v(T))
        return T

    def v_frag_reads(self, T, p):
        for t in range(4):
            for hi in range(3):
                tile = 4 * hi + t
                self.a.I("ds_read_b64_tr_b16", v(vV + 4 * tile + 2 * p, 2), v(T + t), mods=f"offset:{128 * hi}")

    def attention(self):
        a = self.a
        QA, S4, S, M, PK, O, Ls, F, X = vT, vT + 12, vT + 28, vT + 29, vT + 30, vT + 32, vT + 44, vT + 45, vT
        for l in range(3):
            a.I("ds_read_b128", v(QA + 4 * l, 4), v(vQA), mods=f"offset:{128 * l}")
        a.I("v_mov_b32", v(S), "0xff800000")
        a.wait(lgkm=0)
        for t in range(4):
            for l in range(3):
                a.I("v_mfma_f32_16x16x32_bf16", v(S4 + 4 * t, 4), v(QA + 4 * l, 4), v(vK + 12 * t + 4 * l, 4), 0 if l == 0 else v(S4 + 4 * t, 4))
            if t >= 2:
                tt = t - 2
                a.I("v_add_f32_dpp", v(S), v(S4 + 4 * tt), v(S4 + 4 * tt + 1), mods=f"row_ror:8 row_mask:{hex(1 << tt)} bank_mask:0xc")
        for tt in (2, 3):
            a.I("v_add_f32_dpp", v(S), v(S4 + 4 * tt), v(S4 + 4 * tt + 1), mods=f"row_ror:8 row_mask:{hex(1 << tt)} bank_mask:0xc")
        self.stamp("qk_1", 1)
        first = True
        for ctrl, row in (("quad_perm:[1,0,3,2]", 0xf), ("quad_perm:[2,3,0,1]", 0xf), ("row_half_mirror", 0xf), ("row_bcast:15", 0xa), ("row_bcast:31", 0xc)):
            if first:
                self.dpp("v_max_f32", M, S, S, ctrl, row=row)
                first = False
            else:
                self.dpp("v_max_f32", M, M, M, ctrl, row=row)
        a.I("v_readlane_b32", s(sM), v(M), 63)
        a.I("v_subrev_f32", v(S), s(sM), v(S))
        a.I("v_mov_b32", v(F), s(sM))
        a.I("v_exp_f32", v(S), v(S))
        self.exi(1)
        a.I("ds_write_b32", v(vMXW), v(F))
        self.exec_all()
        self.dpp("v_mov_b32", PK, S, None, "row_shl:1")
        a.I("v_cvt_pk_bf16_f32", v(PK), v(S), v(PK))
        a.I("v_mov_b32", v(Ls), v(S))
        lab = self.L("v1")
        self.if_pair0(lab)
        T = self.v_frags(1)
        self.stamp("softmax0")
        if self.wo_early:
            self.loader(lambda: (a.wait(vm=0), a.I("s_setprio", 0)))
        else:
            self.loader(lambda: (self.wo_dma(T=vT + 48 - 16), a.wait(vm=30), a.I("s_setprio", 0)))
        a.I("s_barrier")
        self.stamp("v_landed")
        self.v_frag_reads(T, 1)
        a.wait(lgkm=0)
        a.label(lab)
        for g2 in range(4):
            for i in range(4):
                a.I("v_mov_b32_dpp", v(vPA + 4 * g2 + i), v(PK), mods=f"row_newbcast:{8 + 2 * i} row_mask:0xf bank_mask:{hex(1 << g2)}")
            for i in range(3):
                a.I("v_mfma_f32_16x16x32_bf16", v(O + 4 * i, 4), v(vPA + 4 * g2, 4), v(vV + 4 * (4 * i + g2), 4), 0 if g2 == 0 else v(O + 4 * i, 4))
        self.stamp("pv_iss1", 1)
        a.wait(lgkm=0)
        a.I("s_barrier")
        self.stamp("B4_1", 1)
        a.I("v_mov_b32", v(vT + 46), MXL)
        a.I("ds_read_b128", v(X, 4), v(vT + 46))
        a.I("ds_read_b128", v(X + 4, 4), v(vT + 46), mods="offset:16")
        lab = self.L("ff")
        self.if_pair0(lab)
        a.I("ds_read_b32", v(vT + 47), v(vT + 46), mods=f"offset:{FSL - MXL}")
        a.wait(lgkm=0)
        a.I("v_readfirstlane_b32", s(sFast), v(vT + 47))
        a.label(lab)
        for ctrl, row in (("quad_perm:[1,0,3,2]", 0xf), ("quad_perm:[2,3,0,1]", 0xf), ("row_half_mirror", 0xf), ("row_bcast:15", 0xa), ("row_bcast:31", 0xc)):
            self.dpp("v_add_f32", Ls, Ls, Ls, ctrl, row=row)
        a.wait(lgkm=0)
        a.I("v_max3_f32", v(X), v(X), v(X + 1), v(X + 2))
        a.I("v_max3_f32", v(X + 3), v(X + 3), v(X + 4), v(X + 5))
        a.I("v_max3_f32", v(X), v(X), v(X + 6), v(X + 7))
        a.I("v_max_f32", v(X), v(X), v(X + 3))
        a.I("v_sub_f32", v(F), v(F), v(X))
        a.I("v_exp_f32", v(F), v(F))
        for i in range(3):
            a.I("v_mul_f32", v(O + 4 * i), v(O + 4 * i), v(F))
        a.I("v_mul_f32", v(Ls), v(Ls), v(F))
        self.stamp("pre_add1", 1)
        for i in range(3):
            a.I("ds_write_b32", v(vOAC), v(O + 4 * i), mods=f"offset:{256 * i}")
        self.ex(m63)
        a.I("ds_write_b32", v(vMXW), v(Ls), mods=f"offset:{LSL - MXL}")
        self.exec_all()
        lab = self.L("hs0")
        self.if_pair0(lab)
        self.handshake()
        a.label(lab)
        a.wait(lgkm=0)
        a.I("s_barrier")
        self.stamp("B5_1", 1)
        R = vT
        l_skip, l_ml = self.L("fc"), self.L("ml")
        self.if_wave(0, 3, l_ml)
        for w2 in range(8):
            a.I("ds_read_b32", v(R + w2), v(vORD + (w2 >= 5)), mods=f"offset:{12288 * (w2 if w2 < 5 else w2 - 5)}")
        a.wait(lgkm=0 if self.stamps else 4)
        a.I("v_add_f32", v(R), v(R), v(R + 1))
        a.I("v_add_f32", v(R + 2), v(R + 2), v(R + 3))
        a.wait(lgkm=0)
        a.I("v_add_f32", v(R + 4), v(R + 4), v(R + 5))
        a.I("v_add_f32", v(R + 6), v(R + 6), v(R + 7))
        a.I("v_add_f32", v(R), v(R), v(R + 2))
        a.I("v_add_f32", v(R + 4), v(R + 4), v(R + 6))
        a.I("v_add_f32", v(R), v(R), v(R + 4))
        self.dpp("v_mov_b32", R + 1, R, None, "row_shl:1")
        a.I("v_cvt_pk_bf16_f32", v(R + 2), v(R), v(R + 1))
        self.dpp("v_mov_b32", R + 3, R + 2, None, "row_shl:2")
        a.I("v_min_u32", v(R + 2), "0xfffffffe", v(R + 2))
        a.I("v_min_u32", v(R + 3), "0xfffffffe", v(R + 3))
        self.ex(mQ0)
        self.store8("buffer_store_dwordx2", v(R + 2, 2), v(vOPUB), s(sPO))
        self.exec_all()
        a.I("s_branch", l_skip)
        a.label(l_ml)
        self.if_wave(3, 4, l_skip)
        a.I("v_mov_b32", v(R + 12), LSL)
        a.I("ds_read_b128", v(R + 4, 4), v(R + 12))
        a.I("ds_read_b128", v(R + 8, 4), v(R + 12), mods="offset:16")
        a.I("v_mov_b32", v(R), v(X))
        a.I("v_mov_b32", v(R + 13), s(sOwn))
        a.wait(lgkm=0)
        for i in range(0, 8, 2):
            a.I("v_add_f32", v(R + 4 + i), v(R + 4 + i), v(R + 5 + i))
        a.I("v_add_f32", v(R + 4), v(R + 4), v(R + 6))
        a.I("v_add_f32", v(R + 8), v(R + 8), v(R + 10))
        a.I("v_add_f32", v(R + 1), v(R + 4), v(R + 8))
        self.exi(1)
        self.store8("buffer_store_dwordx2", v(R, 2), v(R + 13), s(sPO), mods="offset:384")
        self.exec_all()
        a.label(l_skip)
        self.stamp("o_pub0", 0)
        self.stamp("o_pub1", 1)

    def wo_frags(self, T=vT + 44):
        a = self.a
        self.tr_base(T, 160)
        a.I("s_lshl_b32", s(sT0), s(sW), 5)
        a.I("s_add_u32", s(sT0), s(sT0), LC)
        a.I("v_add_u32", v(T), s(sT0), v(T))
        for st in range(6):
            for p in range(2):
                a.I("ds_read_b64_tr_b16", v(vWT + 4 * st + 2 * p, 2), v(T), mods=f"offset:{160 * (32 * st + 16 * p)}")

    def og_issue(self):
        a = self.a
        a.I("buffer_load_dwordx4", v(vT, 4), v(vOG), s(SRD_WS, 4), s(sPO), mods="offen sc1")
        a.I("buffer_load_dwordx2", v(vT + 4, 2), v(vOML), s(SRD_WS, 4), s(sPO), mods="offen offset:384 sc1")

    def o_phase(self):
        a = self.a
        B, ML, D = vT, vT + 24, vT + 28
        Mx, W, U = vT + 33, vT + 34, vT + 36
        l_ng, l_w, l_r, l_skip2 = [self.L(x) for x in ("o_ng", "o_w", "o_r", "o_s2")]
        self.if_wave(5, 8, l_ng)
        a.I("v_lshrrev_b32", v(vT + 8), 3, v(vL))
        a.I("v_lshlrev_b32", v(vT + 8), 3, v(vT + 8))
        a.I("v_add_u32", v(vT + 8), MLS, v(vT + 8))
        self.delay("o")
        self.og_issue()
        self.stamp("o_iss1", 1)
        a.label(l_w)
        a.wait(vm=0)
        self.stamp("o_ret1", 1)
        self.maxtree(list(range(vT, vT + 6)), vT + 7)
        self.branch_if_invalid(vT + 7, l_r)
        a.I("ds_write_b128", v(vOSW), v(vT, 4))
        a.I("ds_write_b64", v(vT + 8), v(vT + 4, 2))
        self.stamp("o_ok0", 0)
        self.stamp("o_ok1", 1)
        self.tail_retry.append((l_r, lambda: self.og_issue(), l_w))
        l_pf = self.L("o_pf")
        a.I("s_branch", l_pf)
        a.label(l_ng)
        self.if_pair1(l_pf)
        self.wo_frags()
        a.label(l_pf)
        lab = self.L("o_wl")
        self.if_pair0(lab)
        if not self.wo_early:
            self.loader(lambda: a.wait(vm=0))
        a.label(lab)
        self.log_retries(1)
        a.wait(lgkm=0)
        a.I("s_barrier")
        self.stamp("Bo0", 0)
        self.stamp("Bo1", 1)
        lab, l_x = self.L("o_p0"), self.L("o_x")
        self.if_pair0(lab)
        self.if_wave(5, 8, l_x)
        self.gud_dma()
        a.I("s_branch", l_skip2)
        a.label(l_x)
        self.wo_frags()
        a.label(lab)
        self.if_wave(0, 5, l_skip2)
        for st in range(6):
            a.I("ds_read_b128", v(B + 4 * st, 4), v(vOSR), mods=f"offset:{64 * st}")
        a.I("ds_read_b64", v(ML, 2), v(vMLR))
        a.wait(lgkm=0)
        for st in range(6):
            a.I("v_mfma_f32_16x16x32_bf16", v(D, 4), v(vWT + 4 * st, 4), v(B + 4 * st, 4), 0 if st == 0 else v(D, 4))
            if st == 0:
                self.dpp("v_max_f32", Mx, ML, ML, self.BF8[0])
            if st == 1:
                self.dpp("v_max_f32", Mx, Mx, Mx, self.BF8[1])
            if st == 2:
                self.dpp("v_max_f32", Mx, Mx, Mx, self.BF8[2])
            if st == 3:
                a.I("v_sub_f32", v(W), v(ML), v(Mx))
            if st == 4:
                a.I("v_exp_f32", v(W), v(W))
        a.I("v_mul_f32", v(Mx), v(W), v(ML + 1))
        self.bfly8("v_add_f32", [Mx])
        a.I("v_rcp_f32", v(Mx), v(Mx))
        a.I("v_mul_f32", v(W), v(W), v(Mx))
        for i in range(4):
            a.I("v_mul_f32", v(D + i), v(D + i), v(W))
        a.I("v_add_f32_dpp", v(U), v(D), v(D), mods="row_shl:4 row_mask:0xf bank_mask:0x5")
        a.I("v_add_f32_dpp", v(U + 1), v(D + 1), v(D + 1), mods="row_shl:4 row_mask:0xf bank_mask:0x5")
        a.I("v_add_f32_dpp", v(U), v(D + 2), v(D + 2), mods="row_shr:4 row_mask:0xf bank_mask:0xa")
        a.I("v_add_f32_dpp", v(U + 1), v(D + 3), v(D + 3), mods="row_shr:4 row_mask:0xf bank_mask:0xa")
        for ctrl in ("quad_perm:[1,0,3,2]", "quad_perm:[2,3,0,1]"):
            self.dpp("v_add_f32", U, U, U, ctrl)
            self.dpp("v_add_f32", U + 1, U + 1, U + 1, ctrl)
        self.ex(mY)
        a.I("buffer_store_dwordx2", v(U, 2), v(vYP), s(SRD_WS, 4), s(sPY), mods="offen sc1")
        self.exec_all()
        self.stamp("y_pub0", 0)
        self.stamp("y_pub1", 1)
        a.label(l_skip2)

    def xg_issue(self, soff):
        a = self.a
        A = vT
        a.I("buffer_load_dwordx4", v(A, 4), v(vYG), s(SRD_WS, 4), s(soff), mods="offen sc1")
        a.I("buffer_load_dwordx4", v(A + 4, 4), v(vYG), s(SRD_WS, 4), s(soff), mods="offen offset:1024 sc1")

    def x_gather(self, soff, key, tag):
        a = self.a
        A = vT
        l_w, l_r = self.L("x_w"), self.L("x_r")
        self.delay(key)
        self.xg_issue(soff)
        self.stamp(tag + "_iss1", 1)
        a.label(l_w)
        a.wait(vm=0)
        self.stamp(tag + "_ret1", 1)
        chk, r01, r23, r = vT + 11, vT + 8, vT + 9, vT + 10
        self.maxtree(list(range(A, A + 8)), chk)
        for i in range(4):
            a.I("v_add_f32", v(A + i), v(A + i), v(A + 4 + i))
        self.branch_if_invalid(chk, l_r)
        a.I("v_add_f32_dpp", v(r01), v(A), v(A), mods="row_ror:8 row_mask:0xf bank_mask:0x3")
        a.I("v_add_f32_dpp", v(r23), v(A + 2), v(A + 2), mods="row_ror:8 row_mask:0xf bank_mask:0x3")
        a.I("v_add_f32_dpp", v(r01), v(A + 1), v(A + 1), mods="row_ror:8 row_mask:0xf bank_mask:0xc")
        a.I("v_add_f32_dpp", v(r23), v(A + 3), v(A + 3), mods="row_ror:8 row_mask:0xf bank_mask:0xc")
        a.I("v_add_f32_dpp", v(r), v(r01), v(r01), mods="row_shl:4 row_mask:0xf bank_mask:0x5")
        a.I("v_add_f32_dpp", v(r), v(r23), v(r23), mods="row_shr:4 row_mask:0xf bank_mask:0xa")
        self.dpp("v_add_f32", r, r, r, "quad_perm:[1,0,3,2]")
        self.dpp("v_add_f32", r, r, r, "quad_perm:[2,3,0,1]")
        a.I("v_add_f32", v(r), v(r), v(vXR))
        self.stamp(tag + "0", 0)
        self.stamp(tag + "1", 1)
        self.tail_retry.append((l_r, lambda: self.xg_issue(soff), l_w))
        return r

    def gu_tr_addr(self):
        a = self.a
        T = vT + 44
        self.tr_base(T, 96)
        a.I("s_cmp_ge_u32", s(sW), 3)
        a.I("s_cselect_b32", s(sT0), 8192 - 96, 0)
        a.I("s_lshl_b32", s(sT1), s(sW), 5)
        a.I("s_add_u32", s(sT0), s(sT0), s(sT1))
        a.I("s_add_u32", s(sT0), s(sT0), LA)
        a.I("v_add_u32", v(T), s(sT0), v(T))
        a.I("v_mov_b32", v(vWT + 10), 0)
        a.I("v_mov_b32", v(vWT + 11), 0)
        return T

    def gu_phase(self):
        a = self.a
        B, D, T, R = vT, vT + 16, vT + 44, vT + 24
        l_skip, l7, l_st = self.L("gu_s"), self.L("gu_7"), self.L("gu_st")
        self.if_wave(0, 6, l7)
        for st in range(3):
            for p in range(2):
                if st == 2 and p == 1:
                    continue
                a.I("ds_read_b64_tr_b16", v(vWT + 4 * st + 2 * p, 2), v(T), mods=f"offset:{96 * (32 * st + 16 * p)}")
        self.read_xfrags(B)
        a.wait(lgkm=0)
        for st in range(3):
            a.I("v_mfma_f32_16x16x32_bf16", v(D, 4), v(vWT + 4 * st, 4), v(B + 4 * st, 4), 0 if st == 0 else v(D, 4))
        self.ex(mGP)
        a.nop(7)
        self.store8("buffer_store_dwordx4", v(D, 4), v(vGPUB), s(sPG))
        self.exec_all()
        a.I("s_branch", l_skip)
        a.label(l7)
        self.if_wave(7, 8, l_skip)
        self.stats_read(R)
        a.wait(lgkm=0)
        self.stats_publish(R, sPG, 768)
        a.label(l_skip)

    def gg_issue(self, pair):
        a = self.a
        A = vT
        offs = (0, 192) if pair else (0, 192, 384, 576)
        for k, off in enumerate(offs):
            a.I("buffer_load_dwordx4", v(A + 4 * k, 4), v(vGG), s(SRD_WS, 4), s(sPG), mods=f"offen offset:{off} sc1")
        a.I("buffer_load_dwordx2", v(A + 16, 2), v(vSG), s(SRD_WS, 4), s(sPG), mods="offen offset:768 sc1")

    def gg_finish(self, pair, l_r):
        a = self.a
        A, S = vT, vT + 16
        chk, G, U, mean, rstd, t = vT + 18, vT + 19, vT + 20, vT + 21, vT + 22, vT + 23
        n = 8 if pair else 16
        self.maxtree(list(range(A, A + n)) + [S, S + 1], chk)
        self.branch_if_invalid(chk, l_r)
        if pair == 0:
            for base, out in ((A + 8, vCG), (A + 12, vCU)):
                self.rr4_a(base); self.rr4_b(base); self.rr4_c(base); self.rr4_d(base, out)
                self.dpp("v_add_f32", out, out, out, "row_ror:8")
        self.rr4_a(A); self.rr4_a(A + 4)
        self.dpp("v_add_f32", S, S, S, self.BF8[0]); self.dpp("v_add_f32", S + 1, S + 1, S + 1, self.BF8[0])
        self.rr4_b(A); self.rr4_b(A + 4)
        self.dpp("v_add_f32", S, S, S, self.BF8[1]); self.dpp("v_add_f32", S + 1, S + 1, S + 1, self.BF8[1])
        self.rr4_c(A); self.rr4_c(A + 4)
        self.dpp("v_add_f32", S, S, S, self.BF8[2]); self.dpp("v_add_f32", S + 1, S + 1, S + 1, self.BF8[2])
        self.rr4_d(A, G); self.rr4_d(A + 4, U)
        a.I("v_mul_f32", v(mean), hex(f2u(1.0 / 640)), v(S))
        a.I("v_mul_f32", v(t), hex(f2u(1.0 / 640)), v(S + 1))
        self.dpp("v_add_f32", G, G, G, "row_ror:8")
        self.dpp("v_add_f32", U, U, U, "row_ror:8")
        a.I("v_fma_f32", v(t), f"-v{mean}", v(mean), v(t))
        a.I("v_max_f32", v(t), 0, v(t))
        a.I("v_add_f32", v(t), hex(f2u(1e-5)), v(t))
        a.I("v_fma_f32", v(G), f"-v{mean}", v(vCG), v(G))
        a.I("v_fma_f32", v(U), f"-v{mean}", v(vCU), v(U))
        a.I("v_rcp_f32", v(rstd), v(t))
        a.I("v_mul_f32", v(G), v(G), v(U))
        a.I("v_mul_f32", v(G), v(G), v(rstd))
        a.I("v_cvt_pk_bf16_f32", v(G), v(G), v(G))
        a.I("ds_write_b16", v(vHW), v(G))

    def wd_prefetch(self):
        a = self.a
        T = vT + 44
        self.tr_base(T, 160)
        a.I("s_lshl_b32", s(sT0), s(sW), 5)
        a.I("s_add_u32", s(sT0), s(sT0), LA + 16384)
        a.I("v_add_u32", v(T), s(sT0), v(T))
        for st, p in ((0, 0), (0, 1), (1, 0)):
            a.I("ds_read_b64_tr_b16", v(vWT + 4 * st + 2 * p, 2), v(T), mods=f"offset:{160 * (32 * st + 16 * p)}")
        a.I("v_mov_b32", v(vWT + 6), 0)
        a.I("v_mov_b32", v(vWT + 7), 0)

    def g_gather(self):
        a = self.a
        l_skip, l_pf, l_p1, l_j = self.L("gg_s"), self.L("gg_pf"), self.L("gg_p1"), self.L("gg_j")
        self.if_wave(6, 8, l_pf)
        self.delay("g")
        for pair in (0, 1):
            l_w, l_r = self.L("gg_w"), self.L("gg_r")
            if pair == 0:
                self.if_pair0(l_p1)
            else:
                a.label(l_p1)
            self.gg_issue(pair)
            a.label(l_w)
            a.wait(vm=0)
            self.gg_finish(pair, l_r)
            self.stamp(f"gg_ok{pair}")
            self.tail_retry.append((l_r, (lambda p=pair: self.gg_issue(p)), l_w))
            a.I("s_branch", l_j)
        a.label(l_pf)
        self.if_wave(0, 5, l_j)
        self.wd_prefetch()
        a.label(l_j)
        self.log_retries(3)
        a.wait(lgkm=0)
        a.I("s_barrier")

    def d_phase(self):
        a = self.a
        B, D = vT, vT + 16
        l_skip = self.L("d_s")
        self.if_wave(0, 5, l_skip)
        for st in range(2):
            a.I("ds_read_b128", v(B + 4 * st, 4), v(vHB), mods=f"offset:{64 * st}")
        a.wait(lgkm=0)
        for st in range(2):
            a.I("v_mfma_f32_16x16x32_bf16", v(D, 4), v(vWT + 4 * st, 4), v(B + 4 * st, 4), 0 if st == 0 else v(D, 4))
        self.ex(mN0)
        a.nop(7)
        a.I("buffer_store_dwordx4", v(D, 4), v(vDP), s(SRD_WS, 4), s(sPD), mods="offen sc1")
        self.exec_all()
        a.label(l_skip)

    def set_pair_offsets(self):
        a = self.a
        a.I("s_mul_i32", s(sPQ), s(sP), QB[1])
        a.I("s_lshl_b32", s(sPO), s(sP), 9)
        a.I("s_add_u32", s(sPO), s(sPO), OB[0])
        a.I("s_lshl_b32", s(sPG), s(sP), 10)
        a.I("s_add_u32", s(sPG), s(sPG), GB[0])
        a.I("s_mul_i32", s(sPY), s(sP), 2 * YPK)
        a.I("s_add_u32", s(sPD), s(sPY), YPK)

    def set_gp_mask(self):
        a = self.a
        a.I("s_cmp_eq_u32", s(sP), 0)
        a.I("s_cselect_b64", s(mGP, 2), s(mN01, 2), s(mN0, 2))

    def build(self):
        a = self.a
        self.tail_retry = []
        if self.stamps and (self.stamp_sel is None or "start" in self.stamp_sel):
            pass
        self.prologue()
        self.set_pair_offsets()
        l_qj = self.L("qgJ")
        self.layer1_load()
        self.q_gather0_finish(l_qj)
        a.label("L_pair")
        l_skip = self.L("xs")
        self.if_wave(0, 5, l_skip)
        self.x_write(vT + 10)
        a.label(l_skip)
        a.wait(lgkm=0)
        a.I("s_barrier")
        self.stamp("B2_1")
        self.q_phase1()
        self.stamp("q_pub1")
        self.q_gather1(l_qj)
        a.label(l_qj)
        self.log_retries(0)
        a.wait(lgkm=0)
        a.I("s_barrier")
        self.stamp("B3_0", 0)
        self.stamp("B3_1", 1)
        self.attention()
        self.o_phase()
        l_skip, l_w = self.L("xs2"), self.L("xw")
        lg = self.L("gua")
        self.if_wave(0, 6, lg)
        self.gu_tr_addr()
        a.label(lg)
        self.if_wave(0, 5, l_w)
        r = self.x_gather(sPY, "y", "yg_ok")
        self.x_write(r)
        a.I("s_branch", l_skip)
        a.label(l_w)
        a.wait(vm=0)
        a.label(l_skip)
        self.log_retries(2)
        a.wait(lgkm=0)
        a.I("s_barrier")
        self.stamp("B6_1", 1)
        self.gu_phase()
        self.stamp("g_pub1", 1)
        self.g_gather()
        self.stamp("B7_1", 1)
        self.d_phase()
        self.stamp("d_pub0", 0)
        self.stamp("d_pub1", 1)
        l_fin = self.L("fin")
        a.I("s_cmp_eq_u32", s(sP), 1)
        a.I("s_cbranch_scc1", l_fin)
        l_skip = self.L("xs3")
        self.if_wave(0, 5, l_skip)
        r = self.x_gather(sPD, "d", "dg_ok")
        assert r == vT + 10
        a.label(l_skip)
        self.log_retries(4)
        a.I("s_mov_b32", s(sP), 1)
        self.set_pair_offsets()
        self.set_gp_mask()
        a.I("s_branch", "L_pair")
        a.label(l_fin)
        a.I("s_cmp_lg_u32", s(sH), 0)
        a.I("s_cbranch_scc1", "L_dump")
        self.if_wave(0, 5, "L_dump")
        self.srd(SRD_X, pOUT, sJ160, 1280)
        a.I("v_mov_b32", v(vT + 13), v(vXCOL))
        r = self.x_gather(sPD, "d", "fin_ok")
        a.I("v_cvt_pk_bf16_f32", v(r), v(r), v(r))
        self.ex(mQ0)
        a.I("buffer_store_short", v(r), v(vT + 13), s(SRD_X, 4), 0, mods="offen")
        self.exec_all()
        self.log_retries(4)
        lab = self.L("ep")
        a.I("s_or_b32", s(sT0), s(sJ), s(sW))
        a.I("s_cmp_lg_u32", s(sT0), 0)
        a.I("s_cbranch_scc1", lab)
        a.I("v_mov_b32", v(vT), s(sTag))
        a.I("v_mov_b32", v(vT + 1), hex(EPOCH))
        self.exi(1)
        a.I("buffer_store_dword", v(vT), v(vT + 1), s(SRD_WS, 4), 0, mods="offen sc1")
        self.exec_all()
        a.label(lab)
        a.label("L_dump")
        if self.stamps:
            self.stamp("end")
            a.wait(lgkm=0)
            T = vT
            a.I("v_mov_b32", v(T), 0)
            for k in range(len(self.stamp_names)):
                a.I("v_writelane_b32", v(T), s(STAMP_SLOTS[k]), k)
            a.I("v_writelane_b32", v(T), s(sTmo), 14)
            a.I("v_writelane_b32", v(T), s(sFast), 15)
            if self.dbgout:
                lab = self.L("dbo")
                a.I("s_cmp_lg_u32", s(sW), 0)
                a.I("s_cbranch_scc1", lab)
                a.I("s_cmp_eq_u32", s(2), 0)
                a.I("s_cselect_b32", s(sT1), 4, 36)
                a.I("s_cmp_eq_u32", s(2), 255)
                a.I("s_cselect_b32", s(sT2), 1, 0)
                a.I("s_cmp_eq_u32", s(2), 0)
                a.I("s_cselect_b32", s(sT2), 1, s(sT2))
                a.I("s_cmp_eq_u32", s(sT2), 0)
                a.I("s_cbranch_scc1", lab)
                a.I("v_subrev_u32", v(T + 2), s(STAMP_SLOTS[0]), v(T))
                a.I("v_lshlrev_b32", v(T + 3), 2, v(vL))
                a.I("v_add_u32", v(T + 3), s(sT1), v(T + 3))
                a.I("v_subrev_u32", v(T + 3), 4, v(T + 3))
                a.I("s_mov_b64", "exec", "0xfe")
                a.I("buffer_store_dword", v(T + 2), v(T + 3), s(SRD_DBG, 4), 0, mods="offen")
                self.exec_all()
                a.label(lab)
            a.I("s_lshl_b32", s(sT0), s(2), 3)
            a.I("s_add_u32", s(sT0), s(sT0), s(sW))
            a.I("s_lshl_b32", s(sT0), s(sT0), 7)
            a.I("s_add_u32", s(sT0), s(sT0), hex(DBGBASE))
            a.I("v_lshlrev_b32", v(T + 1), 2, v(vL))
            a.I("v_add_u32", v(T + 1), s(sT0), v(T + 1))
            a.I("s_mov_b64", "exec", "0xffff")
            a.I("buffer_store_dword", v(T), v(T + 1), s(SRD_WS, 4), 0, mods="offen")
            a.I("buffer_store_dword", v(vDBG), v(T + 1), s(SRD_WS, 4), 0, mods="offen offset:64")
            self.exec_all()
        a.label("L_end")
        a.I("s_endpgm")
        for (lab, fn, back) in self.tail_retry:
            a.label(lab)
            fn()
            self.retry(back)
        for (lab, op, data, vaddr, soff, mods, back) in self.ool:
            a.label(lab)
            a.I(op, data, vaddr, s(SRD_WS, 4), soff, mods=mods)
            a.I("s_branch", back)
        return a.fix()

    def text(self):
        hdr = open(os.path.join(os.path.dirname(os.path.abspath(__file__)), "header.txt")).read()
        body = self.a.text()
        return f"""{hdr}; @launch grid=(256,1,1) block=(512,1,1) lds={LDS_BYTES}
.amdgcn_target "amdgcn-amd-amdhsa--gfx950"
.text
.globl {KNAME}
.p2align 8
.type {KNAME},@function
{KNAME}:
{body}.section .rodata,"a"
.p2align 6
.amdhsa_kernel {KNAME}
  .amdhsa_next_free_vgpr 256
  .amdhsa_next_free_sgpr 102
  .amdhsa_accum_offset 256
  .amdhsa_group_segment_fixed_size 0
  .amdhsa_kernarg_size 96
  .amdhsa_user_sgpr_count 2
  .amdhsa_user_sgpr_kernarg_segment_ptr 1
  .amdhsa_system_sgpr_workgroup_id_x 1
.end_amdhsa_kernel
"""


def make(**kw):
    g = Gen(**kw)
    g.build()
    return g, g.text()


if __name__ == "__main__":
    out = sys.argv[1] if len(sys.argv) > 1 else "interleave_layers__sliding_block_cached__glu_gated_bilinear__decode.s"
    kw = {}
    for x in sys.argv[2:]:
        k, val = x.split("=")
        kw[k] = val.split(",") if k == "stamp_sel" else int(val)
    g, t = make(**kw)
    open(out, "w").write(t)
    print("instructions:", g.a.count(), "stamps:", g.stamp_names)
```

```python
import sys, os, struct
sys.path.insert(0, os.path.dirname(os.path.abspath(__file__)))
from asmlib import Asm, v, s

KNAME = "interleave_layers__sliding_block_cached__glu_gated_bilinear__decode_kernel"

LA = 0
LB = 30720
LC = 129024
LM = 159744
XB = LM
ONES = LM + 192
QBL = LM + 384
HBL = LM + 768
MXL = LM + 896
FSL = LM + 928
LSL = LM + 960
ZRO = LM + 1024
OST = LB + 1024
MLS = OST + 3200
LDS_BYTES = 163840

SLOT = 8192
QB = [0, 3328]
OB = [4224, 4736]
GB = [5248, 6272]
CLR0, CLRN = 3328, 4
EPOCH = 0x3F0000
YBASE = 0x200000
YPK = 81920
WS_BYTES = 0x400000
DBGBASE = 0x300000

sH, sJ, sW, sP = 4, 5, 6, 7
SRD_WS, SRD_DBG, SRD_K, SRD_V, SRD_W, SRD_X = 8, 12, 16, 20, 24, 28
mN0, mN01, mQ0, mY, mGP, m63 = 32, 34, 36, 38, 40, 42
sOwn, sG8, sFast, sTmo, sM, sPQ, sPO, sPG, sPY, sPD = 44, 45, 46, 47, 48, 49, 50, 51, 52, 53
sT0, sT1, sT2, sT3, sT4, sT5, sT6, sT7 = 54, 55, 56, 57, 58, 59, 60, 61
sJ160 = 62
sTag = 63
HSR = [16, 17, 18, 19, 28, 29, 30, 31]
sKA = 64
pX, pK, pV, pWQ, pWO, pWG, pWU, pWD, pOUT, pDBG, pWS = 64, 66, 68, 70, 72, 76, 78, 80, 82, 84, 86
STAMP_SLOTS = [88, 90, 92, 94, 96, 98, 100, 64, 66, 68, 70, 74, 84, 86]

vL, vG, vN = 1, 2, 3
vXB, vXW, vYG, vYP, vDP, vQG, vSG, vGG = 4, 5, 6, 7, 8, 9, 10, 12
vOG = 0
vXR, vCQ, vCG, vCU = 13, 14, 15, 16
vQPUB, vGPUB, vQA = 17, 18, 19
vT = 20
vQW, vHW, vHB, vOAC, vOPUB, vMXW, vVOF, vORD, vDBG = 68, 69, 70, 71, 72, 73, 74, 77, 79
vPA = 80
vIDX = 88
vQAD = 89
vIDQ = 95
vWT = 96
vWQ = 120
vOML, vOSW, vOSR, vMLR = 156, 157, 158, 159
vXCOL = 11
vXF = 96
vV = 160
vK = 208

SENT = -1
LOG2E = 1.4426950408889634
QSCALE = (192.0 ** -0.5) * LOG2E


def f2u(x):
    return struct.unpack("<I", struct.pack("<f", x))[0]


LOADER = 4


class Gen:
    def __init__(self, nt_kv=True, nt_w=False, stamps=False, d_q=0, d_o=0, d_y=0, d_g=0, d_d=0, force_slow=False,
                 tmo=0x40000, stamp_sel=None, rt=True, rsleep=0, clr_late=1, d_q0=0, warm=1, dbgout=0, wo_early=0, win=0, touch=0, codepf=0, stouch=0):
        self.a = Asm()
        self.ool = []
        self.nt_kv = " nt" if nt_kv else ""
        self.nt_w = " nt" if nt_w else ""
        self.stamps = stamps
        self.stamp_names = []
        self.stamp_sel = stamp_sel
        self.rt = rt
        self.d = dict(q=d_q, o=d_o, y=d_y, g=d_g, d=d_d, q0=d_q0)
        self.force_slow = force_slow
        self.tmo = tmo
        self.rsleep = rsleep
        self.clr_late = clr_late
        self.warm = warm
        self.touch = touch
        self.stouch = stouch
        self.codepf = codepf
        self.win = win
        self.wo_early = wo_early
        self.dbgout = dbgout
        self.uid = 0
        self.nretry = 0

    def L(self, base):
        self.uid += 1
        return f"L_{base}_{self.uid}"

    def stamp(self, name, pair=None):
        if not self.stamps or (self.stamp_sel is not None and name not in self.stamp_sel):
            return
        a = self.a
        k = len(self.stamp_names)
        if k >= len(STAMP_SLOTS):
            return
        self.stamp_names.append(name)
        op = "s_memrealtime" if self.rt else "s_memtime"
        if pair is None:
            a.I(op, s(STAMP_SLOTS[k], 2))
        else:
            lab = self.L("st")
            a.I("s_cmp_lg_u32", s(sP), pair)
            a.I("s_cbranch_scc1", lab)
            a.I(op, s(STAMP_SLOTS[k], 2))
            a.label(lab)

    def log_retries(self, hop):
        if not self.stamps:
            return
        a = self.a
        a.I("s_lshl_b32", s(sT7), s(sP), 3)
        a.I("s_add_u32", s(sT7), s(sT7), hop)
        a.I("s_mov_b32", "m0", s(sT7))
        a.I("v_writelane_b32", v(vDBG), s(sTmo), "m0")

    def srd(self, d, lo, off_s, size):
        a = self.a
        if off_s is None:
            a.I("s_mov_b32", s(d), s(lo))
            a.I("s_mov_b32", s(d + 1), s(lo + 1))
            a.I("s_mov_b32", s(d + 2), size)
        else:
            a.I("s_add_u32", s(d), s(lo), s(off_s))
            a.I("s_addc_u32", s(d + 1), s(lo + 1), 0)
            a.I("s_sub_u32", s(d + 2), size, s(off_s))
        a.I("s_mov_b32", s(d + 3), "0x20000")

    def ex(self, mask):
        self.a.I("s_mov_b64", "exec", s(mask, 2) if isinstance(mask, int) and mask >= 32 else mask)

    def exi(self, imm):
        self.a.I("s_mov_b64", "exec", imm)

    def exec_all(self):
        self.a.I("s_mov_b64", "exec", -1)

    def if_wave(self, lo, hi, else_label):
        a = self.a
        if hi - lo == 1:
            a.I("s_cmp_lg_u32", s(sW), lo)
            a.I("s_cbranch_scc1", else_label)
            return
        if lo > 0:
            a.I("s_cmp_lt_u32", s(sW), lo)
            a.I("s_cbranch_scc1", else_label)
        if hi < 8:
            a.I("s_cmp_ge_u32", s(sW), hi)
            a.I("s_cbranch_scc1", else_label)

    def if_pair0(self, else_label):
        self.a.I("s_cmp_lg_u32", s(sP), 0)
        self.a.I("s_cbranch_scc1", else_label)

    def if_pair1(self, else_label):
        self.a.I("s_cmp_eq_u32", s(sP), 0)
        self.a.I("s_cbranch_scc1", else_label)

    def store8(self, op, data, vaddr, soff, mods=""):
        a = self.a
        l_slow, l_done = self.L("slow"), self.L("sd")
        a.I("s_cmp_eq_u32", s(sFast), 0)
        a.I("s_cbranch_scc1", l_slow)
        a.I(op, data, vaddr, s(SRD_WS, 4), soff, mods=("offen " + mods).strip())
        a.label(l_done)
        self.ool.append((l_slow, op, data, vaddr, soff, ("offen " + mods + " sc1").strip(), l_done))

    def retry(self, loop_label):
        a = self.a
        if self.rsleep:
            a.I("s_sleep", self.rsleep)
        a.I("s_add_u32", s(sTmo), s(sTmo), 1)
        a.I("s_cmp_lt_u32", s(sTmo), hex(self.tmo))
        a.I("s_cbranch_scc1", loop_label)
        a.I("s_branch", "L_end")

    def maxtree(self, regs, tmp):
        a = self.a
        regs = list(regs)
        first = True
        while regs:
            if first:
                if len(regs) >= 3:
                    a.I("v_max3_u32", v(tmp), v(regs[0]), v(regs[1]), v(regs[2]))
                    regs = regs[3:]
                else:
                    a.I("v_max_u32", v(tmp), v(regs[0]), v(regs[-1]))
                    regs = []
                first = False
            elif len(regs) >= 2:
                a.I("v_max3_u32", v(tmp), v(tmp), v(regs[0]), v(regs[1]))
                regs = regs[2:]
            else:
                a.I("v_max_u32", v(tmp), v(tmp), v(regs[0]))
                regs = []

    def branch_if_invalid(self, tmp, retry_label):
        a = self.a
        a.I("v_cmp_eq_u32", "vcc", SENT, v(tmp))
        a.I("s_cmp_lg_u64", "vcc", 0)
        a.I("s_cbranch_scc1", retry_label)

    def wait_by_wave(self, counts):
        a = self.a
        done = self.L("wbw")
        vals = sorted(set(counts.values()))
        for val in vals[:-1]:
            nxt, hit = self.L("wbn"), self.L("wbh")
            for w in [w for w, c in counts.items() if c == val]:
                a.I("s_cmp_eq_u32", s(sW), w)
                a.I("s_cbranch_scc1", hit)
            a.I("s_branch", nxt)
            a.label(hit)
            a.wait(vm=val)
            a.I("s_branch", done)
            a.label(nxt)
        a.wait(vm=vals[-1])
        a.label(done)

    def k_addr(self):
        a = self.a
        T = vT + 40
        a.I("v_and_b32", v(T + 2), 7, v(vN))
        a.I("v_mul_u32_u24", v(T), 384, v(T + 2))
        a.I("v_lshrrev_b32", v(T + 3), 3, v(vN))
        a.I("v_lshl_add_u32", v(T + 3), v(T + 3), 2, v(vG))
        a.I("v_and_b32", v(T + 2), 6, v(T + 2))
        a.I("v_xor_b32", v(T + 3), v(T + 3), v(T + 2))
        a.I("v_lshl_add_u32", v(T), v(T + 3), 4, v(T))
        a.I("s_mul_i32", s(sT2), s(sW), 12288)
        a.I("s_add_u32", s(sT2), s(sT2), LB)
        a.I("v_add_u32", v(T), s(sT2), v(T))

    def k_frags(self, part):
        T = vT + 40
        for tt in range(2):
            t = 2 * part + tt
            for l in range(3):
                self.a.I("ds_read_b128", v(vK + 12 * t + 4 * l, 4), v(T), mods=f"offset:{6144 * part + 3072 * tt + 128 * l}")

    def delay(self, key):
        n = self.d[key]
        if n:
            self.a.I("s_sleep", n)

    def dpp(self, op, dst, src0, src1, ctrl, row=0xf, bank=0xf):
        mods = f"{ctrl} row_mask:{hex(row)} bank_mask:{hex(bank)}"
        if src1 is None:
            self.a.I(op + "_dpp", v(dst), v(src0), mods=mods)
        else:
            self.a.I(op + "_dpp", v(dst), v(src0), v(src1), mods=mods)

    BF8 = ("quad_perm:[1,0,3,2]", "quad_perm:[2,3,0,1]", "row_half_mirror")

    def bfly8(self, op, regs):
        for ctrl in self.BF8:
            for r in regs:
                self.dpp(op, r, r, r, ctrl)

    def rr4_a(self, a0):
        a = self.a
        a.I("v_permlane32_swap_b32", v(a0), v(a0 + 1))
        a.I("v_permlane32_swap_b32", v(a0 + 2), v(a0 + 3))

    def rr4_b(self, a0):
        a = self.a
        a.I("v_add_f32", v(a0), v(a0), v(a0 + 1))
        a.I("v_add_f32", v(a0 + 2), v(a0 + 2), v(a0 + 3))

    def rr4_c(self, a0):
        self.a.I("v_permlane16_swap_b32", v(a0), v(a0 + 2))

    def rr4_d(self, a0, out):
        self.a.I("v_add_f32", v(out), v(a0), v(a0 + 2))

    def sigma_row(self, dst, tmp):
        a = self.a
        a.I("v_lshlrev_b32", v(dst), 1, v(vG))
        a.I("v_lshrrev_b32", v(tmp), 1, v(vG))
        a.I("v_and_b32", v(dst), 2, v(dst))
        a.I("v_or_b32", v(dst), v(dst), v(tmp))

    def tr_base(self, dst, pitch, swz=False):
        a = self.a
        a.I("v_lshrrev_b32", v(dst + 1), 2, v(vN))
        a.I("v_lshl_add_u32", v(dst + 1), v(vG), 2, v(dst + 1))
        a.I("v_mul_u32_u24", v(dst), pitch, v(dst + 1))
        if swz:
            a.I("v_and_b32", v(dst + 1), 6, v(dst + 1))
            a.I("v_bfe_u32", v(dst + 2), v(vN), 1, 1)
            a.I("v_xor_b32", v(dst + 1), v(dst + 1), v(dst + 2))
            a.I("v_lshl_add_u32", v(dst), v(dst + 1), 4, v(dst))
            a.I("v_and_b32", v(dst + 2), 1, v(vN))
            a.I("v_lshl_add_u32", v(dst), v(dst + 2), 3, v(dst))
        else:
            a.I("v_and_b32", v(dst + 2), 3, v(vN))
            a.I("v_lshl_add_u32", v(dst), v(dst + 2), 3, v(dst))

    def prologue(self):
        a = self.a
        T = vT
        a.I("s_cmp_ge_u32", s(2), 256)
        a.I("s_cbranch_scc1", "L_end")
        self.stamp("start")
        a.I("s_load_dwordx16", s(sKA, 16), s(0, 2), 0)
        a.I("s_load_dwordx8", s(sKA + 16, 8), s(0, 2), 64)
        a.I("v_readfirstlane_b32", s(sW), v(0))
        a.I("s_and_b32", s(sH), s(2), 7)
        a.I("s_lshl_b32", s(sH), s(sH), 2)
        a.I("s_bfe_u32", s(3), s(2), "0x20003")
        a.I("s_or_b32", s(sH), s(sH), s(3))
        a.I("s_lshr_b32", s(sJ), s(2), 5)
        a.I("s_lshr_b32", s(sW), s(sW), 6)
        a.I("v_and_b32", v(vL), 63, v(0))
        a.I("v_lshrrev_b32", v(vG), 4, v(vL))
        a.I("v_and_b32", v(vN), 15, v(vL))
        a.I("s_lshl_b32", s(sG8), s(sH), 16)
        a.I("s_lshl_b32", s(3), s(sJ), 13)
        a.I("s_add_u32", s(sOwn), s(sG8), s(3))
        a.I("s_mul_i32", s(sJ160), s(sJ), 160)
        for k in range(3):
            P, r, pos, ch = T + 10, T + 11, T + 12, T + 13
            a.I("v_add_u32", v(P), 64 * k, v(vL))
            a.I("v_mul_u32_u24", v(r), 2731, v(P))
            a.I("v_lshrrev_b32", v(r), 16, v(r))
            a.I("v_mul_u32_u24", v(pos), 24, v(r))
            a.I("v_sub_u32", v(pos), v(P), v(pos))
            a.I("v_and_b32", v(ch), 6, v(r))
            a.I("v_xor_b32", v(ch), v(ch), v(pos))
            a.I("v_lshlrev_b32", v(ch), 4, v(ch))
            a.I("v_mul_u32_u24", v(T + 14), 384, v(r))
            a.I("v_add_u32", v(vVOF + k), v(T + 14), v(ch))
            a.I("v_mul_u32_u24", v(T + 14), 12288, v(r))
            a.I("v_add_u32", v(T + 4 + k), v(T + 14), v(ch))
        a.I("s_mul_i32", s(sT6), s(sH), 3145728)
        a.I("s_mul_i32", s(sT3), s(sJ), 98304)
        a.I("s_add_u32", s(sT6), s(sT6), s(sT3))
        a.I("s_add_u32", s(sT6), s(sT6), 2359296)
        a.I("s_mul_i32", s(sT7), s(sJ), 983040)
        a.I("s_mul_i32", s(sT3), s(sH), 384)
        a.I("s_add_u32", s(sT7), s(sT7), s(sT3))
        a.wait(lgkm=0)
        self.stamp("karg")
        self.srd(SRD_WS, pWS, None, hex(WS_BYTES))
        a.I("s_mov_b32", s(sT0), hex(EPOCH))
        a.I("s_load_dword", s(sTag), s(SRD_WS, 2), s(sT0))
        self.srd(SRD_X, pX, sJ160, 1280)
        if not self.clr_late:
            l7 = self.L("p7")
            self.if_wave(7, 8, l7)
            a.I("s_setprio", 3)
            self.clears()
            a.label(l7)
        self.srd(SRD_W, pWQ, sT7, 7864320)
        self.srd(SRD_K, pK, sT6, 100663296)
        lq = self.L("wqe")
        self.if_wave(0, 4, lq)
        for rep in range(3):
            if rep == 2:
                a.I("s_cmp_ge_u32", s(sW), 2)
                a.I("s_cbranch_scc1", lq)
            a.I("s_add_u32", s(sT2), s(sW), 4 * rep)
            a.I("s_mul_i32", s(sT3), s(sT2), 98304)
            a.I("s_mul_i32", s(sT2), s(sT2), 3072)
            for k in range(3):
                a.I("s_add_u32", "m0", s(sT2), LA + 1024 * k)
                a.I("buffer_load_dwordx4", v(T + 4 + k), s(SRD_W, 4), s(sT3), mods="offen" + self.nt_kv + " lds")
        a.label(lq)
        la = self.L("xf")
        self.if_wave(0, 4, la)
        a.I("v_lshlrev_b32", v(T + 12), 3, v(vG))
        for st in range(3):
            for p in range(2):
                if st == 2 and p == 1:
                    continue
                a.I("buffer_load_dwordx2", v(vXF + 4 * st + 2 * p, 2), v(T + 12), s(SRD_X, 4), 0, mods=f"offen offset:{64 * st + 32 * p}")
        a.label(la)
        a.I("s_mul_i32", s(sT3), s(sW), 12288)
        a.I("s_add_u32", s(sT2), s(sT3), LB)
        a.I("s_add_u32", s(sT4), s(sT3), 3072)
        for pos in range(2):
            for k in range(3):
                a.I("s_add_u32", "m0", s(sT2), 3072 * pos + 1024 * k)
                a.I("buffer_load_dwordx4", v(vVOF + k), s(SRD_K, 4), s(sT3 + pos), mods="offen" + self.nt_kv + " lds")
        self.stamp("ka_issued")
        if self.clr_late:
            l7 = self.L("p7")
            self.if_wave(7, 8, l7)
            self.clears()
            a.label(l7)
        self.srd(SRD_V, pV, sT6, 100663296)
        self.srd(SRD_DBG, pDBG, None, 256)
        a.I("s_mov_b32", s(sTmo), 0)
        a.I("s_mov_b32", s(sFast), 0)
        a.I("s_mov_b32", s(sP), 0)

    def perm_pos(self, dst, col, t):
        a = self.a
        a.I("v_and_b32", v(dst), "0x63", v(col))
        a.I("v_bfe_u32", v(t), v(col), 2, 2)
        a.I("v_lshl_add_u32", v(dst), v(t), 3, v(dst))
        a.I("v_bfe_u32", v(t), v(col), 4, 1)
        a.I("v_lshl_add_u32", v(dst), v(t), 2, v(dst))
        a.I("v_lshlrev_b32", v(dst), 1, v(dst))

    def x_cols(self):
        a = self.a
        T = vT
        a.I("s_min_u32", s(sT1), s(sW), 4)
        a.I("v_bfe_u32", v(T + 10), v(vL), 2, 2)
        a.I("v_lshlrev_b32", v(T + 11), 1, v(T + 10))
        a.I("v_lshrrev_b32", v(T + 12), 1, v(T + 10))
        a.I("v_and_b32", v(T + 11), 2, v(T + 11))
        a.I("v_or_b32", v(T + 11), v(T + 11), v(T + 12))
        a.I("v_lshl_add_u32", v(T + 11), v(vG), 2, v(T + 11))
        a.I("s_lshl_b32", s(sT2), s(sT1), 4)
        a.I("v_add_u32", v(T + 11), s(sT2), v(T + 11))
        a.I("v_lshlrev_b32", v(T + 30), 1, v(T + 11))
        a.I("v_mov_b32", v(vXCOL), v(T + 30))
        self.perm_pos(vXW, T + 11, T + 12)
        a.I("v_add_u32", v(vXW), XB, v(vXW))

    def kv_dma(self, srd, groups, slot):
        a = self.a
        lab = self.L("kv")
        a.I("s_mov_b32", s(sT2), LB + 6144 * slot)
        a.I("s_mov_b32", s(sT3), 3072 * groups[0])
        a.I("s_mov_b32", s(sT4), 3072 * groups[1])
        a.I("s_mov_b32", s(sT5), 0)
        a.label(lab)
        for pos in range(2):
            for k in range(3):
                a.I("s_add_u32", "m0", s(sT2), 3072 * pos + 1024 * k)
                a.I("buffer_load_dwordx4", v(vVOF + k), s(srd, 4), s(sT3 + pos), mods="offen" + self.nt_kv + " lds")
                if self.win and k == 2:
                    a.wait(vm=self.win - 3)
        a.I("s_add_u32", s(sT2), s(sT2), 12288)
        a.I("s_add_u32", s(sT3), s(sT3), 12288)
        a.I("s_add_u32", s(sT4), s(sT4), 12288)
        a.I("s_add_u32", s(sT5), s(sT5), 1)
        a.I("s_cmp_lt_u32", s(sT5), 8)
        a.I("s_cbranch_scc1", lab)

    def wq_dma(self):
        a = self.a
        T = vT
        a.I("s_mul_i32", s(sT2), s(sJ), 983040)
        a.I("s_mul_i32", s(sT3), s(sH), 384)
        a.I("s_add_u32", s(sT2), s(sT2), s(sT3))
        self.srd(SRD_W, pWQ, sT2, 7864320)
        lab = self.L("wq")
        a.I("s_mov_b32", s(sT2), LA)
        a.I("s_mov_b32", s(sT3), 0)
        a.label(lab)
        for k in range(3):
            a.I("s_add_u32", "m0", s(sT2), 1024 * k)
            a.I("buffer_load_dwordx4", v(T + 4 + k), s(SRD_W, 4), s(sT3), mods="offen" + self.nt_kv + " lds")
        a.I("s_add_u32", s(sT2), s(sT2), 3072)
        a.I("s_add_u32", s(sT3), s(sT3), 98304)
        a.I("s_cmp_lt_u32", s(sT2), LA + 30720)
        a.I("s_cbranch_scc1", lab)

    def clears(self):
        a = self.a
        T = vT
        for i in range(4):
            a.I("v_mov_b32", v(T + 16 + i), SENT)
        a.I("v_lshlrev_b32", v(T + 8), 4, v(vL))
        a.I("v_add_u32", v(T + 8), s(sOwn), v(T + 8))
        for k in range(CLRN):
            a.I("s_mov_b32", s(sT2), CLR0 + 1024 * k)
            a.I("buffer_store_dwordx4", v(T + 16, 4), v(T + 8), s(SRD_WS, 4), s(sT2), mods="offen sc1")
        a.I("s_mul_i32", s(sT2), s(sJ), 10240)
        a.I("s_lshl_b32", s(sT3), s(sH), 6)
        a.I("s_add_u32", s(sT2), s(sT2), s(sT3))
        a.I("s_add_u32", s(sT2), s(sT2), hex(YBASE))
        for half in range(2):
            a.I("v_lshrrev_b32", v(T + 10), 2, v(vL))
            if half:
                a.I("v_add_u32", v(T + 10), 16, v(T + 10))
                a.I("v_min_u32", v(T + 10), 19, v(T + 10))
            a.I("v_mul_u32_u24", v(T + 11), 52, v(T + 10))
            a.I("v_lshrrev_b32", v(T + 11), 8, v(T + 11))
            a.I("v_mul_u32_u24", v(T + 12), 5, v(T + 11))
            a.I("v_sub_u32", v(T + 12), v(T + 10), v(T + 12))
            a.I("v_mul_u32_u24", v(T + 11), YPK, v(T + 11))
            a.I("v_lshl_add_u32", v(T + 11), v(T + 12), 11, v(T + 11))
            a.I("v_and_b32", v(T + 12), 3, v(vL))
            a.I("v_lshl_add_u32", v(T + 11), v(T + 12), 4, v(T + 11))
            a.I("v_add_u32", v(T + 11), s(sT2), v(T + 11))
            a.I("buffer_store_dwordx4", v(T + 16, 4), v(T + 11), s(SRD_WS, 4), 0, mods="offen sc1")
        a.I("v_mov_b32", v(T + 40), 0)
        a.I("v_lshlrev_b32", v(T + 41), 2, v(vL))
        a.I("s_mov_b32", s(sT0), -1)
        a.I("s_mov_b32", s(sT1), "0xff")
        a.I("s_mov_b64", "exec", s(sT0, 2))
        a.I("buffer_load_dword", v(T + 40), v(T + 41), s(SRD_X, 4), 0, mods="offen")
        self.exec_all()

    def arrive(self):
        a = self.a
        T = vT
        a.I("s_and_b32", s(sT2), s(2), 7)
        a.I("s_lshl_b32", s(sT2), s(sT2), 5)
        a.I("v_mov_b32", v(T + 10), s(sT2))
        a.I("v_mov_b32", v(T + 11), 1)
        self.stamp("clr_ack")
        self.exi(1)
        a.I("buffer_atomic_add", v(T + 11), v(T + 10), s(SRD_DBG, 4), 0, mods="offen")
        self.exec_all()

    def stats0_publish(self, R):
        a = self.a
        lo, hi = R + 2, R + 3
        a.I("v_lshlrev_b32", v(lo), 16, v(R))
        a.I("v_and_b32", v(hi), "0xffff0000", v(R))
        a.I("v_add_f32", v(R), v(lo), v(hi))
        a.I("v_mul_f32", v(R + 1), v(lo), v(lo))
        a.I("v_fmac_f32", v(R + 1), v(hi), v(hi))
        for ctrl, row in (("quad_perm:[1,0,3,2]", 0xf), ("quad_perm:[2,3,0,1]", 0xf), ("row_half_mirror", 0xf), ("row_mirror", 0xf),
                          ("row_bcast:15", 0xa), ("row_bcast:31", 0xc)):
            self.dpp("v_add_f32", R, R, R, ctrl, row=row)
            self.dpp("v_add_f32", R + 1, R + 1, R + 1, ctrl, row=row)
        P = vT + 4
        a.I("s_getreg_b32", s(sT3), "hwreg(HW_REG_XCC_ID, 0, 4)")
        a.I("v_mov_b32", v(P), v(R))
        a.I("v_mov_b32", v(P + 1), s(sTag))
        a.I("v_mov_b32", v(P + 2), v(R + 1))
        a.I("v_mov_b32", v(P + 3), s(sTag))
        a.I("v_mov_b32", v(P + 4), s(sT3))
        a.I("v_mov_b32", v(P + 5), s(sTag))
        a.I("v_mov_b32", v(P + 6), s(sOwn))
        self.ex(m63)
        a.I("buffer_store_dwordx4", v(P, 4), v(P + 6), s(SRD_WS, 4), 0, mods="offen offset:3072 sc1")
        a.I("buffer_store_dwordx2", v(P + 4, 2), v(P + 6), s(SRD_WS, 4), 0, mods="offen offset:3088 sc1")
        self.exec_all()

    def q0_publish(self):
        a = self.a
        D, P = vT + 16, vT + 28
        a.I("s_mul_i32", s(sT0), s(sW), 384)
        a.I("s_add_u32", s(sT0), s(sT0), s(sOwn))
        a.I("v_lshlrev_b32", v(P + 8), 5, v(vG))
        a.I("v_mul_u32_u24", v(P + 9), 1536, v(vN))
        a.I("v_add3_u32", v(P + 8), v(P + 8), v(P + 9), s(sT0))
        for i in range(4):
            a.I("v_mov_b32", v(P + 2 * i + 1), s(sTag))
        for k in range(3):
            for i in range(4):
                a.I("v_mov_b32", v(P + 2 * i), v(D + 4 * k + i))
            self.ex(mN01)
            a.I("buffer_store_dwordx4", v(P, 4), v(P + 8), s(SRD_WS, 4), 0, mods=f"offen offset:{128 * k} sc1")
            a.I("buffer_store_dwordx4", v(P + 4, 4), v(P + 8), s(SRD_WS, 4), 0, mods=f"offen offset:{128 * k + 16} sc1")
            self.exec_all()

    def loader(self, fn):
        lab = self.L("ld")
        self.if_wave(LOADER, LOADER + 1, lab)
        fn()
        self.a.label(lab)

    def scalar_touch(self, wave):
        a = self.a
        lab = self.L("stch")
        self.if_wave(wave, wave + 1, lab)
        for k, (ptr, mul_h, mul_j) in enumerate(((pWO, 245760, 160), (pWG, 96, 245760), (pWU, 96, 245760), (pWD, 61440, 160), (pOUT, 0, 160))):
            a.I("s_mul_i32", s(sT0), s(sH), mul_h)
            a.I("s_mul_i32", s(sT1), s(sJ), mul_j)
            a.I("s_add_u32", s(sT0), s(sT0), s(sT1))
            a.I("s_and_b32", s(sT0), s(sT0), "0xfffffffc")
            a.I("s_load_dword", s(96 + k), s(ptr, 2), s(sT0))
        a.label(lab)

    def warmups(self):
        a = self.a
        if not (self.touch or self.codepf):
            return
        lab = self.L("wup")
        self.if_wave(6, 7, lab)
        R = vWT + 16
        if self.touch:
            a.I("v_mov_b32", v(R + 7), 0)
            self.exi(1)
            for k, (ptr, mul_h, mul_j) in enumerate(((pWO, 245760, 160), (pWG, 96, 245760), (pWU, 96, 245760), (pWD, 61440, 160), (pOUT, 0, 160))):
                a.I("s_mul_i32", s(sT0), s(sH), mul_h)
                a.I("s_mul_i32", s(sT1), s(sJ), mul_j)
                a.I("s_add_u32", s(sT0), s(sT0), s(sT1))
                self.srd(SRD_W, ptr, sT0, (7864320, 1966080, 1966080, 1966080, 1280)[k])
                a.I("buffer_load_ushort", v(R + k), v(R + 7), s(SRD_W, 4), 0, mods="offen")
            self.exec_all()
        if self.codepf:
            AD = vT + 34
            a.I("s_getpc_b64", s(sT0, 2))
            a.I("s_and_b32", s(sT0), s(sT0), "0xffffff00")
            a.I("v_lshlrev_b32", v(AD + 2), 4, v(vL))
            a.I("v_mov_b32", v(AD + 1), s(sT1))
            a.I("v_add_co_u32", v(AD), "vcc", s(sT0), v(AD + 2))
            a.I("v_addc_co_u32", v(AD + 1), "vcc", 0, v(AD + 1), "vcc")
            for k in range(self.codepf):
                a.I("global_load_dwordx4", v(R + 8 - 8, 4), v(AD, 2), "off")
                if k + 1 < self.codepf:
                    a.I("v_add_co_u32", v(AD), "vcc", 1024, v(AD))
                    a.I("v_addc_co_u32", v(AD + 1), "vcc", 0, v(AD + 1), "vcc")
        a.label(lab)

    def layer1_load(self):
        a = self.a
        B = vT
        self.x_cols()
        a.I("buffer_load_ushort", v(vXR), v(vT + 30), s(SRD_X, 4), 0, mods="offen")
        self.warmups()
        self.setup2()
        T = vT + 44
        self.tr_base(T, 384, swz=True)
        la = self.L("l1w")
        self.if_wave(0, 4, la)
        a.wait(vm=7)
        self.stamp("wq_ok")
        a.label(la)
        a.wait(lgkm=0)
        a.I("s_add_u32", s(sTag), s(sTag), 1)
        a.I("s_barrier")
        self.stamp("Ba")
        if self.stouch == 2:
            self.scalar_touch(6)
        self.loader(lambda: (a.I("s_setprio", 3), self.kv_dma(SRD_K, (2, 3), 1)))
        self.stamp("kb_issued")
        l7 = self.L("l17s")
        self.if_wave(7, 8, l7)
        a.wait(vm=1)
        self.arrive()
        self.stats0_publish(vT + 40)
        a.label(l7)
        la = self.L("l1q")
        self.if_wave(0, 4, la)
        for k in range(3):
            a.I("s_mul_i32", s(sT0), s(sW), 3)
            a.I("s_add_u32", s(sT0), s(sT0), k)
            a.I("s_and_b32", s(sT1), s(sT0), 3)
            a.I("s_lshl_b32", s(sT1), s(sT1), 5)
            a.I("s_lshr_b32", s(sT2), s(sT0), 2)
            a.I("s_lshl_b32", s(sT2), s(sT2), 7)
            a.I("v_xor_b32", v(T + 3), s(sT1), v(T))
            a.I("v_add_u32", v(T + 3), s(sT2), v(T + 3))
            for st in range(3):
                for p in range(2):
                    if st == 2 and p == 1:
                        continue
                    a.I("ds_read_b64_tr_b16", v(vWQ + 12 * k + 4 * st + 2 * p, 2), v(T + 3), mods=f"offset:{LA + 384 * (32 * st + 16 * p)}")
            a.I("v_mov_b32", v(vWQ + 12 * k + 10), 0)
            a.I("v_mov_b32", v(vWQ + 12 * k + 11), 0)
        for i in range(10):
            a.I("v_mov_b32", v(B + i), v(vXF + i))
        self.mask(sT0, 0x0002000200020002)
        a.I("s_mov_b64", "exec", s(sT0, 2))
        for i in range(10):
            a.I("v_mov_b32", v(B + i), "0x3f803f80")
        self.exec_all()
        a.I("v_mov_b32", v(B + 10), 0)
        a.I("v_mov_b32", v(B + 11), 0)
        a.wait(lgkm=0)
        self.q_mfma(publish=False)
        self.q0_publish()
        self.stamp("q_pub0")
        a.label(la)
        self.k_addr()
        self.wait_by_wave({0: 7, 1: 7, 2: 7, 3: 7, 4: 49, 5: 1, 6: 1 + (5 if self.touch else 0) + self.codepf, 7: 63})
        self.stamp("ka_landed")
        self.k_frags(0)
        a.wait(lgkm=0)
        a.I("s_barrier")
        if self.stouch == 1:
            self.scalar_touch(6)
        self.loader(lambda: (self.kv_dma(SRD_V, (0, 1), 0), a.wait(vm=48)))
        if self.wo_early:
            lw = self.L("wo5")
            self.if_wave(5, 6, lw)
            self.wo_dma()
            a.label(lw)
        l_s = self.L("qg0s")
        self.if_wave(0, 3, l_s)
        self.delay("q0")
        self.qg0_issue()
        self.stamp("qg_iss0")
        a.label(l_s)
        a.I("s_barrier")
        self.stamp("Bc1")
        a.I("v_lshlrev_b32", v(vXR), 16, v(vXR))
        self.k_frags(1)
        a.wait(lgkm=0)
        self.handshake_issue()
        a.I("s_barrier")
        self.loader(lambda: (self.kv_dma(SRD_V, (2, 3), 1), a.wait(vm=48)))
        a.I("s_barrier")
        self.stamp("Be")
        if self.warm:
            lw = self.L("warm")
            self.if_wave(6, 7, lw)
            a.I("v_lshlrev_b32", v(vT + 8), 4, v(vL))
            a.I("v_add_u32", v(vT + 8), s(sOwn), v(vT + 8))
            for k in range(CLRN):
                a.I("s_mov_b32", s(sT2), CLR0 + 1024 * k)
                a.I("buffer_load_dwordx4", v(vWT + 4 * k, 4), v(vT + 8), s(SRD_WS, 4), s(sT2), mods="offen sc1")
            a.label(lw)
        T = self.v_frags(0, vT + 44)
        self.v_frag_reads(T, 0)

    def mask(self, m, val):
        self.a.I("s_mov_b32", s(m), hex(val & 0xffffffff))
        self.a.I("s_mov_b32", s(m + 1), hex(val >> 32))

    def setup2(self):
        a = self.a
        T = vT + 24
        self.mask(mN0, 0x0001000100010001)
        self.mask(mN01, 0x0003000300030003)
        self.mask(mQ0, 0x1111111111111111)
        self.mask(mY, 0x0011001100110011)
        self.mask(m63, 1 << 63)
        self.set_gp_mask()
        for i in range(8):
            a.I("v_mov_b32", v(vPA + i), 0)
        a.I("v_bfe_u32", v(T), v(vN), 2, 1)
        a.I("v_mov_b32", v(vIDX), "0x44444444")
        a.I("v_mov_b32", v(T + 1), "0xeeeeeeee")
        a.I("v_cmp_eq_u32", "vcc", 1, v(T))
        a.I("v_cndmask_b32", v(vIDX), v(vIDX), v(T + 1), "vcc")
        if self.stamps:
            a.I("v_mov_b32", v(vDBG), 0)
        a.I("v_lshlrev_b32", v(T), 4, v(vG))
        a.I("v_add_u32", v(vXB), XB, v(T))
        a.I("v_add_u32", v(vHB), HBL, v(T))
        a.I("v_add_u32", v(T + 1), ONES, v(T))
        a.I("v_cmp_eq_u32", "vcc", 1, v(vN))
        a.I("v_cndmask_b32", v(vXB), v(vXB), v(T + 1), "vcc")
        a.I("s_mul_i32", s(sT0), s(sW), 192)
        a.I("s_add_u32", s(sT0), s(sT0), s(sOwn))
        a.I("v_lshlrev_b32", v(T), 4, v(vG))
        a.I("v_mul_u32_u24", v(T + 1), 768, v(vN))
        a.I("v_add3_u32", v(vQPUB), v(T), v(T + 1), s(sT0))
        a.I("s_lshl_b32", s(sT0), s(sW), 6)
        a.I("s_add_u32", s(sT0), s(sT0), s(sOwn))
        a.I("v_mul_u32_u24", v(T + 1), 384, v(vN))
        a.I("v_add3_u32", v(vGPUB), v(T), v(T + 1), s(sT0))
        a.I("v_bfe_u32", v(T + 1), v(vN), 1, 1)
        a.I("v_mov_b32", v(vIDQ), "0x44444444")
        a.I("v_mov_b32", v(T + 2), "0xeeeeeeee")
        a.I("v_cmp_eq_u32", "vcc", 1, v(T + 1))
        a.I("v_cndmask_b32", v(vIDQ), v(vIDQ), v(T + 2), "vcc")
        a.I("v_mul_u32_u24", v(vQA), 192, v(T + 1))
        a.I("v_and_b32", v(T + 1), 1, v(vN))
        a.I("v_lshl_add_u32", v(vQA), v(T + 1), 5, v(vQA))
        a.I("v_and_b32", v(T + 1), 1, v(vG))
        a.I("v_lshl_add_u32", v(vQA), v(T + 1), 4, v(vQA))
        a.I("v_add_u32", v(vQA), QBL, v(vQA))
        a.I("v_lshrrev_b32", v(T + 1), 1, v(vG))
        a.I("v_lshrrev_b32", v(T + 2), 2, v(vN))
        for i in range(6):
            (tX, lX), (tY, lY) = divmod(2 * i, 3), divmod(2 * i + 1, 3)
            a.I("v_mul_i32_i24", v(T + 3), 64 * (lY - lX), v(T + 1))
            a.I("v_add3_u32", v(vQAD + i), v(T + 3), v(vQA), 64 * lX) if 64 * lX <= 64 else (a.I("v_add_u32", v(T + 3), 64 * lX, v(T + 3)), a.I("v_add_u32", v(vQAD + i), v(T + 3), v(vQA)))
            if tY != tX:
                a.I("v_add_u32", v(T + 3), tX, v(T + 1))
            else:
                a.I("v_mov_b32", v(T + 3), tX)
            a.I("v_cmp_eq_u32", "vcc", v(T + 3), v(T + 2))
            a.I("v_mov_b32", v(T + 4), ZRO)
            a.I("v_cndmask_b32", v(vQAD + i), v(T + 4), v(vQAD + i), "vcc")
        a.I("s_mul_i32", s(sT0), s(sW), 12288)
        a.I("s_add_u32", s(sT0), s(sT0), LB)
        a.I("v_lshlrev_b32", v(T), 2, v(vL))
        a.I("v_add_u32", v(vOAC), s(sT0), v(T))
        a.I("s_lshl_b32", s(sT0), s(sW), 8)
        a.I("s_add_u32", s(sT0), s(sT0), LB)
        a.I("v_add_u32", v(vORD), s(sT0), v(T))
        a.I("v_add_u32", v(vORD + 1), 12288 * 5, v(vORD))
        a.I("s_lshl_b32", s(sT0), s(sW), 2)
        a.I("s_add_u32", s(sT0), s(sT0), MXL)
        a.I("v_mov_b32", v(vMXW), s(sT0))
        a.I("s_min_u32", s(sT1), s(sW), 4)
        a.I("s_mul_i32", s(sT0), s(sJ), 10240)
        a.I("s_lshl_b32", s(sT2), s(sT1), 11)
        a.I("s_add_u32", s(sT0), s(sT0), s(sT2))
        a.I("s_add_u32", s(sT0), s(sT0), hex(YBASE))
        a.I("v_lshlrev_b32", v(T), 6, v(vN))
        a.I("v_lshl_add_u32", v(T), v(vG), 4, v(T))
        a.I("v_add_u32", v(vYG), s(sT0), v(T))
        a.I("s_lshl_b32", s(sT2), s(sH), 6)
        a.I("s_add_u32", s(sT0), s(sT0), s(sT2))
        a.I("v_lshlrev_b32", v(T), 4, v(vG))
        a.I("v_add_u32", v(vDP), s(sT0), v(T))
        a.I("v_lshrrev_b32", v(T + 1), 2, v(vN))
        a.I("v_lshl_add_u32", v(vYP), v(T + 1), 3, v(vDP))
        a.I("s_lshl_b32", s(sT0), s(sW), 8)
        a.I("s_add_u32", s(sT0), s(sT0), s(sG8))
        a.I("v_lshlrev_b32", v(T), 13, v(vG))
        a.I("v_lshl_add_u32", v(T), v(vN), 4, v(T))
        a.I("v_add_u32", v(vQG), s(sT0), v(T))
        a.I("v_and_b32", v(T), 7, v(vL))
        a.I("v_lshlrev_b32", v(T), 13, v(T))
        a.I("v_add_u32", v(vSG), s(sG8), v(T))
        a.I("v_lshrrev_b32", v(T), 3, v(vL))
        a.I("v_lshlrev_b32", v(T + 1), 13, v(T))
        a.I("v_add_u32", v(vOML), s(sG8), v(T + 1))
        a.I("s_sub_u32", s(sT0), s(sW), 5)
        a.I("s_lshl_b32", s(sT0), s(sT0), 3)
        a.I("v_and_b32", v(T + 2), 7, v(vL))
        a.I("v_add_u32", v(T + 2), s(sT0), v(T + 2))
        a.I("v_lshl_add_u32", v(vOG), v(T + 2), 4, v(vOML))
        a.I("v_mul_u32_u24", v(T + 1), 400, v(T))
        a.I("v_lshl_add_u32", v(T + 1), v(T + 2), 4, v(T + 1))
        a.I("v_add_u32", v(vOSW), OST, v(T + 1))
        a.I("v_and_b32", v(T), 7, v(vN))
        a.I("v_mul_u32_u24", v(T + 1), 400, v(T))
        a.I("v_lshl_add_u32", v(T + 1), v(vG), 4, v(T + 1))
        a.I("v_add_u32", v(vOSR), OST, v(T + 1))
        a.I("v_lshlrev_b32", v(T), 3, v(T))
        a.I("v_add_u32", v(vMLR), MLS, v(T))
        a.I("s_sub_u32", s(sT0), s(sW), 6)
        a.I("s_lshl_b32", s(sT0), s(sT0), 3)
        a.I("v_and_b32", v(T), 7, v(vL))
        a.I("v_add_u32", v(T), s(sT0), v(T))
        a.I("v_min_u32", v(T), 11, v(T))
        a.I("v_lshrrev_b32", v(T + 1), 3, v(vL))
        a.I("v_lshlrev_b32", v(T + 1), 13, v(T + 1))
        a.I("v_lshl_add_u32", v(T + 1), v(T), 4, v(T + 1))
        a.I("v_add_u32", v(vGG), s(sG8), v(T + 1))
        self.sigma_row(T + 2, T + 3)
        a.I("v_lshl_add_u32", v(T), v(T), 2, v(T + 2))
        self.perm_pos(vHW, T, T + 3)
        a.I("v_add_u32", v(vHW), HBL, v(vHW))
        a.I("s_lshl_b32", s(sT0), s(sW), 6)
        a.I("s_add_u32", s(sT0), s(sT0), QBL)
        a.I("v_lshl_add_u32", v(vQW), v(vN), 2, s(sT0))
        a.I("v_bfe_u32", v(T), v(T + 2), 1, 1)
        a.I("v_mul_u32_u24", v(T), 192, v(T))
        a.I("v_add_u32", v(vQW), v(vQW), v(T))
        a.I("v_and_b32", v(T), 1, v(T + 2))
        a.I("v_lshl_add_u32", v(vQW), v(T), 1, v(vQW))
        a.I("v_lshrrev_b32", v(T), 5, v(vL))
        a.I("v_lshlrev_b32", v(T), 6, v(T))
        a.I("v_bfe_u32", v(T + 1), v(vL), 2, 2)
        a.I("v_lshl_add_u32", v(T), v(T + 1), 4, v(T))
        a.I("v_bfe_u32", v(T + 1), v(vL), 4, 1)
        a.I("v_lshl_add_u32", v(T), v(T + 1), 3, v(T))
        a.I("s_lshl_b32", s(sT0), s(sW), 7)
        a.I("s_add_u32", s(sT0), s(sT0), s(sOwn))
        a.I("v_add_u32", v(vOPUB), s(sT0), v(T))
        lab = self.L("c0")
        self.if_wave(0, 1, lab)
        a.I("v_lshlrev_b32", v(T), 2, v(vL))
        a.I("v_add_u32", v(T), ONES, v(T))
        a.I("v_mov_b32", v(T + 1), "0x3f803f80")
        a.I("s_mov_b32", s(sT0), -1)
        a.I("s_mov_b32", s(sT1), "0xffff")
        a.I("s_mov_b64", "exec", s(sT0, 2))
        a.I("ds_write_b32", v(T), v(T + 1))
        a.I("v_mov_b32", v(T + 1), 0)
        a.I("ds_write_b32", v(T), v(T + 1), mods=f"offset:{HBL - ONES}")
        a.I("ds_write_b32", v(T), v(T + 1), mods=f"offset:{ZRO - ONES}")
        a.I("v_subrev_u32", v(T), 192, v(T))
        a.I("ds_write_b32", v(T), v(T + 1))
        self.exec_all()
        a.label(lab)

    def x_write(self, xin):
        a = self.a
        t = vT + 12
        a.I("v_cvt_pk_bf16_f32", v(t), v(xin), v(xin))
        a.I("ds_write_b16", v(vXW), v(t))
        a.I("v_lshlrev_b32", v(vXR), 16, v(t))

    def read_xfrags(self, B):
        for st in range(3):
            self.a.I("ds_read_b128", v(B + 4 * st, 4), v(vXB), mods=f"offset:{64 * st}")

    def stats_read(self, R):
        a = self.a
        a.I("v_mov_b32", v(R), 0)
        a.I("v_lshlrev_b32", v(R + 1), 2, v(vL))
        a.I("v_add_u32", v(R + 1), XB, v(R + 1))
        a.I("s_mov_b32", s(sT0), -1)
        a.I("s_mov_b32", s(sT1), "0xffff")
        a.I("s_mov_b64", "exec", s(sT0, 2))
        a.I("ds_read_b32", v(R), v(R + 1))
        self.exec_all()

    def stats_publish(self, R, off_s, imm):
        a = self.a
        lo, hi = R + 2, R + 3
        a.I("v_lshlrev_b32", v(lo), 16, v(R))
        a.I("v_and_b32", v(hi), "0xffff0000", v(R))
        a.I("v_add_f32", v(R), v(lo), v(hi))
        a.I("v_mul_f32", v(R + 1), v(lo), v(lo))
        a.I("v_fmac_f32", v(R + 1), v(hi), v(hi))
        for ctrl, row in (("quad_perm:[1,0,3,2]", 0xf), ("quad_perm:[2,3,0,1]", 0xf), ("row_half_mirror", 0xf), ("row_mirror", 0xf),
                          ("row_bcast:15", 0xa), ("row_bcast:31", 0xc)):
            self.dpp("v_add_f32", R, R, R, ctrl, row=row)
            self.dpp("v_add_f32", R + 1, R + 1, R + 1, ctrl, row=row)
        a.I("v_mov_b32", v(lo), s(sOwn))
        self.ex(m63)
        self.store8("buffer_store_dwordx2", v(R, 2), v(lo), s(off_s), mods=f"offset:{imm}")
        self.exec_all()

    def q_mfma(self, publish=True):
        a = self.a
        B, D = vT, vT + 16
        for k in range(3):
            for st in range(3):
                a.I("v_mfma_f32_16x16x32_bf16", v(D + 4 * k, 4), v(vWQ + 12 * k + 4 * st, 4), v(B + 4 * st, 4), 0 if st == 0 else v(D + 4 * k, 4))
        if not publish:
            a.nop(8)
            return
        self.ex(mN0)
        for k in range(3):
            self.store8("buffer_store_dwordx4", v(D + 4 * k, 4), v(vQPUB), s(sPQ), mods=f"offset:{64 * k}" if k else "")
        self.exec_all()

    def q_phase1(self):
        a = self.a
        B, R = vT, vT + 40
        l7, le = self.L("q7"), self.L("qe")
        self.if_wave(0, 4, l7)
        self.read_xfrags(B)
        a.wait(lgkm=0)
        self.q_mfma()
        a.I("s_branch", le)
        a.label(l7)
        self.if_wave(7, 8, le)
        self.stats_read(R)
        a.wait(lgkm=0)
        self.stats_publish(R, sPQ, 768)
        a.label(le)

    def pub_mask(self):
        a = self.a
        a.I("s_cmp_eq_u32", s(sP), 0)
        a.I("s_cselect_b64", s(sT4, 2), s(mN01, 2), s(mN0, 2))

    def v_dma(self, part):
        a = self.a
        a.I("s_mul_i32", s(sT2), s(sW), 12288)
        a.I("s_add_u32", s(sT2), s(sT2), LB + 6144 * part)
        for grp in range(2):
            a.I("s_mov_b32", s(sT3), 6144 * part + 3072 * grp)
            for k in range(3):
                a.I("s_add_u32", "m0", s(sT2), 3072 * grp + 1024 * k)
                a.I("buffer_load_dwordx4", v(vVOF + k), s(SRD_V, 4), s(sT3), mods="offen" + self.nt_kv + " lds")

    HS = [sT0, sT1, sT2, sT3, sT4, sT5, sT6, sT7]

    def handshake_issue(self):
        a = self.a
        lab = self.L("hsi")
        self.if_wave(7, 8, lab)
        a.I("v_and_b32", v(vWT + 1), 7, v(vL))
        a.I("v_lshlrev_b32", v(vWT + 1), 5, v(vWT + 1))
        a.I("buffer_load_dword", v(vWT), v(vWT + 1), s(SRD_DBG, 4), 0, mods="offen sc1")
        a.label(lab)

    def handshake(self):
        a = self.a
        l_ok, l_loop, l_skip = self.L("hs_ok"), self.L("hs_loop"), self.L("hs_skip")
        self.if_wave(7, 8, l_skip)
        a.label(l_loop)
        a.wait(vm=0)
        self.bfly8("v_add_u32", [vWT])
        a.I("v_readfirstlane_b32", s(sT2), v(vWT))
        a.I("s_cmp_ge_u32", s(sT2), 256)
        a.I("s_cbranch_scc1", l_ok)
        a.I("s_sleep", 16)
        a.I("v_and_b32", v(vWT + 1), 7, v(vL))
        a.I("v_lshlrev_b32", v(vWT + 1), 5, v(vWT + 1))
        a.I("buffer_load_dword", v(vWT), v(vWT + 1), s(SRD_DBG, 4), 0, mods="offen sc1")
        self.retry(l_loop)
        a.label(l_ok)
        self.stamp("hs_done")
        a.label(l_skip)

    def qg0_issue(self):
        a = self.a
        T = vT + 36
        a.I("s_lshl_b32", s(sT0), s(sW), 9)
        a.I("s_add_u32", s(sT0), s(sT0), s(sG8))
        a.I("v_lshlrev_b32", v(T), 13, v(vG))
        a.I("v_lshl_add_u32", v(T), v(vN), 5, v(T))
        a.I("v_add_u32", v(T), s(sT0), v(T))
        a.I("s_mov_b32", s(sT1), 32768)
        for pp in range(2):
            so = s(sT1) if pp else 0
            for hh in range(2):
                a.I("buffer_load_dwordx4", v(vT + 8 * pp + 4 * hh, 4), v(T), s(SRD_WS, 4), so, mods=f"offen offset:{16 * hh} sc1")
                a.I("buffer_load_dwordx4", v(vT + 16 + 8 * pp + 4 * hh, 4), v(T), s(SRD_WS, 4), so, mods=f"offen offset:{1536 + 16 * hh} sc1")
        a.I("buffer_load_dwordx4", v(vT + 32, 4), v(vSG), s(SRD_WS, 4), 0, mods="offen offset:3072 sc1")
        a.I("buffer_load_dwordx2", v(vT + 38, 2), v(vSG), s(SRD_WS, 4), 0, mods="offen offset:3088 sc1")

    def qg0_finish(self, l_retry):
        a = self.a
        chk = vT + 37
        tags = [vT + 2 * i + 1 for i in range(16)] + [vT + 33, vT + 35, vT + 39]
        a.I("v_xor_b32", v(chk), s(sTag), v(tags[0]))
        for t in tags[1:]:
            a.I("v_xor_b32", v(t), s(sTag), v(t))
            a.I("v_or_b32", v(chk), v(chk), v(t))
        a.I("v_cmp_ne_u32", "vcc", 0, v(chk))
        a.I("s_cmp_lg_u64", "vcc", 0)
        a.I("s_cbranch_scc1", l_retry)
        a.I("v_readfirstlane_b32", s(sT0), v(vT + 38))
        a.I("v_cmp_ne_u32", "vcc", s(sT0), v(vT + 38))
        a.I("s_cmp_eq_u64", "vcc", 0)
        a.I("s_cselect_b32", s(sT0), 0 if self.force_slow else 1, 0)
        a.I("v_mov_b32", v(vT + 36), FSL)
        a.I("v_mov_b32", v(vT + 37), s(sT0))
        a.I("ds_write_b32", v(vT + 36), v(vT + 37))
        A, CA, S = vT + 40, vT + 44, vT + 8
        for i in range(4):
            a.I("v_add_f32", v(A + i), v(vT + 2 * i), v(vT + 8 + 2 * i))
            a.I("v_add_f32", v(CA + i), v(vT + 16 + 2 * i), v(vT + 24 + 2 * i))
        a.I("v_mov_b32", v(S), v(vT + 32))
        a.I("v_mov_b32", v(S + 1), v(vT + 34))
        q, mean, rstd, t = vT + 21, vT + 22, vT + 23, vT + 24
        self.rr4_a(CA); self.rr4_b(CA); self.rr4_c(CA); self.rr4_d(CA, vCQ)
        self.rr4_a(A); self.rr4_b(A); self.rr4_c(A); self.rr4_d(A, q)
        self.stats_chain(S, mean, rstd, t)
        a.I("v_fma_f32", v(q), f"-v{mean}", v(vCQ), v(q))
        a.I("v_mul_f32", v(q), hex(f2u(QSCALE)), v(q))
        a.I("v_mul_f32", v(q), v(q), v(rstd))
        a.I("v_cvt_pk_bf16_f32", v(q), v(q), v(q))
        a.I("ds_write_b16", v(vQW), v(q))

    def qg_issue(self, pair):
        a = self.a
        A, Bq, S, CA, CB = vT, vT + 4, vT + 8, vT + 12, vT + 16
        a.I("buffer_load_dwordx4", v(A, 4), v(vQG), s(SRD_WS, 4), s(sPQ), mods="offen sc1")
        a.I("s_add_u32", s(sT0), s(sPQ), 32768)
        a.I("buffer_load_dwordx4", v(Bq, 4), v(vQG), s(SRD_WS, 4), s(sT0), mods="offen sc1")
        a.I("buffer_load_dwordx2", v(S, 2), v(vSG), s(SRD_WS, 4), s(sPQ), mods="offen offset:768 sc1")
        if pair == 0:
            a.I("buffer_load_dwordx4", v(CA, 4), v(vQG), s(SRD_WS, 4), s(sPQ), mods="offen offset:768 sc1")
            a.I("buffer_load_dwordx4", v(CB, 4), v(vQG), s(SRD_WS, 4), s(sT0), mods="offen offset:768 sc1")

    def stats_chain(self, S, mean, rstd, t):
        a = self.a
        self.bfly8("v_add_f32", [S, S + 1])
        a.I("v_mul_f32", v(mean), hex(f2u(1.0 / 640)), v(S))
        a.I("v_mul_f32", v(t), hex(f2u(1.0 / 640)), v(S + 1))
        a.I("v_fma_f32", v(t), f"-v{mean}", v(mean), v(t))
        a.I("v_max_f32", v(t), 0, v(t))
        a.I("v_add_f32", v(t), hex(f2u(1e-5)), v(t))
        a.I("v_rsq_f32", v(rstd), v(t))

    def qg_finish(self, pair, l_retry):
        a = self.a
        A, Bq, S, CA, CB = vT, vT + 4, vT + 8, vT + 12, vT + 16
        chk, q, mean, rstd, t = vT + 20, vT + 21, vT + 22, vT + 23, vT + 24
        regs = list(range(A, A + 10)) + (list(range(CA, CA + 8)) if pair == 0 else [])
        self.maxtree(regs, chk)
        for i in range(4):
            a.I("v_add_f32", v(A + i), v(A + i), v(Bq + i))
        self.branch_if_invalid(chk, l_retry)
        if pair == 0:
            for i in range(4):
                a.I("v_add_f32", v(CA + i), v(CA + i), v(CB + i))
            self.rr4_a(CA); self.rr4_b(CA); self.rr4_c(CA); self.rr4_d(CA, vCQ)
        self.rr4_a(A)
        self.dpp("v_add_f32", S, S, S, self.BF8[0]); self.dpp("v_add_f32", S + 1, S + 1, S + 1, self.BF8[0])
        self.rr4_b(A)
        self.dpp("v_add_f32", S, S, S, self.BF8[1]); self.dpp("v_add_f32", S + 1, S + 1, S + 1, self.BF8[1])
        self.rr4_c(A)
        self.dpp("v_add_f32", S, S, S, self.BF8[2]); self.dpp("v_add_f32", S + 1, S + 1, S + 1, self.BF8[2])
        self.rr4_d(A, q)
        a.I("v_mul_f32", v(mean), hex(f2u(1.0 / 640)), v(S))
        a.I("v_mul_f32", v(t), hex(f2u(1.0 / 640)), v(S + 1))
        a.I("v_fma_f32", v(t), f"-v{mean}", v(mean), v(t))
        a.I("v_fma_f32", v(q), f"-v{mean}", v(vCQ), v(q))
        a.I("v_max_f32", v(t), 0, v(t))
        a.I("v_add_f32", v(t), hex(f2u(1e-5)), v(t))
        a.I("v_rsq_f32", v(rstd), v(t))
        a.I("v_mul_f32", v(q), hex(f2u(QSCALE)), v(q))
        a.I("v_mul_f32", v(q), v(q), v(rstd))
        a.I("v_cvt_pk_bf16_f32", v(q), v(q), v(q))
        a.I("ds_write_b16", v(vQW), v(q))

    def q_gather0_finish(self, l_join):
        a = self.a
        l_w, l_chk, l_r = [self.L(x) for x in ("qg0w", "qg0c", "qg0r")]
        self.if_wave(0, 3, l_join)
        a.I("s_branch", l_w)
        a.label(l_r)
        self.qg0_issue()
        self.retry(l_w)
        a.label(l_w)
        a.wait(vm=0)
        self.qg0_finish(l_r)
        self.stamp("qg_ok0")
        a.I("s_branch", l_join)

    def q_gather1(self, l_join):
        a = self.a
        l_w, l_r = self.L("qg1w"), self.L("qg1r")
        self.if_wave(0, 3, l_join)
        self.delay("q")
        self.qg_issue(1)
        a.label(l_w)
        a.wait(vm=0)
        self.qg_finish(1, l_r)
        self.stamp("qg_ok1")
        self.tail_retry.append((l_r, lambda: self.qg_issue(1), l_w))

    def rowblock_dma(self, idx_s, ncol, rowbytes, mul, lds_base, clampP=None, T=vT + 40):
        a = self.a
        a.I("s_lshl_b32", s(sT4), s(idx_s), 6)
        a.I("v_add_u32", v(T), s(sT4), v(vL))
        if clampP is not None:
            a.I("v_min_u32", v(T), clampP, v(T))
        a.I("v_mul_u32_u24", v(T + 1), mul, v(T))
        a.I("v_lshrrev_b32", v(T + 1), 16, v(T + 1))
        a.I("v_mul_u32_u24", v(T + 2), ncol, v(T + 1))
        a.I("v_sub_u32", v(T + 2), v(T), v(T + 2))
        a.I("v_mul_u32_u24", v(T + 1), rowbytes, v(T + 1))
        a.I("v_lshl_add_u32", v(T + 3), v(T + 2), 4, v(T + 1))
        a.I("s_lshl_b32", s(sT4), s(idx_s), 10)
        a.I("s_add_u32", "m0", s(sT4), lds_base)
        a.I("buffer_load_dwordx4", v(T + 3), s(SRD_W, 4), 0, mods="offen" + self.nt_w + " lds")

    def wo_dma(self, T=vT + 32):
        a = self.a
        a.I("s_mul_i32", s(sT2), s(sH), 245760)
        a.I("s_add_u32", s(sT2), s(sT2), s(sJ160))
        self.srd(SRD_W, pWO, sT2, 7864320)
        for k in range(5):
            a.I("v_add_u32", v(T + 5), 64 * k, v(vL))
            a.I("v_mul_u32_u24", v(T + 6), 6554, v(T + 5))
            a.I("v_lshrrev_b32", v(T + 6), 16, v(T + 6))
            a.I("v_mul_u32_u24", v(T + 7), 10, v(T + 6))
            a.I("v_sub_u32", v(T + 7), v(T + 5), v(T + 7))
            a.I("v_mul_u32_u24", v(T + 6), 1280, v(T + 6))
            a.I("v_lshl_add_u32", v(T + k), v(T + 7), 4, v(T + 6))
        lab = self.L("wo")
        a.I("s_mov_b32", s(sT2), LC)
        a.I("s_mov_b32", s(sT3), 0)
        a.label(lab)
        for k in range(5):
            a.I("s_add_u32", "m0", s(sT2), 1024 * k)
            a.I("buffer_load_dwordx4", v(T + k), s(SRD_W, 4), s(sT3), mods="offen" + self.nt_w + " lds")
        a.I("s_add_u32", s(sT2), s(sT2), 5120)
        a.I("s_add_u32", s(sT3), s(sT3), 32 * 1280)
        a.I("s_cmp_lt_u32", s(sT2), LC + 30720)
        a.I("s_cbranch_scc1", lab)

    def gud_dma(self):
        a = self.a
        l6, l7, le = self.L("g6"), self.L("g7"), self.L("ge")
        a.I("s_mul_i32", s(sT2), s(sJ), 245760)
        a.I("s_mul_i32", s(sT3), s(sH), 96)
        a.I("s_add_u32", s(sT2), s(sT2), s(sT3))
        a.I("s_cmp_eq_u32", s(sW), 6)
        a.I("s_cbranch_scc1", l6)
        a.I("s_cmp_eq_u32", s(sW), 7)
        a.I("s_cbranch_scc1", l7)
        self.srd(SRD_W, pWG, sT2, 1966080)
        for k in range(8):
            a.I("s_mov_b32", s(sT0), k)
            self.rowblock_dma(sT0, 6, 3072, 10923, LA, clampP=479)
        a.I("s_branch", le)
        a.label(l6)
        self.srd(SRD_W, pWU, sT2, 1966080)
        for k in range(8):
            a.I("s_mov_b32", s(sT0), k)
            self.rowblock_dma(sT0, 6, 3072, 10923, LA + 8192, clampP=479)
        a.I("s_branch", le)
        a.label(l7)
        a.I("s_mul_i32", s(sT2), s(sH), 61440)
        a.I("s_add_u32", s(sT2), s(sT2), s(sJ160))
        self.srd(SRD_W, pWD, sT2, 1966080)
        for k in range(8):
            a.I("s_mov_b32", s(sT0), k)
            self.rowblock_dma(sT0, 10, 1280, 6554, LA + 16384, clampP=479)
        a.label(le)

    def v_frags(self, p, T=vT + 12):
        a = self.a
        a.I("v_bfe_u32", v(T + 1), v(vN), 2, 1)
        a.I("v_lshl_add_u32", v(T + 1), v(vG), 2, v(T + 1))
        a.I("v_mul_u32_u24", v(T), 384, v(T + 1))
        a.I("v_and_b32", v(T + 1), 1, v(vN))
        a.I("v_lshl_add_u32", v(T), v(T + 1), 3, v(T))
        a.I("v_lshrrev_b32", v(T + 1), 3, v(vN))
        a.I("v_bfe_u32", v(T + 2), v(vN), 1, 1)
        a.I("v_lshl_add_u32", v(T + 1), v(T + 1), 1, v(T + 2))
        a.I("v_and_b32", v(T + 2), 1, v(vG))
        a.I("v_lshlrev_b32", v(T + 2), 2, v(T + 2))
        a.I("v_xor_b32", v(T + 1), v(T + 1), v(T + 2))
        a.I("v_lshl_add_u32", v(T), v(T + 1), 4, v(T))
        a.I("s_mul_i32", s(sT0), s(sW), 12288)
        a.I("s_add_u32", s(sT0), s(sT0), LB + 6144 * p)
        a.I("v_add_u32", v(T), s(sT0), v(T))
        a.I("v_xor_b32", v(T + 1), 32, v(T))
        a.I("v_add_u32", v(T + 1), 768, v(T + 1))
        a.I("v_xor_b32", v(T + 2), 64, v(T))
        a.I("v_xor_b32", v(T + 3), 96, v(T))
        a.I("v_add_u32", v(T + 3), 768, v(T + 3))
        return T

    def v_frag_reads(self, T, p):
        for u in range(6):
            for rho in range(2):
                self.a.I("ds_read_b64_tr_b16", v(vV + 8 * u + 4 * p + 2 * rho, 2), v(T + 2 * (u & 1) + rho), mods=f"offset:{128 * (u >> 1)}")

    def attention(self):
        a = self.a
        QA, DQ, S, M, PK, O, Ls, F, X = vT, vT + 24, vT + 28, vT + 29, vT + 30, vT + 32, vT + 44, vT + 45, vT
        for i in range(6):
            a.I("ds_read_b128", v(QA + 4 * i, 4), v(vQAD + i))
        a.I("v_mov_b32", v(S), "0xff800000")
        for i in range(4):
            a.I("v_mov_b32", v(DQ + i), 0)
        for i in range(12):
            a.I("v_mov_b32", v(O + i), 0)
        for i in range(6):
            a.wait(lgkm=5 - i if not self.stamps else 0)
            a.I("v_smfmac_f32_16x16x64_bf16", v(DQ, 4), v(QA + 4 * i, 4), v(vK + 8 * i, 8), v(vIDQ))
        a.I("v_add_f32", v(DQ), v(DQ), v(DQ + 2))
        a.I("v_add_f32", v(DQ + 1), v(DQ + 1), v(DQ + 3))
        a.I("v_add_f32_dpp", v(S), v(DQ), v(DQ + 1), mods="row_ror:8 row_mask:0xf bank_mask:0xc")
        self.stamp("qk_1", 1)
        first = True
        for ctrl, row in (("quad_perm:[1,0,3,2]", 0xf), ("quad_perm:[2,3,0,1]", 0xf), ("row_half_mirror", 0xf), ("row_bcast:15", 0xa), ("row_bcast:31", 0xc)):
            if first:
                self.dpp("v_max_f32", M, S, S, ctrl, row=row)
                first = False
            else:
                self.dpp("v_max_f32", M, M, M, ctrl, row=row)
        a.I("v_readlane_b32", s(sM), v(M), 63)
        a.I("v_subrev_f32", v(S), s(sM), v(S))
        a.I("v_mov_b32", v(F), s(sM))
        a.I("v_exp_f32", v(S), v(S))
        self.exi(1)
        a.I("ds_write_b32", v(vMXW), v(F))
        self.exec_all()
        self.dpp("v_mov_b32", PK, S, None, "row_shl:1")
        a.I("v_cvt_pk_bf16_f32", v(PK), v(S), v(PK))
        a.I("v_mov_b32", v(Ls), v(S))
        lab = self.L("v1")
        self.if_pair0(lab)
        T = self.v_frags(1)
        self.stamp("softmax0")
        if self.wo_early:
            self.loader(lambda: (a.wait(vm=0), a.I("s_setprio", 0)))
        else:
            self.loader(lambda: (self.wo_dma(T=vT + 20), a.wait(vm=30), a.I("s_setprio", 0)))
        a.I("s_barrier")
        self.stamp("v_landed")
        self.v_frag_reads(T, 1)
        a.wait(lgkm=0)
        a.label(lab)
        for var in range(2):
            for i in range(4):
                a.I("v_mov_b32_dpp", v(vPA + 4 * var + i), v(PK), mods=f"row_newbcast:{8 + 2 * i} row_mask:0xf bank_mask:{hex(3 << (2 * var))}")
            for i in range(3):
                a.I("v_smfmac_f32_16x16x64_bf16", v(O + 4 * i, 4), v(vPA + 4 * var, 4), v(vV + 8 * (2 * i + var), 8), v(vIDX))
        self.stamp("pv_iss1", 1)
        a.wait(lgkm=0)
        a.I("s_barrier")
        self.stamp("B4_1", 1)
        a.I("v_mov_b32", v(vT + 46), MXL)
        a.I("ds_read_b128", v(X, 4), v(vT + 46))
        a.I("ds_read_b128", v(X + 4, 4), v(vT + 46), mods="offset:16")
        lab = self.L("ff")
        self.if_pair0(lab)
        a.I("ds_read_b32", v(vT + 47), v(vT + 46), mods=f"offset:{FSL - MXL}")
        a.wait(lgkm=0)
        a.I("v_readfirstlane_b32", s(sFast), v(vT + 47))
        a.label(lab)
        for ctrl, row in (("quad_perm:[1,0,3,2]", 0xf), ("quad_perm:[2,3,0,1]", 0xf), ("row_half_mirror", 0xf), ("row_bcast:15", 0xa), ("row_bcast:31", 0xc)):
            self.dpp("v_add_f32", Ls, Ls, Ls, ctrl, row=row)
        a.wait(lgkm=0)
        a.I("v_max3_f32", v(X), v(X), v(X + 1), v(X + 2))
        a.I("v_max3_f32", v(X + 3), v(X + 3), v(X + 4), v(X + 5))
        a.I("v_max3_f32", v(X), v(X), v(X + 6), v(X + 7))
        a.I("v_max_f32", v(X), v(X), v(X + 3))
        a.I("v_sub_f32", v(F), v(F), v(X))
        a.I("v_exp_f32", v(F), v(F))
        for i in range(3):
            a.I("v_mul_f32", v(O + 4 * i), v(O + 4 * i), v(F))
        a.I("v_mul_f32", v(Ls), v(Ls), v(F))
        self.stamp("pre_add1", 1)
        for i in range(3):
            a.I("ds_write_b32", v(vOAC), v(O + 4 * i), mods=f"offset:{256 * i}")
        self.ex(m63)
        a.I("ds_write_b32", v(vMXW), v(Ls), mods=f"offset:{LSL - MXL}")
        self.exec_all()
        lab = self.L("hs0")
        self.if_pair0(lab)
        self.handshake()
        a.label(lab)
        a.wait(lgkm=0)
        a.I("s_barrier")
        self.stamp("B5_1", 1)
        R = vT
        l_skip, l_ml = self.L("fc"), self.L("ml")
        self.if_wave(0, 3, l_ml)
        for w2 in range(8):
            a.I("ds_read_b32", v(R + w2), v(vORD + (w2 >= 5)), mods=f"offset:{12288 * (w2 if w2 < 5 else w2 - 5)}")
        a.wait(lgkm=0 if self.stamps else 4)
        a.I("v_add_f32", v(R), v(R), v(R + 1))
        a.I("v_add_f32", v(R + 2), v(R + 2), v(R + 3))
        a.wait(lgkm=0)
        a.I("v_add_f32", v(R + 4), v(R + 4), v(R + 5))
        a.I("v_add_f32", v(R + 6), v(R + 6), v(R + 7))
        a.I("v_add_f32", v(R), v(R), v(R + 2))
        a.I("v_add_f32", v(R + 4), v(R + 4), v(R + 6))
        a.I("v_add_f32", v(R), v(R), v(R + 4))
        self.dpp("v_mov_b32", R + 1, R, None, "row_shl:1")
        a.I("v_cvt_pk_bf16_f32", v(R + 2), v(R), v(R + 1))
        self.dpp("v_mov_b32", R + 3, R + 2, None, "row_shl:2")
        a.I("v_min_u32", v(R + 2), "0xfffffffe", v(R + 2))
        a.I("v_min_u32", v(R + 3), "0xfffffffe", v(R + 3))
        self.ex(mQ0)
        self.store8("buffer_store_dwordx2", v(R + 2, 2), v(vOPUB), s(sPO))
        self.exec_all()
        a.I("s_branch", l_skip)
        a.label(l_ml)
        self.if_wave(3, 4, l_skip)
        a.I("v_mov_b32", v(R + 12), LSL)
        a.I("ds_read_b128", v(R + 4, 4), v(R + 12))
        a.I("ds_read_b128", v(R + 8, 4), v(R + 12), mods="offset:16")
        a.I("v_mov_b32", v(R), v(X))
        a.I("v_mov_b32", v(R + 13), s(sOwn))
        a.wait(lgkm=0)
        for i in range(0, 8, 2):
            a.I("v_add_f32", v(R + 4 + i), v(R + 4 + i), v(R + 5 + i))
        a.I("v_add_f32", v(R + 4), v(R + 4), v(R + 6))
        a.I("v_add_f32", v(R + 8), v(R + 8), v(R + 10))
        a.I("v_add_f32", v(R + 1), v(R + 4), v(R + 8))
        self.exi(1)
        self.store8("buffer_store_dwordx2", v(R, 2), v(R + 13), s(sPO), mods="offset:384")
        self.exec_all()
        a.label(l_skip)
        self.stamp("o_pub0", 0)
        self.stamp("o_pub1", 1)

    def wo_frags(self, T=vT + 44):
        a = self.a
        self.tr_base(T, 160)
        a.I("s_lshl_b32", s(sT0), s(sW), 5)
        a.I("s_add_u32", s(sT0), s(sT0), LC)
        a.I("v_add_u32", v(T), s(sT0), v(T))
        for st in range(6):
            for p in range(2):
                a.I("ds_read_b64_tr_b16", v(vWT + 4 * st + 2 * p, 2), v(T), mods=f"offset:{160 * (32 * st + 16 * p)}")

    def og_issue(self):
        a = self.a
        a.I("buffer_load_dwordx4", v(vT, 4), v(vOG), s(SRD_WS, 4), s(sPO), mods="offen sc1")
        a.I("buffer_load_dwordx2", v(vT + 4, 2), v(vOML), s(SRD_WS, 4), s(sPO), mods="offen offset:384 sc1")

    def o_phase(self):
        a = self.a
        B, ML, D = vT, vT + 24, vT + 28
        Mx, W, U = vT + 33, vT + 34, vT + 36
        l_ng, l_w, l_r, l_skip2 = [self.L(x) for x in ("o_ng", "o_w", "o_r", "o_s2")]
        self.if_wave(5, 8, l_ng)
        a.I("v_lshrrev_b32", v(vT + 8), 3, v(vL))
        a.I("v_lshlrev_b32", v(vT + 8), 3, v(vT + 8))
        a.I("v_add_u32", v(vT + 8), MLS, v(vT + 8))
        self.delay("o")
        self.og_issue()
        self.stamp("o_iss1", 1)
        a.label(l_w)
        a.wait(vm=0)
        self.stamp("o_ret1", 1)
        self.maxtree(list(range(vT, vT + 6)), vT + 7)
        self.branch_if_invalid(vT + 7, l_r)
        a.I("ds_write_b128", v(vOSW), v(vT, 4))
        a.I("ds_write_b64", v(vT + 8), v(vT + 4, 2))
        self.stamp("o_ok0", 0)
        self.stamp("o_ok1", 1)
        self.tail_retry.append((l_r, lambda: self.og_issue(), l_w))
        l_pf = self.L("o_pf")
        a.I("s_branch", l_pf)
        a.label(l_ng)
        self.if_pair1(l_pf)
        self.wo_frags()
        a.label(l_pf)
        lab = self.L("o_wl")
        self.if_pair0(lab)
        if not self.wo_early:
            self.loader(lambda: a.wait(vm=0))
        a.label(lab)
        self.log_retries(1)
        a.wait(lgkm=0)
        a.I("s_barrier")
        self.stamp("Bo0", 0)
        self.stamp("Bo1", 1)
        lab, l_x = self.L("o_p0"), self.L("o_x")
        self.if_pair0(lab)
        self.if_wave(5, 8, l_x)
        self.gud_dma()
        a.I("s_branch", l_skip2)
        a.label(l_x)
        self.wo_frags()
        a.label(lab)
        self.if_wave(0, 5, l_skip2)
        for st in range(6):
            a.I("ds_read_b128", v(B + 4 * st, 4), v(vOSR), mods=f"offset:{64 * st}")
        a.I("ds_read_b64", v(ML, 2), v(vMLR))
        a.wait(lgkm=0)
        for st in range(6):
            a.I("v_mfma_f32_16x16x32_bf16", v(D, 4), v(vWT + 4 * st, 4), v(B + 4 * st, 4), 0 if st == 0 else v(D, 4))
            if st == 0:
                self.dpp("v_max_f32", Mx, ML, ML, self.BF8[0])
            if st == 1:
                self.dpp("v_max_f32", Mx, Mx, Mx, self.BF8[1])
            if st == 2:
                self.dpp("v_max_f32", Mx, Mx, Mx, self.BF8[2])
            if st == 3:
                a.I("v_sub_f32", v(W), v(ML), v(Mx))
            if st == 4:
                a.I("v_exp_f32", v(W), v(W))
        a.I("v_mul_f32", v(Mx), v(W), v(ML + 1))
        self.bfly8("v_add_f32", [Mx])
        a.I("v_rcp_f32", v(Mx), v(Mx))
        a.I("v_mul_f32", v(W), v(W), v(Mx))
        for i in range(4):
            a.I("v_mul_f32", v(D + i), v(D + i), v(W))
        a.I("v_add_f32_dpp", v(U), v(D), v(D), mods="row_shl:4 row_mask:0xf bank_mask:0x5")
        a.I("v_add_f32_dpp", v(U + 1), v(D + 1), v(D + 1), mods="row_shl:4 row_mask:0xf bank_mask:0x5")
        a.I("v_add_f32_dpp", v(U), v(D + 2), v(D + 2), mods="row_shr:4 row_mask:0xf bank_mask:0xa")
        a.I("v_add_f32_dpp", v(U + 1), v(D + 3), v(D + 3), mods="row_shr:4 row_mask:0xf bank_mask:0xa")
        for ctrl in ("quad_perm:[1,0,3,2]", "quad_perm:[2,3,0,1]"):
            self.dpp("v_add_f32", U, U, U, ctrl)
            self.dpp("v_add_f32", U + 1, U + 1, U + 1, ctrl)
        self.ex(mY)
        a.I("buffer_store_dwordx2", v(U, 2), v(vYP), s(SRD_WS, 4), s(sPY), mods="offen sc1")
        self.exec_all()
        self.stamp("y_pub0", 0)
        self.stamp("y_pub1", 1)
        a.label(l_skip2)

    def xg_issue(self, soff):
        a = self.a
        A = vT
        a.I("buffer_load_dwordx4", v(A, 4), v(vYG), s(SRD_WS, 4), s(soff), mods="offen sc1")
        a.I("buffer_load_dwordx4", v(A + 4, 4), v(vYG), s(SRD_WS, 4), s(soff), mods="offen offset:1024 sc1")

    def x_gather(self, soff, key, tag):
        a = self.a
        A = vT
        l_w, l_r = self.L("x_w"), self.L("x_r")
        self.delay(key)
        self.xg_issue(soff)
        self.stamp(tag + "_iss1", 1)
        a.label(l_w)
        a.wait(vm=0)
        self.stamp(tag + "_ret1", 1)
        chk, r01, r23, r = vT + 11, vT + 8, vT + 9, vT + 10
        self.maxtree(list(range(A, A + 8)), chk)
        for i in range(4):
            a.I("v_add_f32", v(A + i), v(A + i), v(A + 4 + i))
        self.branch_if_invalid(chk, l_r)
        a.I("v_add_f32_dpp", v(r01), v(A), v(A), mods="row_ror:8 row_mask:0xf bank_mask:0x3")
        a.I("v_add_f32_dpp", v(r23), v(A + 2), v(A + 2), mods="row_ror:8 row_mask:0xf bank_mask:0x3")
        a.I("v_add_f32_dpp", v(r01), v(A + 1), v(A + 1), mods="row_ror:8 row_mask:0xf bank_mask:0xc")
        a.I("v_add_f32_dpp", v(r23), v(A + 3), v(A + 3), mods="row_ror:8 row_mask:0xf bank_mask:0xc")
        a.I("v_add_f32_dpp", v(r), v(r01), v(r01), mods="row_shl:4 row_mask:0xf bank_mask:0x5")
        a.I("v_add_f32_dpp", v(r), v(r23), v(r23), mods="row_shr:4 row_mask:0xf bank_mask:0xa")
        self.dpp("v_add_f32", r, r, r, "quad_perm:[1,0,3,2]")
        self.dpp("v_add_f32", r, r, r, "quad_perm:[2,3,0,1]")
        a.I("v_add_f32", v(r), v(r), v(vXR))
        self.stamp(tag + "0", 0)
        self.stamp(tag + "1", 1)
        self.tail_retry.append((l_r, lambda: self.xg_issue(soff), l_w))
        return r

    def gu_tr_addr(self):
        a = self.a
        T = vT + 44
        self.tr_base(T, 96)
        a.I("s_cmp_ge_u32", s(sW), 3)
        a.I("s_cselect_b32", s(sT0), 8192 - 96, 0)
        a.I("s_lshl_b32", s(sT1), s(sW), 5)
        a.I("s_add_u32", s(sT0), s(sT0), s(sT1))
        a.I("s_add_u32", s(sT0), s(sT0), LA)
        a.I("v_add_u32", v(T), s(sT0), v(T))
        a.I("v_mov_b32", v(vWT + 10), 0)
        a.I("v_mov_b32", v(vWT + 11), 0)
        return T

    def gu_phase(self):
        a = self.a
        B, D, T, R = vT, vT + 16, vT + 44, vT + 24
        l_skip, l7, l_st = self.L("gu_s"), self.L("gu_7"), self.L("gu_st")
        self.if_wave(0, 6, l7)
        for st in range(3):
            for p in range(2):
                if st == 2 and p == 1:
                    continue
                a.I("ds_read_b64_tr_b16", v(vWT + 4 * st + 2 * p, 2), v(T), mods=f"offset:{96 * (32 * st + 16 * p)}")
        self.read_xfrags(B)
        a.wait(lgkm=0)
        for st in range(3):
            a.I("v_mfma_f32_16x16x32_bf16", v(D, 4), v(vWT + 4 * st, 4), v(B + 4 * st, 4), 0 if st == 0 else v(D, 4))
        self.ex(mGP)
        a.nop(7)
        self.store8("buffer_store_dwordx4", v(D, 4), v(vGPUB), s(sPG))
        self.exec_all()
        a.I("s_branch", l_skip)
        a.label(l7)
        self.if_wave(7, 8, l_skip)
        self.stats_read(R)
        a.wait(lgkm=0)
        self.stats_publish(R, sPG, 768)
        a.label(l_skip)

    def gg_issue(self, pair):
        a = self.a
        A = vT
        offs = (0, 192) if pair else (0, 192, 384, 576)
        for k, off in enumerate(offs):
            a.I("buffer_load_dwordx4", v(A + 4 * k, 4), v(vGG), s(SRD_WS, 4), s(sPG), mods=f"offen offset:{off} sc1")
        a.I("buffer_load_dwordx2", v(A + 16, 2), v(vSG), s(SRD_WS, 4), s(sPG), mods="offen offset:768 sc1")

    def gg_finish(self, pair, l_r):
        a = self.a
        A, S = vT, vT + 16
        chk, G, U, mean, rstd, t = vT + 18, vT + 19, vT + 20, vT + 21, vT + 22, vT + 23
        n = 8 if pair else 16
        self.maxtree(list(range(A, A + n)) + [S, S + 1], chk)
        self.branch_if_invalid(chk, l_r)
        if pair == 0:
            for base, out in ((A + 8, vCG), (A + 12, vCU)):
                self.rr4_a(base); self.rr4_b(base); self.rr4_c(base); self.rr4_d(base, out)
                self.dpp("v_add_f32", out, out, out, "row_ror:8")
        self.rr4_a(A); self.rr4_a(A + 4)
        self.dpp("v_add_f32", S, S, S, self.BF8[0]); self.dpp("v_add_f32", S + 1, S + 1, S + 1, self.BF8[0])
        self.rr4_b(A); self.rr4_b(A + 4)
        self.dpp("v_add_f32", S, S, S, self.BF8[1]); self.dpp("v_add_f32", S + 1, S + 1, S + 1, self.BF8[1])
        self.rr4_c(A); self.rr4_c(A + 4)
        self.dpp("v_add_f32", S, S, S, self.BF8[2]); self.dpp("v_add_f32", S + 1, S + 1, S + 1, self.BF8[2])
        self.rr4_d(A, G); self.rr4_d(A + 4, U)
        a.I("v_mul_f32", v(mean), hex(f2u(1.0 / 640)), v(S))
        a.I("v_mul_f32", v(t), hex(f2u(1.0 / 640)), v(S + 1))
        self.dpp("v_add_f32", G, G, G, "row_ror:8")
        self.dpp("v_add_f32", U, U, U, "row_ror:8")
        a.I("v_fma_f32", v(t), f"-v{mean}", v(mean), v(t))
        a.I("v_max_f32", v(t), 0, v(t))
        a.I("v_add_f32", v(t), hex(f2u(1e-5)), v(t))
        a.I("v_fma_f32", v(G), f"-v{mean}", v(vCG), v(G))
        a.I("v_fma_f32", v(U), f"-v{mean}", v(vCU), v(U))
        a.I("v_rcp_f32", v(rstd), v(t))
        a.I("v_mul_f32", v(G), v(G), v(U))
        a.I("v_mul_f32", v(G), v(G), v(rstd))
        a.I("v_cvt_pk_bf16_f32", v(G), v(G), v(G))
        a.I("ds_write_b16", v(vHW), v(G))

    def wd_prefetch(self):
        a = self.a
        T = vT + 44
        self.tr_base(T, 160)
        a.I("s_lshl_b32", s(sT0), s(sW), 5)
        a.I("s_add_u32", s(sT0), s(sT0), LA + 16384)
        a.I("v_add_u32", v(T), s(sT0), v(T))
        for st, p in ((0, 0), (0, 1), (1, 0)):
            a.I("ds_read_b64_tr_b16", v(vWT + 4 * st + 2 * p, 2), v(T), mods=f"offset:{160 * (32 * st + 16 * p)}")
        a.I("v_mov_b32", v(vWT + 6), 0)
        a.I("v_mov_b32", v(vWT + 7), 0)

    def g_gather(self):
        a = self.a
        l_skip, l_pf, l_p1, l_j = self.L("gg_s"), self.L("gg_pf"), self.L("gg_p1"), self.L("gg_j")
        self.if_wave(6, 8, l_pf)
        self.delay("g")
        for pair in (0, 1):
            l_w, l_r = self.L("gg_w"), self.L("gg_r")
            if pair == 0:
                self.if_pair0(l_p1)
            else:
                a.label(l_p1)
            self.gg_issue(pair)
            a.label(l_w)
            a.wait(vm=0)
            self.gg_finish(pair, l_r)
            self.stamp(f"gg_ok{pair}")
            self.tail_retry.append((l_r, (lambda p=pair: self.gg_issue(p)), l_w))
            a.I("s_branch", l_j)
        a.label(l_pf)
        self.if_wave(0, 5, l_j)
        self.wd_prefetch()
        a.label(l_j)
        self.log_retries(3)
        a.wait(lgkm=0)
        a.I("s_barrier")

    def d_phase(self):
        a = self.a
        B, D = vT, vT + 16
        l_skip = self.L("d_s")
        self.if_wave(0, 5, l_skip)
        for st in range(2):
            a.I("ds_read_b128", v(B + 4 * st, 4), v(vHB), mods=f"offset:{64 * st}")
        a.wait(lgkm=0)
        for st in range(2):
            a.I("v_mfma_f32_16x16x32_bf16", v(D, 4), v(vWT + 4 * st, 4), v(B + 4 * st, 4), 0 if st == 0 else v(D, 4))
        self.ex(mN0)
        a.nop(7)
        a.I("buffer_store_dwordx4", v(D, 4), v(vDP), s(SRD_WS, 4), s(sPD), mods="offen sc1")
        self.exec_all()
        a.label(l_skip)

    def set_pair_offsets(self):
        a = self.a
        a.I("s_mul_i32", s(sPQ), s(sP), QB[1])
        a.I("s_lshl_b32", s(sPO), s(sP), 9)
        a.I("s_add_u32", s(sPO), s(sPO), OB[0])
        a.I("s_lshl_b32", s(sPG), s(sP), 10)
        a.I("s_add_u32", s(sPG), s(sPG), GB[0])
        a.I("s_mul_i32", s(sPY), s(sP), 2 * YPK)
        a.I("s_add_u32", s(sPD), s(sPY), YPK)

    def set_gp_mask(self):
        a = self.a
        a.I("s_cmp_eq_u32", s(sP), 0)
        a.I("s_cselect_b64", s(mGP, 2), s(mN01, 2), s(mN0, 2))

    def build(self):
        a = self.a
        self.tail_retry = []
        if self.stamps and (self.stamp_sel is None or "start" in self.stamp_sel):
            pass
        self.prologue()
        self.set_pair_offsets()
        l_qj = self.L("qgJ")
        self.layer1_load()
        self.q_gather0_finish(l_qj)
        a.label("L_pair")
        l_skip = self.L("xs")
        self.if_wave(0, 5, l_skip)
        self.x_write(vT + 10)
        a.label(l_skip)
        a.wait(lgkm=0)
        a.I("s_barrier")
        self.stamp("B2_1")
        self.q_phase1()
        self.stamp("q_pub1")
        self.q_gather1(l_qj)
        a.label(l_qj)
        self.log_retries(0)
        a.wait(lgkm=0)
        a.I("s_barrier")
        self.stamp("B3_0", 0)
        self.stamp("B3_1", 1)
        self.attention()
        self.o_phase()
        l_skip, l_w = self.L("xs2"), self.L("xw")
        lg = self.L("gua")
        self.if_wave(0, 6, lg)
        self.gu_tr_addr()
        a.label(lg)
        self.if_wave(0, 5, l_w)
        r = self.x_gather(sPY, "y", "yg_ok")
        self.x_write(r)
        a.I("s_branch", l_skip)
        a.label(l_w)
        a.wait(vm=0)
        a.label(l_skip)
        self.log_retries(2)
        a.wait(lgkm=0)
        a.I("s_barrier")
        self.stamp("B6_1", 1)
        self.gu_phase()
        self.stamp("g_pub1", 1)
        self.g_gather()
        self.stamp("B7_1", 1)
        self.d_phase()
        self.stamp("d_pub0", 0)
        self.stamp("d_pub1", 1)
        l_fin = self.L("fin")
        a.I("s_cmp_eq_u32", s(sP), 1)
        a.I("s_cbranch_scc1", l_fin)
        l_skip = self.L("xs3")
        self.if_wave(0, 5, l_skip)
        r = self.x_gather(sPD, "d", "dg_ok")
        assert r == vT + 10
        a.label(l_skip)
        self.log_retries(4)
        a.I("s_mov_b32", s(sP), 1)
        self.set_pair_offsets()
        self.set_gp_mask()
        a.I("s_branch", "L_pair")
        a.label(l_fin)
        a.I("s_cmp_lg_u32", s(sH), 0)
        a.I("s_cbranch_scc1", "L_dump")
        self.if_wave(0, 5, "L_dump")
        self.srd(SRD_X, pOUT, sJ160, 1280)
        a.I("v_mov_b32", v(vT + 13), v(vXCOL))
        r = self.x_gather(sPD, "d", "fin_ok")
        a.I("v_cvt_pk_bf16_f32", v(r), v(r), v(r))
        self.ex(mQ0)
        a.I("buffer_store_short", v(r), v(vT + 13), s(SRD_X, 4), 0, mods="offen")
        self.exec_all()
        self.log_retries(4)
        lab = self.L("ep")
        a.I("s_or_b32", s(sT0), s(sJ), s(sW))
        a.I("s_cmp_lg_u32", s(sT0), 0)
        a.I("s_cbranch_scc1", lab)
        a.I("v_mov_b32", v(vT), s(sTag))
        a.I("v_mov_b32", v(vT + 1), hex(EPOCH))
        self.exi(1)
        a.I("buffer_store_dword", v(vT), v(vT + 1), s(SRD_WS, 4), 0, mods="offen sc1")
        self.exec_all()
        a.label(lab)
        a.label("L_dump")
        if self.stamps:
            self.stamp("end")
            a.wait(lgkm=0)
            T = vT
            a.I("v_mov_b32", v(T), 0)
            for k in range(len(self.stamp_names)):
                a.I("v_writelane_b32", v(T), s(STAMP_SLOTS[k]), k)
            a.I("v_writelane_b32", v(T), s(sTmo), 14)
            a.I("v_writelane_b32", v(T), s(sFast), 15)
            if self.dbgout:
                lab = self.L("dbo")
                a.I("s_cmp_lg_u32", s(sW), 0)
                a.I("s_cbranch_scc1", lab)
                a.I("s_cmp_eq_u32", s(2), 0)
                a.I("s_cselect_b32", s(sT1), 4, 36)
                a.I("s_cmp_eq_u32", s(2), 255)
                a.I("s_cselect_b32", s(sT2), 1, 0)
                a.I("s_cmp_eq_u32", s(2), 0)
                a.I("s_cselect_b32", s(sT2), 1, s(sT2))
                a.I("s_cmp_eq_u32", s(sT2), 0)
                a.I("s_cbranch_scc1", lab)
                a.I("v_subrev_u32", v(T + 2), s(STAMP_SLOTS[0]), v(T))
                a.I("v_lshlrev_b32", v(T + 3), 2, v(vL))
                a.I("v_add_u32", v(T + 3), s(sT1), v(T + 3))
                a.I("v_subrev_u32", v(T + 3), 4, v(T + 3))
                a.I("s_mov_b64", "exec", "0xfe")
                a.I("buffer_store_dword", v(T + 2), v(T + 3), s(SRD_DBG, 4), 0, mods="offen")
                self.exec_all()
                a.label(lab)
            a.I("s_lshl_b32", s(sT0), s(2), 3)
            a.I("s_add_u32", s(sT0), s(sT0), s(sW))
            a.I("s_lshl_b32", s(sT0), s(sT0), 7)
            a.I("s_add_u32", s(sT0), s(sT0), hex(DBGBASE))
            a.I("v_lshlrev_b32", v(T + 1), 2, v(vL))
            a.I("v_add_u32", v(T + 1), s(sT0), v(T + 1))
            a.I("s_mov_b64", "exec", "0xffff")
            a.I("buffer_store_dword", v(T), v(T + 1), s(SRD_WS, 4), 0, mods="offen")
            a.I("buffer_store_dword", v(vDBG), v(T + 1), s(SRD_WS, 4), 0, mods="offen offset:64")
            self.exec_all()
        a.label("L_end")
        a.I("s_endpgm")
        for (lab, fn, back) in self.tail_retry:
            a.label(lab)
            fn()
            self.retry(back)
        for (lab, op, data, vaddr, soff, mods, back) in self.ool:
            a.label(lab)
            a.I(op, data, vaddr, s(SRD_WS, 4), soff, mods=mods)
            a.I("s_branch", back)
        return a.fix()

    def text(self):
        hdr = open(os.path.join(os.path.dirname(os.path.abspath(__file__)), "header.txt")).read()
        body = self.a.text()
        return f"""{hdr}; @launch grid=(256,1,1) block=(512,1,1) lds={LDS_BYTES}
.amdgcn_target "amdgcn-amd-amdhsa--gfx950"
.text
.globl {KNAME}
.p2align 8
.type {KNAME},@function
{KNAME}:
{body}.section .rodata,"a"
.p2align 6
.amdhsa_kernel {KNAME}
  .amdhsa_next_free_vgpr 256
  .amdhsa_next_free_sgpr 102
  .amdhsa_accum_offset 256
  .amdhsa_group_segment_fixed_size 0
  .amdhsa_kernarg_size 96
  .amdhsa_user_sgpr_count 2
  .amdhsa_user_sgpr_kernarg_segment_ptr 1
  .amdhsa_system_sgpr_workgroup_id_x 1
.end_amdhsa_kernel
"""


def make(**kw):
    g = Gen(**kw)
    g.build()
    return g, g.text()


if __name__ == "__main__":
    out = sys.argv[1] if len(sys.argv) > 1 else "interleave_layers__sliding_block_cached__glu_gated_bilinear__decode.s"
    kw = {}
    for x in sys.argv[2:]:
        k, val = x.split("=")
        kw[k] = val.split(",") if k == "stamp_sel" else int(val)
    g, t = make(**kw)
    open(out, "w").write(t)
    print("instructions:", g.a.count(), "stamps:", g.stamp_names)
```
